```python
import torch

def _softmax(x, axis=-1):
    return torch.softmax(x, dim=axis)
def _gelu(x):
    return torch.nn.functional.gelu(x, approximate="tanh")
def _silu(x):
    return torch.nn.functional.silu(x)
def _sigmoid(x):
    return torch.sigmoid(x)
def _layernorm(x, axis=-1, eps=1e-5):
    m = x.mean(dim=axis, keepdim=True)
    v = x.var(dim=axis, keepdim=True, unbiased=False)
    return (x - m) / torch.sqrt(v + eps)
def _scatter_add(tgt, idx, src, axis=0):
    return tgt.clone().index_add_(axis, idx, src)
def _segment_sum(src, seg, n):
    out = torch.zeros((n,) + src.shape[1:], dtype=src.dtype)
    return out.index_add_(0, seg, src)
def _pad(x, pw):
    flat = tuple(v for pair in reversed(pw) for v in pair)
    return torch.nn.functional.pad(x, flat)

kernel_name = 'recurrent_scan__compressed_kv_cla__mixer_s_mlp__prompt'

def setup_inputs():

    _w = (lambda a: (lambda t: t.to(torch.bfloat16) if t.is_floating_point() else t)(torch.as_tensor(a)))
    def _A_setup():
        B, H, Sq, Sk, D, M = 1, 32, 2048, 2048, 128, 512
        Dc = 4 * D
        return {
            "x": _w((lambda *s: torch.randn(*s, dtype=torch.bfloat16) * 0.05)(B, Sq, M)),
            "c_kv": _w((lambda *s: torch.randn(*s, dtype=torch.bfloat16) * 0.2)(B, Sk, Dc)),
            "w_q": _w((lambda *s: torch.randn(*s, dtype=torch.bfloat16) * 3.2)(M, H, D) * (M ** -0.5)),
            "w_uk": _w((lambda *s: torch.randn(*s, dtype=torch.bfloat16) * 3.2)(Dc, H, D) * (Dc ** -0.5)),
            "w_uv": _w((lambda *s: torch.randn(*s, dtype=torch.bfloat16) * 0.2)(Dc, H, D) * (Dc ** -0.5)),
            "w_o": _w((lambda *s: torch.randn(*s, dtype=torch.bfloat16) * 0.2)(H, D, M) * ((H * D) ** -0.5)),
        }
    _A_in = _A_setup()

    def _B_setup():
        B, S, D, F = 1, 2048, 512, 1792
        return {
            "x":  _w((lambda *s: torch.randn(*s, dtype=torch.bfloat16) * 0.05)(B, S, D)),
            "w1": _w((lambda *s: torch.randn(*s, dtype=torch.bfloat16) * 1.6)(D, D) * (D ** -0.5)),
            "w2": _w((lambda *s: torch.randn(*s, dtype=torch.bfloat16) * 1.6)(D, D) * (D ** -0.5)),
            "w3": _w((lambda *s: torch.randn(*s, dtype=torch.bfloat16) * 1.6)(D, F) * (D ** -0.5)),
            "w4": _w((lambda *s: torch.randn(*s, dtype=torch.bfloat16) * 1.6)(F, D) * (F ** -0.5)),
        }
    _B_in = _B_setup()

    return {
        "A_x": _A_in["x"],
        "A_c_kv": _A_in["c_kv"],
        "A_w_q": _A_in["w_q"],
        "A_w_uk": _A_in["w_uk"],
        "A_w_uv": _A_in["w_uv"],
        "A_w_o": _A_in["w_o"],
        "B_x": _B_in["x"],
        "B_w1": _B_in["w1"],
        "B_w2": _B_in["w2"],
        "B_w3": _B_in["w3"],
        "B_w4": _B_in["w4"],
    }

def reference(A_x, A_c_kv, A_w_q, A_w_uk, A_w_uv, A_w_o, B_x, B_w1, B_w2, B_w3, B_w4):
    def _A_ref(x, c_kv, w_q, w_uk, w_uv, w_o):
        B, Sq, M = x.shape[0], x.shape[1], x.shape[2]
        Sk = c_kv.shape[1]
        H, D = w_q.shape[1], w_q.shape[2]
        q = torch.einsum("bqm,mhd->bhqd", x, w_q)
        k = torch.einsum("bkc,chd->bhkd", c_kv, w_uk)
        v = torch.einsum("bkc,chd->bhkd", c_kv, w_uv)
        scores = torch.einsum("bhqd,bhkd->bhqk", q, k) * (D ** -0.5)
        off = Sk - Sq
        qi = torch.arange(Sq)[:, None]
        kj = torch.arange(Sk)[None, :]
        cmask = kj <= (qi + off)
        scores = torch.where(cmask[None, None], scores, -1e9)
        p = _softmax(scores, axis=-1)
        ctx = torch.einsum("bhqk,bhkd->bhqd", p, v)
        return torch.einsum("bhqd,hdm->bqm", ctx, w_o)

    def _B_ref(x, w1, w2, w3, w4):
        B, S, D = x.shape
        h = _gelu(_layernorm(x, axis=-1) @ w1)
        c = D // 4
        g0 = _pad(h[:, :, 0*c:1*c], ((0, 0), (1, 0), (0, 0)))[:, :S, :]
        g1 = _pad(h[:, :, 1*c:2*c], ((0, 0), (0, 1), (0, 0)))[:, 1:, :]
        g2 = _pad(h[:, :, 2*c:3*c], ((0, 0), (2, 0), (0, 0)))[:, :S, :]
        g3 = _pad(h[:, :, 3*c:   ], ((0, 0), (0, 2), (0, 0)))[:, 2:, :]
        hs = torch.concatenate([g0, g1, g2, g3], axis=-1) @ w2
        x1 = x + hs
        h2 = _gelu(_layernorm(x1, axis=-1) @ w3) @ w4
        return x1 + h2

    x = A_x
    xn = _layernorm(x, axis=-1)
    s = _A_ref(xn, A_c_kv, A_w_q, A_w_uk, A_w_uv, A_w_o)
    g = _silu(_B_ref(xn, B_w1, B_w2, B_w3, B_w4))
    return x + s * g
```

```python
class Asm:
    def __init__(self):
        self.L = []
        self.uid = 0
    def __call__(self, s=""):
        for l in s.split("\n"):
            self.L.append("    " + l.strip())
    def raw(self, s):
        self.L.append(s)
    def label(self, l):
        self.L.append(l + ":")
    def newlabel(self, p="L"):
        self.uid += 1
        return f"{p}_{self.uid}"
    def text(self):
        return "\n".join(self.L) + "\n"

def v(a, n=1):
    return f"v{a}" if n == 1 else f"v[{a}:{a+n-1}]"
def a(a_, n=1):
    return f"a{a_}" if n == 1 else f"a[{a_}:{a_+n-1}]"
def s(a_, n=1):
    return f"s{a_}" if n == 1 else f"s[{a_}:{a_+n-1}]"

def kernel_begin(A, name):
    A.raw(f".globl {name}")
    A.raw(".p2align 8")
    A.raw(f".type {name},@function")
    A.raw(f"{name}:")

def kernel_desc(name, vgpr=512, sgpr=102, accum=256):
    return f""".p2align 6
.amdhsa_kernel {name}
  .amdhsa_next_free_vgpr {vgpr}
  .amdhsa_next_free_sgpr {sgpr}
  .amdhsa_accum_offset {accum}
  .amdhsa_group_segment_fixed_size 0
  .amdhsa_kernarg_size 112
  .amdhsa_user_sgpr_count 2
  .amdhsa_user_sgpr_kernarg_segment_ptr 1
  .amdhsa_system_sgpr_workgroup_id_x 1
.end_amdhsa_kernel
"""

def file_text(launches, body, descs, header=""):
    t = header
    for (n, g, b, lds) in launches:
        t += f"; @launch kernel={n} grid=({g},1,1) block=({b},1,1) lds={lds}\n"
    t += '.amdgcn_target "amdgcn-amd-amdhsa--gfx950"\n.text\n'
    t += body
    t += '.section .rodata,"a"\n'
    t += "".join(descs)
    return t

def srd(A, d, base, nbytes):
    A(f"s_mov_b32 s{d}, s{base}")
    A(f"s_mov_b32 s{d+1}, s{base+1}")
    A(f"s_mov_b32 s{d+2}, {nbytes}")
    A(f"s_mov_b32 s{d+3}, 0x00020000")
```

```python
from common import *

O_L, O_S = 0, 64
KA, KB, VA, VB = 128, 160, 192, 224
S0, S1, P0, P1 = 16, 32, 48, 56
Q_S, Q_L = 64, 96
BIAS, TRI = 128, 144
LA, LB = 160, 161
L0 = (160, 161); L1 = (162, 163)
V_L16, V_K1, V_K2, V_V0, V_V1, V_DMA, V_BB = 1, 2, 3, 4, 5, 6, 7
V_CS, V_CL = 8, 9
S_W, S_HEAD, S_J, S_TD, S_TL, S_T = 20, 21, 22, 23, 24, 25
S_KOFF, S_VOFF, S_M0K, S_M0V, S_W4K = 26, 27, 28, 29, 30
S_QBS, S_QBL, S_A, S_B, S_D = 31, 32, 33, 34, 35
S_CSO = 36
S_TMP, S_TMP2 = 37, 38
LDS_K, LDS_V, LDS_X = 0, 65536, 131072
NEG = "0xff800000"

class VM:
    def __init__(s): s.q = []
    def issue(s, tag): s.q.append(tag)
    def cnt(s, tags):
        last = max(i for i, t in enumerate(s.q) if t in tags)
        return len(s.q) - 1 - last

def ar(b, n=4): return f"a[{b}:{b+n-1}]"
def vr(b, n=4): return f"v[{b}:{b+n-1}]"

def qk(slot, kbuf, q, bias):
    S = S0 if slot == 0 else S1
    M = []
    for s in range(8):
        c = (vr(BIAS,16) if bias else "0") if s == 0 else vr(S,16)
        M.append(f"v_mfma_f32_32x32x16_bf16 {vr(S,16)}, {ar(kbuf+4*s)}, {vr(q+4*s)}, {c}")
    return M
def pv(slot, vbuf, o):
    P = P0 if slot == 0 else P1
    M = []
    for t in range(2):
        for db in range(4):
            M.append(f"v_mfma_f32_32x32x16_bf16 {ar(o+16*db,16)}, {ar(vbuf+4*(t*4+db))}, {vr(P+4*t)}, {ar(o+16*db,16)}")
    return M
def sm(slot, lacc=None):
    S = S0 if slot == 0 else S1
    P = P0 if slot == 0 else P1
    L = lacc or (L0 if slot == 0 else L1)
    F = []
    ge = lambda i: 0 if i == 0 else i-1
    byg = {g: [] for g in range(16)}
    for i in range(16):
        byg[ge(i)].append((0, f"v_exp_f32 v{S+i}, v{S+i}"))
    for i in range(16):
        g = min(ge(i) + 1, 15)
        byg[g].append((1, f"v_add_f32 v{L[i&1]}, v{L[i&1]}, v{S+i}"))
        if i & 1:
            byg[g].append((2, f"v_cvt_pk_bf16_f32 v{P+(i>>1)}, v{S+i-1}, v{S+i}"))
    for g in range(16):
        for pr, t in sorted(byg[g], key=lambda x: (x[0] == 0, x[0])):
            F.append((g, t))
    return F

def kreads(addr, kb, buf):
    return [f"ds_read_b128 {ar(buf+4*s)}, v{addr} offset:{(kb*8+s)*1024}" for s in range(8)]
def vreads(addr, kb, buf):
    return [f"ds_read_b128 {ar(buf+4*i)}, v{addr} offset:{(kb*8+i)*1024}" for i in range(8)]

def dma_ops():
    G = []
    G.append([f"s_mov_b32 m0, s{S_M0K}"])
    for i in range(4):
        G.append([f"buffer_load_dwordx4 v{V_DMA}, s[4:7], s{S_KOFF} offen offset:{i*1024} lds"])
    G.append([f"s_mov_b32 m0, s{S_M0V}"])
    for i in range(4):
        G.append([f"buffer_load_dwordx4 v{V_DMA}, s[4:7], s{S_VOFF} offen offset:{i*1024} lds"])
    return G

def iter_top(A):
    A("s_waitcnt vmcnt(8)")
    A("s_barrier")
    A(f"s_add_u32 s{S_TMP}, s{S_T}, 4")
    A(f"s_lshl_b32 s{S_KOFF}, s{S_TMP}, 15")
    A(f"s_cmp_ge_u32 s{S_TMP}, s{S_TL}")
    A(f"s_cselect_b32 s{S_KOFF}, 0x100000, s{S_KOFF}")
    A(f"s_and_b32 s{S_M0K}, s{S_T}, 3")
    A(f"s_lshl_b32 s{S_M0K}, s{S_M0K}, 14")
    A(f"s_add_u32 s{S_M0K}, s{S_M0K}, s{S_W4K}")
    A(f"s_add_u32 s{S_TMP}, s{S_T}, 3")
    A(f"s_lshl_b32 s{S_VOFF}, s{S_TMP}, 15")
    A(f"s_add_u32 s{S_VOFF}, s{S_VOFF}, 16384")
    A(f"s_cmp_ge_u32 s{S_TMP}, s{S_TL}")
    A(f"s_cselect_b32 s{S_VOFF}, 0x100000, s{S_VOFF}")
    A(f"s_and_b32 s{S_M0V}, s{S_TMP}, 3")
    A(f"s_lshl_b32 s{S_M0V}, s{S_M0V}, 14")
    A(f"s_add_u32 s{S_M0V}, s{S_M0V}, s{S_W4K}")
    A(f"s_add_u32 s{S_M0V}, s{S_M0V}, {LDS_V}")

def addr_update():
    R = []
    for (reg, d, base) in ((V_K1, 1, LDS_K), (V_K2, 2, LDS_K), (V_V0, 0, LDS_V), (V_V1, 1, LDS_V)):
        R.append(f"s_add_u32 s{S_TMP2}, s{S_T}, {d}")
        R.append(f"s_and_b32 s{S_TMP2}, s{S_TMP2}, 3")
        R.append(f"s_lshl_b32 s{S_TMP2}, s{S_TMP2}, 14")
        if base: R.append(f"s_add_u32 s{S_TMP2}, s{S_TMP2}, {base}")
        R.append(f"v_add_u32 v{reg}, s{S_TMP2}, v{V_L16}")
    return R

class AttnGen:
    def __init__(self, A):
        self.A = A
        self.ool = []
    def bias_site(self, qb, kb_expr_setup, always=False):
        A = self.A
        lu, lr = A.newlabel("BU"), A.newlabel("BR")
        for t in kb_expr_setup: A(t)
        if not always:
            A(f"s_and_b32 s{S_A}, s{qb}, 0xfffffffc")
            A(f"s_cmp_ge_u32 s{S_D}, s{S_A}")
            A(f"s_cbranch_scc1 {lu}")
            A.label(lr)
            def blk():
                A.label(lu); self.bias_update(qb); A(f"s_branch {lr}")
            self.ool.append(blk)
        else:
            self.bias_update(qb)
    def bias_update(self, qb):
        A = self.A
        A(f"s_sub_i32 s{S_D}, s{qb}, s{S_D}")
        A(f"s_cmp_eq_i32 s{S_D}, 0")
        A(f"s_cselect_b32 s{S_A}, -1, 0")
        A(f"s_cmp_lt_i32 s{S_D}, 0")
        A(f"s_cselect_b32 s{S_B}, {NEG}, 0")
        A(f"v_mov_b32 v{V_BB}, s{S_B}")
        for r in range(16):
            A(f"v_and_or_b32 v{BIAS+r}, v{TRI+r}, s{S_A}, v{V_BB}")
        A("s_nop 1")

def group(A, M, F, pre=()):
    for t in pre: A(t)
    interleave(A, M, F)

def place(lst, gaps):
    out = []
    for it, g in zip(lst, gaps):
        if isinstance(it, (list, tuple)):
            for t in it: out.append((g, t))
        else: out.append((g, it))
    return out

def split16(F):
    a = [(g, t) for g, t in F if g < 8]
    b = [(g-8, t) for g, t in F if g >= 8]
    return a, b

FINE = False
def emit_attn(A, wgid="s2", stamp=None, fallback=True):
    G = AttnGen(A)
    st = stamp if stamp else (lambda k: None)
    load_ptr(A, 40, KA_WQ); load_ptr(A, 42, KA_WS)
    A("v_lshrrev_b32 v10, 6, v0")
    A("v_and_b32 v11, 63, v0")
    A(f"v_readfirstlane_b32 s{S_W}, v10")
    A(f"s_and_b32 s{S_HEAD}, {wgid}, 7")
    A(f"s_lshr_b32 s{S_TMP}, {wgid}, 3")
    A(f"s_and_b32 s{S_TMP}, s{S_TMP}, 3")
    A(f"s_lshl_b32 s{S_TMP}, s{S_TMP}, 3")
    A(f"s_add_u32 s{S_HEAD}, s{S_HEAD}, s{S_TMP}")
    A(f"s_lshr_b32 s{S_J}, {wgid}, 5")
    A(f"s_add_u32 s{S_TD}, s{S_J}, 1"); A(f"s_lshl_b32 s{S_TD}, s{S_TD}, 1")
    A(f"s_sub_u32 s{S_TL}, 16, s{S_J}"); A(f"s_lshl_b32 s{S_TL}, s{S_TL}, 1")
    A(f"s_lshl_b32 s{S_QBS}, s{S_J}, 2"); A(f"s_add_u32 s{S_QBS}, s{S_QBS}, s{S_W}")
    A(f"s_sub_u32 s{S_QBL}, 15, s{S_J}"); A(f"s_lshl_b32 s{S_QBL}, s{S_QBL}, 2"); A(f"s_add_u32 s{S_QBL}, s{S_QBL}, s{S_W}")
    A(f"s_lshl_b32 s{S_W4K}, s{S_W}, 12")
    A(f"s_lshl_b32 s{S_CSO}, s{S_HEAD}, 12")
    A(f"v_lshlrev_b32 v{V_L16}, 4, v11")
    A(f"v_add_u32 v{V_DMA}, s{S_W4K}, v{V_L16}")
    A("s_waitcnt lgkmcnt(0)")
    A(f"s_lshl_b32 s{S_TMP}, s{S_HEAD}, 20")
    A(f"s_add_u32 s4, s42, s{S_TMP}"); A("s_addc_u32 s5, s43, 0")
    if WS_KV: A(f"s_add_u32 s4, s4, {hex(WS_KV)}"); A("s_addc_u32 s5, s5, 0")
    A("s_mov_b32 s6, 0x100000"); A("s_mov_b32 s7, 0x00020000")
    A(f"s_lshl_b32 s{S_TMP}, s{S_HEAD}, 8")
    A(f"s_add_u32 s8, s40, s{S_TMP}"); A("s_addc_u32 s9, s41, 0")
    A(f"s_sub_u32 s10, 0x400000, s{S_TMP}"); A("s_mov_b32 s11, 0x00020000")
    srd_off(A, 12, 42, WS_XNF, 0x200000)
    srd_off(A, 16, 42, WS_CTX, 0x1000000)
    A("v_lshrrev_b32 v13, 4, v11")
    A("v_and_b32 v14, 15, v11")
    A("v_lshlrev_b32 v15, 2, v13")
    A("v_xor_b32 v15, v14, v15")
    A("v_lshlrev_b32 v15, 4, v15")
    A("v_lshl_add_u32 v12, v13, 13, v15")
    A(f"s_lshl_b32 s{S_TMP}, s{S_W}, 18")
    A(f"v_add_u32 v12, s{S_TMP}, v12")
    A("v_and_b32 v18, 1, v13")
    A("v_lshrrev_b32 v19, 5, v11")
    A("v_lshl_add_u32 v20, v19, 4, v14")
    A("v_lshlrev_b32 v20, 4, v20")
    A("v_lshl_add_u32 v21, v18, 14, v20")
    A(f"s_lshl_b32 s{S_TMP}, s{S_QBS}, 15"); A(f"v_add_u32 v16, s{S_TMP}, v21")
    A(f"s_lshl_b32 s{S_TMP}, s{S_QBL}, 15"); A(f"v_add_u32 v17, s{S_TMP}, v21")
    A("v_lshl_add_u32 v21, v18, 17, v20")
    A(f"s_lshl_b32 s{S_TMP}, s{S_QBS}, 18"); A(f"v_add_u32 v{V_CS}, s{S_TMP}, v21")
    A(f"s_lshl_b32 s{S_TMP}, s{S_QBL}, 18"); A(f"v_add_u32 v{V_CL}, s{S_TMP}, v21")
    A("v_lshrrev_b32 v26, 2, v14")
    A("v_lshrrev_b32 v27, 1, v13")
    A("v_lshl_add_u32 v27, v27, 3, v26")
    A("v_lshlrev_b32 v27, 8, v27")
    A("v_bfe_u32 v28, v14, 1, 1")
    A("v_lshl_add_u32 v28, v18, 1, v28")
    A("v_lshl_add_u32 v27, v28, 4, v27")
    A("v_and_b32 v28, 1, v14")
    A("v_lshl_add_u32 v27, v28, 3, v27")
    for db in range(4):
        A(f"v_xor_b32 v28, {db}, v26")
        A(f"v_lshl_add_u32 v{22+db}, v28, 6, v27")
    vm = VM()
    WBUF = [LDS_X, 32768, 98304, LDS_X]
    S_WS, S_WM = 39, 44
    A(f"s_lshl_b32 s{S_WM}, s{S_W}, 13")
    def wdma(c):
        R = []
        for i in range(8):
            R.append([f"s_add_u32 m0, s{S_WM}, {WBUF[c] + i*1024}",
                      f"s_mov_b32 s{S_WS}, {(128*c + 4*i)*8192}",
                      f"buffer_load_dwordx4 v12, s[8:11], s{S_WS} offen lds"])
        return R
    def bload(c, s):
        p = c & 1
        R = []
        for b, vx in ((0, 16), (1, 17)):
            R.append(f"buffer_load_dwordx4 {ar(64*p + 32*b + 4*s)}, v{vx}, s[12:15], s{45+c} offen offset:{512*s}")
        return R
    for c in range(4): A(f"s_mov_b32 s{45+c}, {4096*c}")
    def kvdma(kind, T):
        base = (LDS_K if kind == "K" else LDS_V) + (T & 3)*16384
        off = T*32768 + (0 if kind == "K" else 16384)
        R = [[f"s_add_u32 m0, s{S_W4K}, {base}", f"s_mov_b32 s{S_WS}, {off}"]]
        for i in range(4):
            R.append([f"buffer_load_dwordx4 v{V_DMA}, s[4:7], s{S_WS} offen offset:{i*1024} lds"])
        return R
    def emit_list(R, tag):
        for g in R:
            if isinstance(g, str): g = [g]
            for t in g:
                A(t)
                if t.startswith("buffer_"): vm.issue(tag)
    st(0)
    emit_list(wdma(0), "W0")
    for s in range(8): emit_list(bload(0, s), "B0")
    emit_list(wdma(1), "W1")
    for s in range(8): emit_list(bload(1, s), "B1")
    emit_list(wdma(2), "W2")
    def wreads(c, s):
        p = s & 1
        R = []
        for db in range(4):
            for rd in range(2):
                b = 128 + 16*p + 4*db + 2*rd
                R.append(f"ds_read_b64_tr_b16 a[{b}:{b+1}], v{22+db} offset:{4096*s + 1024*rd}")
        return R
    def setbuf(c):
        d = WBUF[c] - (WBUF[c-1] if c else 0)
        R = []
        for db in range(4):
            if d >= 0: R.append(f"v_add_u32 v{22+db}, {d}, v{22+db}")
            else: R.append(f"v_subrev_u32 v{22+db}, {-d}, v{22+db}")
        return R
    for t in setbuf(0): A(t)
    A(f"s_waitcnt vmcnt({vm.cnt(['W0','B0'])})")
    A("s_barrier")
    st(1)
    for t in wreads(0, 0): A(t)
    QACC = lambda b, db: vr(128 + 64*b + 16*db, 16)
    kvlist = [("K",0),("K",1),("V",0),("V",1)]
    for c in range(4):
        for s in range(8):
            p = s & 1
            pre = ["s_waitcnt lgkmcnt(0)"]
            last = (s == 7)
            if last and c < 3:
                n = vm.cnt([f"W{c+1}", f"B{c+1}"])
                pre = [f"s_waitcnt vmcnt({n}) lgkmcnt(0)", "s_barrier"] + setbuf(c+1)
            M = []
            for db in range(4):
                for b in range(2):
                    cc = "0" if (c == 0 and s == 0) else QACC(b, db)
                    M.append(f"v_mfma_f32_32x32x16_bf16 {QACC(b,db)}, {ar(128+16*p+4*db)}, {ar(64*(c&1)+32*b+4*s)}, {cc}")
            F = []
            if not last: F += place(wreads(c, s+1), range(8))
            elif c < 3: F += place(wreads(c+1, 0), range(8))
            ext = []
            if s > 0 and c + 2 <= 3:
                ext += [(t, f"B{c+2}") for t in bload(c+2, s-1)]
            if last and c + 2 <= 3:
                pass
            if last and c == 0:
                for g in wdma(3): ext += [(t, "W3") for t in g]
            if last and c == 1:
                for T in (2, 3):
                    for g in kvdma("K", T): ext += [(t, "KV2") for t in g]
            if last and c == 2:
                for g in kvdma("V", 2): ext += [(t, "KV2") for t in g]
            if c == 0 and s in (1, 3, 5, 6) :
                k_, T = kvlist[(1, 3, 5, 6).index(s)]
                for g in kvdma(k_, T): ext += [(t, "KV0") for t in g]
            for t in pre: A(t)
            ng = 8
            for k, (t, tag) in enumerate(ext):
                g = min(7, k*ng // max(len(ext), 1))
                F.append((g, t))
                if t.startswith("buffer_"): vm.issue(tag)
            interleave(A, M, F)
            if last and c + 2 <= 3:
                for t in bload(c+2, 7): A(t); vm.issue(f"B{c+2}")
    st(2)
    for r in range(4): A(f"v_mov_b32 v{S0+r}, 0")
    A("s_nop 4"); A("s_nop 7")
    Z = [f"v_mfma_f32_32x32x16_bf16 {ar(16*i,16)}, {vr(S0)}, {vr(S0)}, 0" for i in range(8)]
    F = []
    k = 0
    for b, qd in ((0, Q_S), (1, Q_L)):
        for db in range(4):
            for t in range(2):
                for r in range(4):
                    src = 128 + 64*b + 16*db + 8*t + 2*r
                    F.append((k // 8, f"v_cvt_pk_bf16_f32 v{qd + 4*(2*db+t) + r}, v{src}, v{src+1}")); k += 1
    A(f"s_waitcnt vmcnt({vm.cnt(['KV0'])})")
    A("s_barrier")
    A(f"s_mov_b32 s{S_T}, 0")
    for t in kreads(V_L16, 0, KA): A(t)
    for t in kreads(V_L16, 1, KB): A(t)
    interleave(A, Z, F)
    A("v_and_b32 v10, 63, v0"); A("v_and_b32 v11, 31, v10"); A("v_lshrrev_b32 v12, 5, v10")
    A("v_lshlrev_b32 v12, 2, v12"); A("v_sub_u32 v11, v11, v12")
    A(f"v_mov_b32 v12, {NEG}")
    for r in range(16):
        key = 16*((r >> 2) & 1) + 8*(r >> 3) + (r & 3)
        A(f"v_cmp_gt_i32 vcc, {key}, v11")
        A("s_nop 1")
        A(f"v_cndmask_b32 v{TRI+r}, 0, v12, vcc")
        A(f"v_mov_b32 v{BIAS+r}, 0")
    for r in (160, 161, 162, 163): A(f"v_mov_b32 v{r}, 0")
    G.bias_site(S_QBS, [f"s_mov_b32 s{S_D}, 0"])
    A("s_waitcnt lgkmcnt(8)")
    for m in qk(0, KA, Q_S, True): A(m)
    for m in qk(1, KA, Q_L, False): A(m)
    A(f"v_add_u32 v{V_V0}, {LDS_V}, v{V_L16}")
    for t in vreads(V_V0, 0, VA): A(t)
    A("s_nop 7"); A("s_nop 3")
    for g, t in sm(0):
        A(t)
        if t.startswith("v_exp"): A("s_nop 0")
    st(3)
    def double_iter(tail):
        iter_top(A)
        for t in addr_update(): A(t)
        D = dma_ops()
        smA, smB = split16(sm(1))
        G.bias_site(S_QBS, [f"s_lshl_b32 s{S_D}, s{S_T}, 1", f"s_add_u32 s{S_D}, s{S_D}, 1"])
        group(A, qk(0, KB, Q_S, True), smA + place(kreads(V_K1, 0, KA), range(8)), pre=["s_waitcnt lgkmcnt(8)"])
        group(A, pv(0, VA, O_S), smB + place(D[:5], (1, 2, 4, 5, 7)), pre=["s_waitcnt lgkmcnt(8)"])
        smA, smB = split16(sm(0))
        group(A, qk(1, KB, Q_L, False), smA + place(vreads(V_V0, 1, VB), range(8)))
        group(A, pv(1, VA, O_L), smB + place(D[5:], (1, 2, 4, 5, 7)))
        smA, smB = split16(sm(1))
        if not tail:
            G.bias_site(S_QBS, [f"s_lshl_b32 s{S_D}, s{S_T}, 1", f"s_add_u32 s{S_D}, s{S_D}, 2"])
            group(A, qk(0, KA, Q_S, True), smA + place(kreads(V_K1, 1, KB), range(8)), pre=["s_waitcnt lgkmcnt(8)"])
        else:
            group(A, [], smA + place(kreads(V_K1, 1, KB), range(8)), pre=["s_nop 7", "s_nop 3"])
        group(A, pv(0, VB, O_S), smB, pre=["s_waitcnt lgkmcnt(8)"])
        if not tail:
            smA, smB = split16(sm(0))
            group(A, qk(1, KA, Q_L, False), smA + place(vreads(V_V1, 0, VA), range(8)))
            group(A, pv(1, VB, O_L), smB)
        else:
            G.bias_site(S_QBL, [f"s_lshl_b32 s{S_D}, s{S_T}, 1", f"s_add_u32 s{S_D}, s{S_D}, 2"], always=True)
            group(A, qk(1, KA, Q_L, True), place(vreads(V_V1, 0, VA), range(8)), pre=["s_waitcnt lgkmcnt(8)"])
            group(A, pv(1, VB, O_L), [])
    ld = A.newlabel("DL")
    A.label(ld)
    double_iter(False)
    A(f"s_add_u32 s{S_T}, s{S_T}, 1")
    A(f"s_add_u32 s{S_TMP}, s{S_T}, 1")
    A(f"s_cmp_lt_u32 s{S_TMP}, s{S_TD}")
    A(f"s_cbranch_scc1 {ld}")
    double_iter(True)
    st(4)
    def sm_into(Sreg, Preg, L):
        R = []
        for i in range(16): R.append(f"v_exp_f32 v{Sreg+i}, v{Sreg+i}")
        R.append("s_nop 0")
        for i in range(16): R.append(f"v_add_f32 v{L[i&1]}, v{L[i&1]}, v{Sreg+i}")
        for k in range(8): R.append(f"v_cvt_pk_bf16_f32 v{Preg+k}, v{Sreg+2*k}, v{Sreg+2*k+1}")
        return R
    A("s_nop 7"); A("s_nop 3")
    for t in sm_into(S1, P0, L1): A(t)
    G.bias_site(S_QBL, [f"s_lshl_b32 s{S_D}, s{S_T}, 1", f"s_add_u32 s{S_D}, s{S_D}, 3"], always=True)
    A("s_waitcnt lgkmcnt(0)")
    for m in qk(1, KB, Q_L, True): A(m)
    for t in kreads(V_K2, 0, KA): A(t)
    def store_block(x, vc, rd):
        cnt = 0
        for db in range(4):
            for t in range(2):
                b = 232 + 12*(cnt & 1); cnt += 1
                rd(db, t, b)
                for r in range(4): A(f"v_cvt_pk_bf16_f32 v{b+8+r}, v{b+2*r}, v{b+2*r+1}")
                A(f"buffer_store_dwordx4 {vr(b+8)}, v{vc}, s[16:19], s{S_CSO} offen offset:{db*1024+t*512}")
    def half_sum(x, y, op="v_add_f32"):
        A(f"v_mov_b32 v{y}, v{x}")
        A("s_nop 1")
        A(f"v_permlane32_swap_b32 v{x}, v{y}")
        A("s_nop 1")
        A(f"{op} v{x}, v{x}, v{y}")
    def epilogue(o, L, vc, qreg, qb):
        x, y = 164, 165
        A(f"v_add_f32 v{x}, v{L[0]}, v{L[1]}")
        for r in L[2:]: A(f"v_add_f32 v{x}, v{x}, v{r}")
        half_sum(x, y)
        lf, lr = A.newlabel("FB"), A.newlabel("FR")
        if fallback:
            A(f"v_mov_b32 v{y}, 0x2b800000")
            A(f"v_cmp_ge_f32 vcc, v{x}, v{y}")
            A(f"v_mov_b32 v{y}, 0x53800000")
            A(f"v_cmp_le_f32 s[50:51], v{x}, v{y}")
            A("s_nop 1")
            A("s_and_b64 vcc, vcc, s[50:51]")
            A("s_cmp_eq_u64 vcc, -1")
            A(f"s_cbranch_scc0 {lf}")
        A(f"v_rcp_f32 v{x}, v{x}")
        A("s_nop 0")
        def rd(db, t, b):
            for r in range(8): A(f"v_accvgpr_read_b32 v{b+r}, a{o+16*db+8*t+r}")
            for r in range(8): A(f"v_mul_f32 v{b+r}, v{b+r}, v{x}")
        store_block(x, vc, rd)
        A.label(lr)
        if fallback:
            def blk():
                A.label(lf); fallback_code(vc, qreg, qb); A(f"s_branch {lr}")
            G.ool.append(blk)
    def fallback_code(vc, qreg, qb):
        FO, FK, FV = 164, 64, 96
        m, l, al, t0, t1, ad = 228, 229, 230, 231, 232, 233
        S_KB, S_O1, S_O2 = 52, 53, 54
        for r in range(64): A(f"v_mov_b32 v{FO+r}, 0")
        A(f"v_mov_b32 v{m}, {NEG}"); A(f"v_mov_b32 v{l}, 0")
        A(f"v_add_u32 v{ad}, 4096, v{V_L16}")
        A(f"s_mov_b32 s{S_KB}, 0")
        lp, ld_, ln_ = A.newlabel("FL"), A.newlabel("FD"), A.newlabel("FN")
        A.label(lp)
        A(f"s_lshr_b32 s{S_O1}, s{S_KB}, 1"); A(f"s_lshl_b32 s{S_O1}, s{S_O1}, 15")
        A(f"s_and_b32 s{S_O2}, s{S_KB}, 1"); A(f"s_lshl_b32 s{S_O2}, s{S_O2}, 13")
        A(f"s_add_u32 s{S_O1}, s{S_O1}, s{S_O2}")
        A(f"s_add_u32 s{S_O2}, s{S_O1}, 16384")
        for s_ in range(8):
            A(f"buffer_load_dwordx4 {ar(FK+4*s_)}, v{V_L16 if s_ < 4 else ad}, s[4:7], s{S_O1} offen offset:{(s_&3)*1024}")
        for s_ in range(8):
            A(f"buffer_load_dwordx4 {ar(FV+4*s_)}, v{V_L16 if s_ < 4 else ad}, s[4:7], s{S_O2} offen offset:{(s_&3)*1024}")
        A("s_waitcnt vmcnt(8)")
        A(f"s_cmp_eq_u32 s{S_KB}, s{qb}")
        A(f"s_cbranch_scc1 {ld_}")
        A(f"v_mfma_f32_32x32x16_bf16 {vr(S0,16)}, {ar(FK)}, {vr(qreg)}, 0")
        A(f"s_branch {ln_}")
        A.label(ld_)
        A(f"v_mfma_f32_32x32x16_bf16 {vr(S0,16)}, {ar(FK)}, {vr(qreg)}, {vr(TRI,16)}")
        A.label(ln_)
        for s_ in range(1, 8):
            A(f"v_mfma_f32_32x32x16_bf16 {vr(S0,16)}, {ar(FK+4*s_)}, {vr(qreg+4*s_)}, {vr(S0,16)}")
        A("s_nop 7"); A("s_nop 7")
        A(f"v_max_f32 v{t0}, v{S0}, v{S0+1}")
        for r in range(2, 16, 2): A(f"v_max3_f32 v{t0}, v{t0}, v{S0+r}, v{S0+r+1}")
        half_sum(t0, t1, "v_max_f32")
        A(f"v_max_f32 v{t0}, v{t0}, v{m}")
        A(f"v_sub_f32 v{al}, v{m}, v{t0}")
        A(f"v_exp_f32 v{al}, v{al}")
        A(f"v_mov_b32 v{m}, v{t0}")
        for r in range(16): A(f"v_sub_f32 v{S0+r}, v{S0+r}, v{m}")
        for r in range(16): A(f"v_exp_f32 v{S0+r}, v{S0+r}")
        A(f"v_mul_f32 v{l}, v{l}, v{al}")
        for r in range(16): A(f"v_add_f32 v{l}, v{l}, v{S0+r}")
        for r in range(8): A(f"v_cvt_pk_bf16_f32 v{P1+r}, v{S0+2*r}, v{S0+2*r+1}")
        for r in range(64): A(f"v_mul_f32 v{FO+r}, v{FO+r}, v{al}")
        A("s_waitcnt vmcnt(0)")
        A("s_nop 1")
        for t in range(2):
            for db in range(4):
                A(f"v_mfma_f32_32x32x16_bf16 {vr(FO+16*db,16)}, {ar(FV+4*(t*4+db))}, {vr(P1+4*t)}, {vr(FO+16*db,16)}")
        A("s_nop 7"); A("s_nop 7")
        A(f"s_add_u32 s{S_KB}, s{S_KB}, 1")
        A(f"s_cmp_le_u32 s{S_KB}, s{qb}")
        A(f"s_cbranch_scc1 {lp}")
        half_sum(l, t1)
        A(f"v_rcp_f32 v{l}, v{l}")
        A("s_nop 0")
        def rd(db, t, b):
            for r in range(8): A(f"v_mul_f32 v{b+r}, v{FO+16*db+8*t+r}, v{l}")
        store_block(l, vc, rd)
    A("s_nop 7"); A("s_nop 7")
    epilogue(O_S, L0, V_CS, Q_S, S_QBS)
    A("s_waitcnt lgkmcnt(0)")
    A(f"v_mov_b32 v{L0[0]}, 0"); A(f"v_mov_b32 v{L0[1]}, 0")
    A(f"s_add_u32 s{S_T}, s{S_T}, 1")
    st(5)
    def single_iter(tail):
        fs = (lambda k: st(k)) if (FINE and not tail) else (lambda k: None)
        fs(7)
        iter_top(A)
        fs(8)
        for t in addr_update(): A(t)
        D = dma_ops()
        smA, smB = split16(sm(1))
        if not tail:
            G.bias_site(S_QBL, [f"s_lshl_b32 s{S_D}, s{S_T}, 1", f"s_add_u32 s{S_D}, s{S_D}, 2"])
            fs(9)
            group(A, qk(0, KA, Q_L, True), smA + place(kreads(V_K1, 1, KB), range(8)) + place(D[:3], (2, 4, 6)), pre=["s_waitcnt lgkmcnt(8)"])
            fs(10)
            group(A, pv(0, VA, O_L), smB + place(vreads(V_V0, 1, VB), range(8)) + place(D[3:5], (2, 5)), pre=["s_waitcnt lgkmcnt(8)"])
            fs(11)
            smA, smB = split16(sm(0))
            G.bias_site(S_QBL, [f"s_lshl_b32 s{S_D}, s{S_T}, 1", f"s_add_u32 s{S_D}, s{S_D}, 3"])
            group(A, qk(1, KB, Q_L, True), smA + place(kreads(V_K2, 0, KA), range(8)) + place(D[5:8], (2, 4, 6)), pre=["s_waitcnt lgkmcnt(8)"])
            fs(12)
            group(A, pv(1, VB, O_L), smB + place(vreads(V_V1, 0, VA), range(8)) + place(D[8:], (2, 5)), pre=["s_waitcnt lgkmcnt(8)"])
            fs(13)
        else:
            group(A, [], smA + place(vreads(V_V0, 1, VB), range(8)), pre=["s_nop 7", "s_nop 3"])
            group(A, pv(0, VA, O_L), smB, pre=["s_waitcnt lgkmcnt(8)"])
            group(A, pv(1, VB, O_L), [], pre=["s_waitcnt lgkmcnt(0)", "s_nop 1"])
    ls = A.newlabel("SL")
    A.label(ls)
    single_iter(False)
    A(f"s_add_u32 s{S_T}, s{S_T}, 1")
    A(f"s_add_u32 s{S_TMP}, s{S_T}, 1")
    A(f"s_cmp_lt_u32 s{S_TMP}, s{S_TL}")
    A(f"s_cbranch_scc1 {ls}")
    single_iter(True)
    st(6)
    A("s_nop 7"); A("s_nop 7")
    epilogue(O_L, L0 + L1, V_CL, Q_L, S_QBL)
    le = A.newlabel("AE")
    A(f"s_branch {le}")
    for blk in G.ool: blk()
    A.label(le)
```

```python
from common import *
WS_STAT = 0x3F80000

def vr(b, n=4): return f"v[{b}:{b+n-1}]"
def ar(b, n=4): return f"a[{b}:{b+n-1}]"

GC0 = "0xc0135761"
GC1 = "0xbdd2d3e8"
import struct
def f2h(x): return "0x%08x" % struct.unpack("<I", struct.pack("<f", x))[0]
import math
_c0 = -2*math.sqrt(2/math.pi)*math.log2(math.e)
GC0 = f2h(_c0); GC1 = f2h(_c0*0.044715)

def gelu_block(A, X, n, T, sc0, sc1):
    for r in range(0, n, 2): A(f"v_pk_mul_f32 {vr(T+r,2)}, {vr(X+r,2)}, {vr(X+r,2)}")
    for r in range(0, n, 2): A(f"v_pk_fma_f32 {vr(T+r,2)}, {vr(T+r,2)}, {vr(sc1,2)}, {vr(sc0,2)}")
    for r in range(0, n, 2): A(f"v_pk_mul_f32 {vr(T+r,2)}, {vr(T+r,2)}, {vr(X+r,2)}")
    for r in range(n): A(f"v_exp_f32 v{T+r}, v{T+r}")
    A("s_nop 0")
    for r in range(n): A(f"v_add_f32 v{T+r}, 1.0, v{T+r}")
    for r in range(n): A(f"v_rcp_f32 v{T+r}, v{T+r}")
    A("s_nop 0")
    for r in range(0, n, 2): A(f"v_pk_mul_f32 {vr(X+r,2)}, {vr(X+r,2)}, {vr(T+r,2)}")

def half_sum(A, x, y, op="v_add_f32"):
    A(f"v_mov_b32 v{y}, v{x}")
    A("s_nop 1")
    A(f"v_permlane32_swap_b32 v{x}, v{y}")
    A("s_nop 1")
    A(f"{op} v{x}, v{x}, v{y}")

def emit_g12(A, which, wgid="s2", sc1=False):
    C = " sc1" if sc1 else ""
    load_ptr(A, 40, KA_W1 if which == 1 else KA_W2); load_ptr(A, 42, KA_WS)
    S_W, S_TB, S_NB, S_T = 24, 25, 26, 27
    A("v_lshrrev_b32 v10, 6, v0")
    A("v_and_b32 v11, 63, v0")
    A(f"v_readfirstlane_b32 s{S_W}, v10")
    A(f"s_and_b32 s{S_TB}, {wgid}, 7"); A(f"s_lshr_b32 s{S_T}, {wgid}, 6"); A(f"s_and_b32 s{S_T}, s{S_T}, 3")
    A(f"s_lshl_b32 s{S_T}, s{S_T}, 3"); A(f"s_add_u32 s{S_TB}, s{S_TB}, s{S_T}")
    A(f"s_lshr_b32 s{S_NB}, {wgid}, 3"); A(f"s_and_b32 s{S_NB}, s{S_NB}, 7")
    A(f"s_lshl_b32 s{S_T}, s{S_TB}, 6")
    A(f"s_lshr_b32 s28, s{S_W}, 1"); A("s_lshl_b32 s28, s28, 5"); A(f"s_add_u32 s{S_T}, s{S_T}, s28")
    A("v_and_b32 v12, 31, v11")
    A(f"v_add_u32 v12, s{S_T}, v12")
    A("v_lshrrev_b32 v13, 5, v11")
    A("v_lshlrev_b32 v13, 8, v13")
    def f16off(dst, tok, stride_sh=14):
        A(f"v_lshrrev_b32 v14, 4, v{tok}")
        A(f"v_lshlrev_b32 v14, {stride_sh}, v14")
        A(f"v_and_b32 v15, 15, v{tok}")
        A(f"v_lshl_add_u32 v14, v15, 4, v14")
        A(f"v_add_u32 v{dst}, v14, v13")
    f16off(1, 12)
    if which == 2:
        for c, d in enumerate((-1, 1, -2, 2)):
            A(f"v_add_u32 v16, {d}, v12")
            f16off(2+c, 16)
            A("v_mov_b32 v17, 0x800")
            A("v_cmp_gt_u32 vcc, v17, v16")
            A("v_bfrev_b32 v17, 1")
            A(f"v_cndmask_b32 v{2+c}, v17, v{2+c}, vcc")
    A("v_lshrrev_b32 v14, 3, v11")
    A("v_lshlrev_b32 v14, 10, v14")
    A("v_bfe_u32 v15, v11, 4, 1")
    A("v_lshlrev_b32 v15, 2, v15")
    A("v_and_b32 v16, 7, v11")
    A("v_xor_b32 v15, v15, v16")
    A("v_lshl_add_u32 v6, v15, 4, v14")
    A(f"s_lshl_b32 s{S_T}, s{S_W}, 15")
    A(f"v_add_u32 v6, s{S_T}, v6")
    A("v_and_b32 v14, 15, v11")
    A("v_lshrrev_b32 v15, 4, v11")
    A("v_lshrrev_b32 v16, 1, v15")
    A("v_lshlrev_b32 v16, 3, v16")
    A("v_lshrrev_b32 v17, 2, v14")
    A("v_add_u32 v16, v16, v17")
    A("v_and_b32 v15, 1, v15")
    A("v_lshlrev_b32 v15, 1, v15")
    A("v_and_b32 v17, 1, v14")
    A("v_add_u32 v15, v15, v17")
    A(f"s_and_b32 s{S_T}, s{S_W}, 1"); A(f"s_lshl_b32 s{S_T}, s{S_T}, 2")
    A(f"v_add_u32 v15, s{S_T}, v15")
    A("v_bfe_u32 v17, v14, 3, 1")
    A("v_lshlrev_b32 v17, 2, v17")
    A("v_xor_b32 v15, v15, v17")
    A("v_lshlrev_b32 v15, 4, v15")
    A("v_lshl_add_u32 v7, v16, 7, v15")
    A("v_bfe_u32 v17, v14, 1, 1")
    A("v_lshl_add_u32 v7, v17, 3, v7")
    A("s_waitcnt lgkmcnt(0)")
    A(f"s_lshl_b32 s{S_T}, s{S_NB}, 7")
    A(f"s_add_u32 s4, s40, s{S_T}"); A("s_addc_u32 s5, s41, 0")
    A(f"s_sub_u32 s6, 0x80000, s{S_T}"); A("s_mov_b32 s7, 0x00020000")
    srd_off(A, 8, 42, WS_XN2F if which == 1 else WS_H, 0x200000)
    srd_off(A, 12, 42, WS_H if which == 1 else WS_X1F, 0x200000)
    if which == 2:
        srd_off(A, 16, 42, WS_XNF, 0x200000)
        srd_off(A, 20, 42, WS_STAT, 0x40000)
    A(f"s_lshl_b32 s29, s{S_W}, 12")
    for c in range(4): A(f"s_mov_b32 s{30+c}, {4096*c}")
    A(f"s_lshl_b32 s34, s{S_NB}, 1"); A(f"s_and_b32 s{S_T}, s{S_W}, 1"); A(f"s_add_u32 s34, s34, s{S_T}")
    A("s_lshl_b32 s35, s34, 3")
    A("s_lshl_b32 s34, s34, 10")
    nv = 0
    marks = []
    for c in range(4):
        for i in range(4):
            A(f"s_add_u32 m0, s29, {c*16384 + i*1024}")
            A(f"s_mov_b32 s36, {c*131072 + i*8192}")
            A(f"buffer_load_dwordx4 v6, s[4:7], s36 offen lds"); nv += 1
        for s in range(8):
            vx = 1 if which == 1 else 2 + c
            A(f"buffer_load_dwordx4 {ar(32*c + 4*s)}, v{vx}, s[8:11], s{30+c} offen offset:{512*s}" + C); nv += 1
        marks.append(nv)
    if which == 2:
        A(f"buffer_load_dwordx4 {vr(40)}, v1, s[16:19], s34 offen" + C)
        A(f"buffer_load_dwordx4 {vr(44)}, v1, s[16:19], s34 offen offset:512" + C)
        nv += 2
    ACC = 16
    for c in range(4):
        A(f"s_waitcnt vmcnt({nv - marks[c]})")
        A("s_barrier")
        for s in range(8):
            for rd in range(2):
                b = 128 + 4*s + 2*rd
                A(f"ds_read_b64_tr_b16 a[{b}:{b+1}], v7 offset:{c*16384 + s*2048 + rd*512}")
        for s in range(8):
            A(f"s_waitcnt lgkmcnt({min(14 - 2*s, 15)})")
            cc = "0" if (c == 0 and s == 0) else vr(ACC, 16)
            A(f"v_mfma_f32_32x32x16_bf16 {vr(ACC,16)}, {ar(128+4*s)}, {ar(32*c+4*s)}, {cc}")
    if which == 1:
        A(f"v_mov_b32 v48, {GC0}"); A(f"v_mov_b32 v49, {GC0}"); A(f"v_mov_b32 v50, {GC1}"); A(f"v_mov_b32 v51, {GC1}")
        A("s_nop 7"); A("s_nop 7")
        gelu_block(A, ACC, 16, 64, 48, 50)
        for r in range(8): A(f"v_cvt_pk_bf16_f32 v{32+r}, v{ACC+2*r}, v{ACC+2*r+1}")
        A(f"buffer_store_dwordx4 {vr(32)}, v1, s[12:15], s34 offen" + C)
        A(f"buffer_store_dwordx4 {vr(36)}, v1, s[12:15], s34 offen offset:512" + C)
    else:
        A("s_waitcnt vmcnt(0)")
        for r in range(8):
            A(f"v_lshlrev_b32 v{64+2*r}, 16, v{40+r}")
            A(f"v_and_b32 v{65+2*r}, 0xffff0000, v{40+r}")
        A("s_nop 7"); A("s_nop 3")
        for r in range(16): A(f"v_add_f32 v{ACC+r}, v{ACC+r}, v{64+r}")
        for r in range(8): A(f"v_cvt_pk_bf16_f32 v{32+r}, v{ACC+2*r}, v{ACC+2*r+1}")
        A(f"buffer_store_dwordx4 {vr(32)}, v1, s[12:15], s34 offen" + C)
        A(f"buffer_store_dwordx4 {vr(36)}, v1, s[12:15], s34 offen offset:512" + C)
        for r in range(8):
            A(f"v_lshlrev_b32 v{64+2*r}, 16, v{32+r}")
            A(f"v_and_b32 v{65+2*r}, 0xffff0000, v{32+r}")
        A("v_add_f32 v48, v64, v65")
        for r in range(2, 16): A(f"v_add_f32 v48, v48, v{64+r}")
        half_sum(A, 48, 50)
        A("v_mul_f32 v48, 0x3d000000, v48")
        for r in range(16): A(f"v_sub_f32 v{64+r}, v{64+r}, v48")
        A("v_mul_f32 v49, v64, v64")
        for r in range(1, 16): A(f"v_fma_f32 v49, v{64+r}, v{64+r}, v49")
        half_sum(A, 49, 50)
        A("v_lshlrev_b32 v50, 7, v12")
        A(f"buffer_store_dwordx2 v[48:49], v50, s[20:23], s35 offen" + C)

def emit_g3(A, wgid="s2", sc1=False):
    C = " sc1" if sc1 else ""
    load_ptr(A, 40, KA_W3); load_ptr(A, 42, KA_WS)
    S_W, S_TB, S_NB, S_T = 24, 25, 26, 27
    BR = 64
    ACC = 192
    A("v_lshrrev_b32 v10, 6, v0")
    A("v_and_b32 v11, 63, v0")
    A(f"v_readfirstlane_b32 s{S_W}, v10")
    A(f"s_and_b32 s{S_TB}, {wgid}, 7"); A(f"s_lshr_b32 s{S_T}, {wgid}, 3"); A(f"s_and_b32 s{S_T}, s{S_T}, 3")
    A(f"s_lshl_b32 s{S_T}, s{S_T}, 3"); A(f"s_add_u32 s{S_TB}, s{S_TB}, s{S_T}")
    A(f"s_lshr_b32 s{S_NB}, {wgid}, 5")
    A(f"s_lshl_b32 s{S_T}, s{S_TB}, 6")
    A(f"s_lshr_b32 s28, s{S_W}, 1"); A("s_lshl_b32 s28, s28, 5"); A(f"s_add_u32 s{S_T}, s{S_T}, s28")
    A("v_and_b32 v12, 31, v11")
    A(f"v_add_u32 v12, s{S_T}, v12")
    A("v_lshrrev_b32 v9, 5, v11")
    A("v_lshlrev_b32 v13, 8, v9")
    A("v_lshrrev_b32 v14, 4, v12"); A("v_and_b32 v15, 15, v12")
    A("v_lshl_add_u32 v13, v15, 4, v13")
    A("v_lshl_add_u32 v1, v14, 14, v13")
    A("s_mov_b32 s28, 57344")
    A("v_mul_lo_u32 v14, v14, s28")
    A("v_add_u32 v2, v14, v13")
    A("v_lshlrev_b32 v3, 7, v12")
    A("v_lshl_add_u32 v3, v9, 6, v3")
    A("v_lshrrev_b32 v14, 4, v11")
    A("v_and_b32 v15, 15, v11")
    A("v_lshlrev_b32 v16, 2, v14")
    A("v_xor_b32 v16, v15, v16")
    A("v_lshlrev_b32 v16, 4, v16")
    A("s_mov_b32 s28, 3584")
    A("v_mul_lo_u32 v17, v14, s28")
    A("v_add_u32 v6, v16, v17")
    A(f"s_lshr_b32 s28, s{S_W}, 1"); A(f"s_mul_i32 s28, s28, {32*3584}")
    A(f"s_and_b32 s{S_T}, s{S_W}, 1"); A(f"s_lshl_b32 s{S_T}, s{S_T}, 8"); A(f"s_add_u32 s28, s28, s{S_T}")
    A("v_add_u32 v6, s28, v6")
    A("v_lshrrev_b32 v16, 2, v15")
    A("v_lshrrev_b32 v17, 1, v14")
    A("v_lshl_add_u32 v17, v17, 3, v16")
    A("v_lshlrev_b32 v17, 8, v17")
    A("v_and_b32 v18, 1, v14")
    A("v_lshl_add_u32 v17, v18, 5, v17")
    A("v_and_b32 v18, 3, v15")
    A("v_lshl_add_u32 v17, v18, 3, v17")
    A(f"s_and_b32 s{S_T}, s{S_W}, 1"); A(f"s_lshl_b32 s{S_T}, s{S_T}, 14")
    A(f"v_add_u32 v17, s{S_T}, v17")
    for db in range(4):
        A(f"v_xor_b32 v18, {db}, v16")
        A(f"v_lshl_add_u32 v{20+db}, v18, 6, v17")
    A("s_waitcnt lgkmcnt(0)")
    A(f"s_lshl_b32 s{S_T}, s{S_NB}, 9")
    A(f"s_add_u32 s4, s40, s{S_T}"); A("s_addc_u32 s5, s41, 0")
    A(f"s_sub_u32 s6, {512*3584}, s{S_T}"); A("s_mov_b32 s7, 0x00020000")
    srd_off(A, 8, 42, WS_X1F, 0x200000)
    srd_off(A, 12, 42, WS_H3F, 128*57344)
    srd_off(A, 16, 42, WS_STAT, 0x40000)
    A(f"s_and_b32 s29, s{S_W}, 1"); A("s_lshl_b32 s29, s29, 14")
    A(f"s_lshr_b32 s28, s{S_W}, 1"); A("s_lshl_b32 s28, s28, 13"); A("s_add_u32 s29, s29, s28")
    for c in range(4): A(f"s_mov_b32 s{30+c}, {4096*c}")
    A(f"s_lshl_b32 s34, s{S_NB}, 1"); A(f"s_and_b32 s{S_T}, s{S_W}, 1"); A(f"s_add_u32 s34, s34, s{S_T}")
    A("s_lshl_b32 s34, s34, 12")
    q = []
    def wdma(c):
        for i in range(8):
            yield [f"s_add_u32 m0, s29, {(c&3)*32768 + i*1024}",
                   f"s_mov_b32 s36, {(64*c + 4*i)*3584}",
                   f"buffer_load_dwordx4 v6, s[4:7], s36 offen lds"]
    def issue(groups, tag):
        for g in groups:
            for t in g:
                A(t)
                if t.startswith("buffer_"): q.append(tag)
    def cnt(tags):
        last = max(i for i, t in enumerate(q) if t in tags)
        return len(q) - 1 - last
    def bl(s): return [f"buffer_load_dwordx4 {vr(BR+4*s)}, v1, s[8:11], s{30+(s>>3)} offen offset:{512*(s&7)}" + C]
    issue([[f"buffer_load_dwordx4 {vr(32+4*i)}, v3, s[16:19], 0 offen offset:{16*i}" + C] for i in range(4)], "ST")
    issue(wdma(0), "W0")
    issue([bl(s) for s in range(8)], "B0")
    issue(wdma(1), "W1")
    issue([bl(s) for s in range(8, 16)], "B1")
    issue(wdma(2), "W2")
    issue([bl(s) for s in range(16, 24)], "B2")
    A(f"s_waitcnt vmcnt({cnt(['ST'])})")
    A("v_add_f32 v48, v32, v34")
    for i in range(2, 8): A(f"v_add_f32 v48, v48, v{32+2*i}")
    half_sum(A, 48, 50)
    A("v_mul_f32 v48, 0x3d800000, v48")
    for i in range(8): A(f"v_sub_f32 v{32+2*i}, v{32+2*i}, v48")
    A("v_mul_f32 v49, v32, v32")
    for i in range(1, 8): A(f"v_fma_f32 v49, v{32+2*i}, v{32+2*i}, v49")
    A("v_add_f32 v51, v33, v35")
    for i in range(2, 8): A(f"v_add_f32 v51, v51, v{33+2*i}")
    A("v_mov_b32 v52, 0x42000000")
    A("v_fma_f32 v49, v49, v52, v51")
    half_sum(A, 49, 50)
    A("v_mov_b32 v50, 0x3727c5ac")
    A("v_fmac_f32 v50, 0x3b000000, v49")
    A("v_rsq_f32 v50, v50")
    A("s_nop 0")
    A("v_mov_b32 v51, v50")
    A("v_mul_f32 v52, v48, v50")
    A("v_sub_f32 v52, 0, v52")
    A("v_mov_b32 v53, v52")
    def norm(s):
        R = []
        b = BR + 4*s; T = 32 + 8*(s & 1)
        for r in range(4):
            R.append(f"v_lshlrev_b32 v{T+2*r}, 16, v{b+r}")
            R.append(f"v_and_b32 v{T+2*r+1}, 0xffff0000, v{b+r}")
        for r in range(4): R.append(f"v_pk_fma_f32 {vr(T+2*r,2)}, {vr(T+2*r,2)}, {vr(50,2)}, {vr(52,2)}")
        for r in range(4): R.append(f"v_cvt_pk_bf16_f32 v{b+r}, v{T+2*r}, v{T+2*r+1}")
        return R
    def wreads(s):
        c = s >> 2; ks = s & 3; p = s & 1
        R = []
        for db in range(4):
            for rd in range(2):
                b = 16*p + 4*db + 2*rd
                R.append(f"ds_read_b64_tr_b16 a[{b}:{b+1}], v{20+db} offset:{(c&1)*32768 + ks*4096 + rd*1024}")
        return R
    A(f"s_waitcnt vmcnt({cnt(['W0','B0'])})")
    A("s_barrier")
    issue([bl(s) for s in range(24, 32)], "B3")
    issue(wdma(3), "W3")
    for t in wreads(0): A(t)
    for t in norm(0): A(t)
    for t in norm(1): A(t)
    for s in range(32):
        c = s >> 2; p = s & 1
        last = (s & 3) == 3
        pre = ["s_waitcnt lgkmcnt(0)"]
        if last and c < 7:
            n = cnt([f"W{c+1}"])
            pre = [f"s_waitcnt vmcnt({n}) lgkmcnt(0)", "s_barrier"]
            if (c + 1) % 2 == 0:
                for db in range(4): pre.append(f"v_xor_b32 v{20+db}, 0x10000, v{20+db}")
        if s + 2 < 32 and ((s + 2) & 7) == 0:
            n = cnt([f"B{(s+2)>>3}"])
            pre.insert(0, f"s_waitcnt vmcnt({n})")
        for t in pre: A(t)
        M = [f"v_mfma_f32_32x32x16_bf16 {vr(ACC+16*db,16)}, {ar(16*p+4*db)}, {vr(BR+4*s)}, " + ("0" if s == 0 else vr(ACC+16*db,16)) for db in range(4)]
        F = []
        if s + 1 < 32:
            R = wreads(s+1)
            for k, t in enumerate(R): F.append((0 if k < 6 else 1, t))
        if s + 2 < 32:
            N = norm(s+2)
            for k, t in enumerate(N): F.append((1 if k < 4 else (2 if k < 10 else 3), t))
        if last and c + 4 <= 7:
            G = list(wdma(c + 4))
            for k, g in enumerate(G):
                for t in g:
                    F.append((k >> 1, t))
                    if t.startswith("buffer_"): q.append(f"W{c+4}")
        interleave(A, M, F)
    A(f"v_mov_b32 v48, {GC0}"); A(f"v_mov_b32 v49, {GC0}"); A(f"v_mov_b32 v50, {GC1}"); A(f"v_mov_b32 v51, {GC1}")
    A("s_nop 7"); A("s_nop 7")
    for db in range(4):
        X = ACC + 16*db
        gelu_block(A, X, 16, 64, 48, 50)
        o = 32 + 8*(db & 1)
        for r in range(8): A(f"v_cvt_pk_bf16_f32 v{o+r}, v{X+2*r}, v{X+2*r+1}")
        A(f"buffer_store_dwordx4 {vr(o)}, v2, s[12:15], s34 offen offset:{1024*db}" + C)
        A(f"buffer_store_dwordx4 {vr(o+4)}, v2, s[12:15], s34 offen offset:{1024*db+512}" + C)
```

```python
from asmlib import *
KA_X, KA_CKV, KA_WQ, KA_WUK, KA_WUV, KA_WO = 0, 8, 16, 24, 32, 40
KA_W1, KA_W2, KA_W3, KA_W4, KA_OUT, KA_DBG, KA_WS = 56, 64, 72, 80, 88, 96, 104
WS_KV   = 0x0000000
WS_CTX  = 0x2000000
WS_XNF  = 0x3000000
WS_H    = 0x3200000
WS_X1F  = 0x3400000
WS_H3F  = 0x3600000
WS_XN2F = 0x3E00000
WS_PART = 0x4000000
WS_FLAG = 0x6000000

def interleave(A, mfmas, fillers, start=0, per_gap=None):
    byg = {}
    for g, t in fillers:
        byg.setdefault(g, []).append(t)
    for t in byg.get(-1, []):
        A(t)
    for i, m in enumerate(mfmas):
        A(m)
        for t in byg.get(i, []):
            A(t)
    for g in sorted(byg):
        if g >= len(mfmas):
            for t in byg[g]:
                A(t)

def load_ptr(A, dst, off):
    A(f"s_load_dwordx2 s[{dst}:{dst+1}], s[0:1], {off}")

def srd_off(A, d, base, add, nbytes):
    if add:
        A(f"s_add_u32 s{d}, s{base}, {hex(add)}")
        A(f"s_addc_u32 s{d+1}, s{base+1}, 0")
    else:
        A(f"s_mov_b32 s{d}, s{base}")
        A(f"s_mov_b32 s{d+1}, s{base+1}")
    A(f"s_mov_b32 s{d+2}, {hex(nbytes)}")
    A(f"s_mov_b32 s{d+3}, 0x00020000")
```

```python
from common import *
from bpath import vr, ar, half_sum, f2h
import math

def emit_final(A, wgid="s2", sc1=False):
    C = " sc1" if sc1 else ""
    load_ptr(A, 40, KA_WO); load_ptr(A, 42, KA_WS); load_ptr(A, 44, KA_W4); load_ptr(A, 46, KA_X); load_ptr(A, 48, KA_OUT)
    S_W, S_TB, S_NB, S_T = 24, 25, 26, 27
    S_SW, S_SB, S_M0 = 28, 29, 30
    BRING, ACC, AF = 0, 128, 192
    SAVE = 128
    D = 7; NS = 46
    A("v_lshrrev_b32 v10, 6, v0")
    A("v_and_b32 v11, 63, v0")
    A(f"v_readfirstlane_b32 s{S_W}, v10")
    A(f"s_and_b32 s{S_TB}, {wgid}, 7"); A(f"s_lshr_b32 s{S_T}, {wgid}, 6"); A(f"s_and_b32 s{S_T}, s{S_T}, 3")
    A(f"s_lshl_b32 s{S_T}, s{S_T}, 3"); A(f"s_add_u32 s{S_TB}, s{S_TB}, s{S_T}")
    A(f"s_lshr_b32 s{S_NB}, {wgid}, 3"); A(f"s_and_b32 s{S_NB}, s{S_NB}, 7")
    A("v_and_b32 v12, 15, v11")
    A("v_lshrrev_b32 v13, 5, v11")
    A("v_lshlrev_b32 v14, 8, v13")
    A("v_lshl_add_u32 v14, v12, 4, v14")
    A("v_bfe_u32 v15, v11, 4, 1")
    A(f"s_lshl_b32 s{S_T}, s{S_TB}, 2")
    A(f"v_add_u32 v15, s{S_T}, v15")
    A("v_lshl_add_u32 v2, v15, 17, v14")
    A("v_add_u32 v3, 0x40000, v2")
    A("s_mov_b32 s31, 57344")
    A("v_mul_lo_u32 v4, v15, s31")
    A("v_add_u32 v4, v4, v14")
    A("v_add_u32 v5, 114688, v4")
    A(f"s_cmp_eq_u32 s{S_W}, 3")
    A("s_cselect_b64 vcc, -1, 0")
    A("v_cndmask_b32 v6, v2, v4, vcc")
    A("v_cndmask_b32 v7, v3, v5, vcc")
    A("v_lshrrev_b32 v14, 3, v11")
    A("v_lshlrev_b32 v14, 10, v14")
    A("v_bfe_u32 v15, v11, 4, 1")
    A("v_lshlrev_b32 v15, 2, v15")
    A("v_and_b32 v16, 7, v11")
    A("v_xor_b32 v15, v15, v16")
    A("v_lshl_add_u32 v16, v15, 4, v14")
    for i in range(1, 4): A(f"v_add_u32 v{16+i}, {i*7168}, v16")
    A("v_lshrrev_b32 v15, 4, v11")
    A("v_lshrrev_b32 v20, 1, v15")
    A("v_lshlrev_b32 v20, 2, v20")
    A("v_lshrrev_b32 v21, 2, v12")
    A("v_add_u32 v20, v20, v21")
    A("v_and_b32 v15, 1, v15")
    A("v_lshlrev_b32 v15, 1, v15")
    A("v_and_b32 v21, 1, v12")
    A("v_add_u32 v15, v15, v21")
    A("v_bfe_u32 v21, v12, 3, 1")
    A("v_lshlrev_b32 v21, 2, v21")
    A("v_xor_b32 v15, v15, v21")
    A("v_lshlrev_b32 v15, 4, v15")
    A("v_lshl_add_u32 v8, v20, 7, v15")
    A("v_bfe_u32 v21, v12, 1, 1")
    A("v_lshl_add_u32 v8, v21, 3, v8")
    A(f"s_lshl_b32 s{S_M0}, s{S_W}, 15")
    A(f"v_add_u32 v8, s{S_M0}, v8")
    A("v_xor_b32 v9, 64, v8")
    A("s_waitcnt lgkmcnt(0)")
    A(f"s_lshl_b32 s{S_T}, s{S_NB}, 7")
    A(f"s_add_u32 s4, s40, s{S_T}"); A("s_addc_u32 s5, s41, 0"); A(f"s_sub_u32 s6, 0x400000, s{S_T}"); A("s_mov_b32 s7, 0x00020000")
    A(f"s_add_u32 s12, s44, s{S_T}"); A("s_addc_u32 s13, s45, 0"); A(f"s_sub_u32 s14, {1792*1024}, s{S_T}"); A("s_mov_b32 s15, 0x00020000")
    srd_off(A, 8, 42, WS_CTX, 0x1000000)
    srd_off(A, 16, 42, WS_H3F, 128*57344)
    srd_off(A, 20, 42, WS_X1F, 0x200000)
    A(f"s_mul_i32 s{S_T}, s{S_W}, 46")
    A(f"s_cmp_eq_u32 s{S_W}, 3")
    A(f"s_cselect_b32 s{S_T}, 10, s{S_T}")
    for k in range(4):
        A(f"s_cselect_b32 s{4+k}, s{12+k}, s{4+k}")
        A(f"s_cselect_b32 s{8+k}, s{16+k}, s{8+k}")
    A(f"s_lshl_b32 s{S_SW}, s{S_T}, 15")
    A(f"s_lshl_b32 s{S_SB}, s{S_T}, 10")
    def loads(n):
        sl = n & 7
        R = []
        if n == 36:
            R.append(f"s_cmp_eq_u32 s{S_W}, 2")
            for k in range(4):
                R.append(f"s_cselect_b32 s{4+k}, s{12+k}, s{4+k}")
                R.append(f"s_cselect_b32 s{8+k}, s{16+k}, s{8+k}")
            R.append(f"s_cselect_b32 s{S_SW}, 0, s{S_SW}")
            R.append(f"s_cselect_b32 s{S_SB}, 0, s{S_SB}")
            R.append("s_cselect_b64 vcc, -1, 0")
            R.append("v_cndmask_b32 v6, v6, v4, vcc")
            R.append("v_cndmask_b32 v7, v7, v5, vcc")
            R.append("s_nop 4")
        R.append(f"s_add_u32 m0, s{S_M0}, {sl*4096}")
        R.append("s_nop 0")
        for i in range(4):
            R.append(f"buffer_load_dwordx4 v{16+i}, s[4:7], s{S_SW} offen offset:{i*1024} lds")
        for b in range(2):
            for t in range(2):
                R.append(f"buffer_load_dwordx4 {ar(BRING + 16*sl + 8*b + 4*t)}, v{6+b}, s[8:11], s{S_SB} offen offset:{512*t}" + C)
        R.append(f"s_add_u32 s{S_SW}, s{S_SW}, 32768")
        R.append(f"s_add_u32 s{S_SB}, s{S_SB}, 1024")
        return R
    def reads(n):
        sl = n & 7; p = n & 1
        R = []
        for t in range(2):
            for nb in range(2):
                for rd in range(2):
                    b = AF + 16*p + 8*t + 4*nb + 2*rd
                    R.append(f"ds_read_b64_tr_b16 a[{b}:{b+1}], v{8+nb} offset:{sl*4096 + t*2048 + rd*1024}")
        return R
    for n in range(D):
        for t in loads(n): A(t)
    A(f"s_and_b32 s{S_T}, s{S_W}, 1"); A(f"s_lshl_b32 s{S_T}, s{S_T}, 5")
    A(f"s_lshl_b32 s33, s{S_TB}, 6"); A(f"s_add_u32 s{S_T}, s{S_T}, s33")
    A("v_and_b32 v20, 31, v11")
    A(f"v_add_u32 v20, s{S_T}, v20")
    A("v_lshrrev_b32 v21, 4, v20")
    A("v_lshlrev_b32 v21, 14, v21")
    A("v_and_b32 v22, 15, v20")
    A("v_lshl_add_u32 v21, v22, 4, v21")
    A("v_lshl_add_u32 v22, v13, 8, v21")
    A(f"s_lshl_b32 s32, s{S_NB}, 1"); A(f"s_lshr_b32 s33, s{S_W}, 1"); A("s_add_u32 s32, s32, s33")
    A("s_lshl_b32 s34, s32, 6")
    A("s_lshl_b32 s32, s32, 10")
    A("v_lshlrev_b32 v23, 10, v20")
    A("v_lshl_add_u32 v23, v13, 4, v23")
    A(f"s_waitcnt vmcnt({8*(D-1)})")
    for t in reads(0): A(t)
    for n in range(NS):
        p = n & 1; sl = n & 7
        rem = min(n + D - 1, NS - 1) - (n + 1)
        if n + 1 < NS: A(f"s_waitcnt vmcnt({8*rem}) lgkmcnt(0)")
        else: A("s_waitcnt lgkmcnt(0)")
        if n == 36:
            lsv, lsr = A.newlabel("SV"), A.newlabel("SR")
            A(f"s_cmp_eq_u32 s{S_W}, 2"); A(f"s_cbranch_scc0 {lsr}")
            A("s_nop 7"); A("s_nop 7")
            for r in range(64): A(f"v_accvgpr_read_b32 v{SAVE+r}, a{ACC+r}")
            for r in range(64): A(f"v_accvgpr_write_b32 a{ACC+r}, 0")
            A("s_nop 1")
            A.label(lsr)
        M = []
        for t in range(2):
            for nb in range(2):
                for b in range(2):
                    q = 2*nb + b
                    cc = "0" if (n == 0 and t == 0) else ar(ACC+16*q, 16)
                    M.append(f"v_mfma_f32_32x32x16_bf16 {ar(ACC+16*q,16)}, {ar(AF+16*p+8*t+4*nb)}, {ar(BRING+16*sl+8*b+4*t)}, {cc}")
        F = []
        if n + 1 < NS:
            for k, t in enumerate(reads(n+1)): F.append((k >> 1, t))
        if n + D < NS:
            L = loads(n + D)
            for k, t in enumerate(L): F.append((min(7, 1 + (k*7)//len(L)), t))
        interleave(A, M, F)
    A("s_mov_b32 s8, s46"); A("s_mov_b32 s9, s47"); A("s_mov_b32 s10, 0x200000"); A("s_mov_b32 s11, 0x00020000")
    A("s_mov_b32 s12, s48"); A("s_mov_b32 s13, s49"); A("s_mov_b32 s14, 0x200000"); A("s_mov_b32 s15, 0x00020000")
    A(f"buffer_load_dwordx4 {vr(32)}, v22, s[20:23], s32 offen" + C)
    A(f"buffer_load_dwordx4 {vr(36)}, v22, s[20:23], s32 offen offset:512" + C)
    A(f"buffer_load_dwordx4 {vr(40)}, v23, s[8:11], s34 offen")
    A(f"buffer_load_dwordx4 {vr(44)}, v23, s[8:11], s34 offen offset:32")
    A("v_lshlrev_b32 v24, 4, v11")
    A("s_barrier")
    A(f"s_cmp_ge_u32 s{S_W}, 2"); A(f"s_cselect_b32 s{S_T}, 1, 0"); A(f"s_add_u32 s{S_T}, s{S_T}, s{S_W}")
    A(f"s_lshl_b32 s{S_T}, s{S_T}, 14")
    A(f"v_add_u32 v25, s{S_T}, v24")
    A("s_nop 7"); A("s_nop 3")
    for q in range(4):
        for i in range(4):
            A(f"ds_write_b128 v25, {ar(ACC+16*q+4*i)} offset:{q*4096 + i*1024}")
    lsk = A.newlabel("SK")
    A(f"s_cmp_eq_u32 s{S_W}, 2"); A(f"s_cbranch_scc0 {lsk}")
    for q in range(4):
        for i in range(4):
            A(f"ds_write_b128 v24, {vr(SAVE+16*q+4*i)} offset:{2*16384 + q*4096 + i*1024}")
    A.label(lsk)
    A("s_waitcnt lgkmcnt(0)")
    A("s_barrier")
    A(f"s_lshl_b32 s{S_T}, s{S_W}, 12")
    A(f"v_add_u32 v25, s{S_T}, v24")
    A("v_add_u32 v26, 65536, v25")
    for sl in range(5):
        for i in range(4):
            if sl < 4: A(f"ds_read_b128 {vr(64+16*sl+4*i)}, v25 offset:{sl*16384 + i*1024}")
            else: A(f"ds_read_b128 {vr(64+16*sl+4*i)}, v26 offset:{i*1024}")
    A("s_waitcnt vmcnt(0) lgkmcnt(0)")
    S, H = 64, 112
    for r in range(16):
        A(f"v_add_f32 v{S+r}, v{S+r}, v{80+r}")
        A(f"v_add_f32 v{H+r}, v{H+r}, v{128+r}")
    for r in range(16): A(f"v_add_f32 v{S+r}, v{S+r}, v{96+r}")
    for r in range(8):
        A(f"v_lshlrev_b32 v{80+2*r}, 16, v{32+r}")
        A(f"v_and_b32 v{81+2*r}, 0xffff0000, v{32+r}")
    for r in range(16): A(f"v_add_f32 v{H+r}, v{H+r}, v{80+r}")
    A(f"v_mov_b32 v30, {f2h(-math.log2(math.e))}")
    for r in range(16): A(f"v_mul_f32 v{80+r}, v30, v{H+r}")
    for r in range(16): A(f"v_exp_f32 v{80+r}, v{80+r}")
    A("s_nop 0")
    for r in range(16): A(f"v_add_f32 v{80+r}, 1.0, v{80+r}")
    for r in range(16): A(f"v_rcp_f32 v{80+r}, v{80+r}")
    A("s_nop 0")
    for r in range(16): A(f"v_mul_f32 v{H+r}, v{H+r}, v{80+r}")
    for r in range(8):
        A(f"v_lshlrev_b32 v{80+2*r}, 16, v{40+r}")
        A(f"v_and_b32 v{81+2*r}, 0xffff0000, v{40+r}")
    for r in range(16): A(f"v_fma_f32 v{S+r}, v{S+r}, v{H+r}, v{80+r}")
    for r in range(8): A(f"v_cvt_pk_bf16_f32 v{48+r}, v{S+2*r}, v{S+2*r+1}")
    A(f"buffer_store_dwordx4 {vr(48)}, v23, s[12:15], s34 offen")
    A(f"buffer_store_dwordx4 {vr(52)}, v23, s[12:15], s34 offen offset:32")
```

```python
from common import *

def acc(i, j):
    b = i*8 + j
    if b < 56: return f"v[{32+4*b}:{35+4*b}]"
    b -= 56
    return f"a[{4*b}:{4*b+3}]"
def accr(i, j, r):
    b = i*8 + j
    if b < 56: return ("v", 32+4*b+r)
    return ("a", 4*(b-56)+r)
def tfr(p, j): b = 32+64*p+4*j; return f"a[{b}:{b+3}]"
def wfr(p, i): b = 64+64*p+4*i; return f"a[{b}:{b+3}]"
def wfr_half(p, i, rd): b = 64+64*p+4*i+2*rd; return f"a[{b}:{b+1}]"

LDS_T = 0
LDS_W = 65536

def emit_kv(A, wgid="s2", stamp=None):
    load_ptr(A, 40, KA_CKV); load_ptr(A, 42, KA_WUK); load_ptr(A, 44, KA_WUV); load_ptr(A, 46, KA_WS)
    A("v_lshrrev_b32 v1, 6, v0")
    A("v_and_b32 v2, 63, v0")
    A("v_readfirstlane_b32 s16, v1")
    A(f"s_and_b32 s17, {wgid}, 7")
    A(f"s_lshr_b32 s18, {wgid}, 3")
    A("s_and_b32 s18, s18, 3")
    A("s_lshl_b32 s18, s18, 3")
    A("s_add_u32 s17, s17, s18")
    A(f"s_lshr_b32 s18, {wgid}, 5")
    A("s_waitcnt lgkmcnt(0)")
    A("s_lshl_b32 s19, s18, 18")
    A("s_add_u32 s4, s40, s19"); A("s_addc_u32 s5, s41, 0")
    A("s_mov_b32 s6, 0x40000"); A("s_mov_b32 s7, 0x00020000")
    A("s_cmp_lt_u32 s16, 2")
    A("s_cselect_b32 s8, s42, s44"); A("s_cselect_b32 s9, s43, s45")
    A("s_mov_b32 s10, 0x400000"); A("s_mov_b32 s11, 0x00020000")
    A("s_lshl_b32 s19, s17, 20")
    A("s_lshl_b32 s20, s18, 17")
    A("s_add_u32 s19, s19, s20")
    A("s_and_b32 s20, s16, 1")
    A("s_lshl_b32 s20, s20, 16")
    A("s_add_u32 s19, s19, s20")
    A("s_add_u32 s12, s46, s19"); A("s_addc_u32 s13, s47, 0")
    A("s_mov_b32 s14, 0x10000"); A("s_mov_b32 s15, 0x00020000")
    for q in range(4): A(f"s_mov_b32 s{20+q}, {q*16384}")
    for x in range(8):
        ks, PI = x >> 2, x & 3
        A(f"s_mov_b32 s{24+x}, {(ks*32 + 16*(PI>>1) + 4*(PI&1))*8192}")
    A("s_lshl_b32 s32, s16, 13")
    A(f"s_add_u32 s33, s32, {LDS_W}")
    A("v_lshrrev_b32 v5, 3, v2")
    A("v_and_b32 v6, 7, v2")
    A("v_lshrrev_b32 v7, 4, v2")
    A("s_lshl_b32 s34, s16, 16")
    A("v_lshlrev_b32 v3, 10, v5")
    A("v_add_u32 v3, s34, v3")
    A("v_xor_b32 v8, v6, v7")
    A("v_lshl_add_u32 v4, v8, 4, v3")
    A("v_xor_b32 v8, 4, v8")
    A("v_lshl_add_u32 v8, v8, 4, v3")
    A("v_add_u32 v8, 8192, v8")
    A("v_mov_b32 v3, v4")
    A("v_mov_b32 v4, v8")
    A("v_and_b32 v8, 3, v5")
    A("v_lshrrev_b32 v9, 2, v5")
    A("v_lshl_add_u32 v8, v9, 3, v8")
    A("v_lshlrev_b32 v8, 13, v8")
    A("v_lshrrev_b32 v9, 1, v5")
    A("v_and_b32 v10, 1, v9")
    A("v_lshrrev_b32 v11, 1, v9")
    A("v_lshl_add_u32 v10, v11, 2, v10")
    A("v_lshlrev_b32 v11, 1, v9")
    A("s_cmp_lt_u32 s16, 2")
    A("s_cselect_b64 vcc, -1, 0")
    A("v_cndmask_b32 v10, v11, v10, vcc")
    A("v_xor_b32 v10, v6, v10")
    A("v_lshl_add_u32 v9, v10, 4, v8")
    A("s_lshl_b32 s34, s17, 8")
    A("s_and_b32 s35, s16, 1")
    A("s_lshl_b32 s35, s35, 7")
    A("s_add_u32 s34, s34, s35")
    A("v_add_u32 v9, s34, v9")

    def dma_stage(st):
        buf = st & 1
        G = []
        for p in range(8):
            G.append((f"s_add_u32 m0, s32, {buf*32768 + p*1024}",
                      f"buffer_load_dwordx4 v{3+(p&1)}, s[4:7], s{20+(p>>1)} offen lds"))
        for x in range(8):
            G.append((f"s_add_u32 m0, s33, {buf*32768 + x*1024}",
                      f"buffer_load_dwordx4 v9, s[8:11], s{24+x} offen lds"))
        G2 = []
        for p in range(8):
            G2.append(G[p]); G2.append(G[8+p])
        return G2
    def bump():
        return ["s_add_u32 s4, s4, 128", "s_addc_u32 s5, s5, 0", "s_add_u32 s8, s8, 524288", "s_addc_u32 s9, s9, 0"]
    for st in range(2):
        for (m, d) in dma_stage(st):
            A(m); A("s_nop 0"); A(d)
        for t in bump(): A(t)
    A("v_and_b32 v12, 15, v2")
    A("v_lshrrev_b32 v13, 1, v12")
    A("v_xor_b32 v13, v7, v13")
    A("v_lshlrev_b32 v10, 7, v12")
    A("v_lshl_add_u32 v10, v13, 4, v10")
    A("s_and_b32 s34, s16, 1")
    A("s_lshl_b32 s34, s34, 14")
    A("v_add_u32 v10, s34, v10")
    A("v_xor_b32 v11, 64, v10")
    A("v_lshrrev_b32 v13, 2, v12")
    A("v_and_b32 v14, 1, v7")
    A("v_lshl_add_u32 v13, v14, 2, v13")
    A("v_lshrrev_b32 v14, 1, v7")
    A("v_lshlrev_b32 v14, 11, v14")
    A("v_lshl_add_u32 v14, v13, 7, v14")
    A("v_and_b32 v15, 1, v12")
    A("v_lshl_add_u32 v14, v15, 3, v14")
    A("s_lshr_b32 s34, s16, 1")
    A("s_lshl_b32 s34, s34, 14")
    A(f"s_add_u32 s34, s34, {LDS_W}")
    A("v_add_u32 v14, s34, v14")
    A("v_lshrrev_b32 v13, 1, v13")
    A("v_and_b32 v15, 1, v13")
    A("v_lshrrev_b32 v16, 1, v13")
    A("v_lshl_add_u32 v15, v16, 2, v15")
    A("v_lshlrev_b32 v16, 1, v13")
    A("v_bfe_u32 v17, v12, 1, 1")
    A("v_lshlrev_b32 v18, 1, v17")
    A("v_xor_b32 v15, v15, v18")
    A("v_xor_b32 v16, v16, v17")
    A("s_cmp_lt_u32 s16, 2")
    A("s_cselect_b64 vcc, -1, 0")
    A("v_cndmask_b32 v15, v16, v15, vcc")
    A("s_cselect_b32 s34, 1, 2")
    A("s_cselect_b32 s35, 5, 6")
    A("v_lshl_add_u32 v5, v15, 4, v14")
    A("v_xor_b32 v16, s34, v15"); A("v_lshl_add_u32 v6, v16, 4, v14")
    A("v_xor_b32 v16, 4, v15");   A("v_lshl_add_u32 v7, v16, 4, v14")
    A("v_xor_b32 v16, s35, v15"); A("v_lshl_add_u32 v8, v16, 4, v14")

    def reads(n, isK):
        p = n & 1; st = n >> 1; ks = n & 1; buf = st & 1
        R = []
        for i in range(8):
            if isK:
                ip, u = i >> 1, i & 1
                ng = ip >> 1; var = 2*(ip & 1) + u
            else:
                ng = i >> 2; var = i & 3
            for rd in range(2):
                off = buf*32768 + (ng*8 + ks*4 + rd)*1024
                R.append(f"ds_read_b64_tr_b16 {wfr_half(p,i,rd)}, v{5+var} offset:{off}")
            R.append(f"ds_read_b128 {tfr(p,i)}, v{10+ks} offset:{buf*32768 + i*2048}")
        return R

    def body(isK, tag):
        if stamp: stamp(0)
        A(f"s_waitcnt vmcnt(16)")
        A("s_barrier")
        if stamp: stamp(1)
        for t in reads(0, isK): A(t)
        for n in range(16):
            p = n & 1
            M = []
            for i in range(8):
                for j in range(8):
                    if isK: a_, b_ = wfr(p, i), tfr(p, j)
                    else:   a_, b_ = tfr(p, i), wfr(p, j)
                    c = "0" if n == 0 else acc(i, j)
                    M.append(f"v_mfma_f32_16x16x32_bf16 {acc(i,j)}, {a_}, {b_}, {c}")
            F = []
            pre = []
            if n & 1:
                pre.append("s_waitcnt vmcnt(0) lgkmcnt(0)")
                if n < 15: pre.append("s_barrier")
            else:
                pre.append("s_waitcnt lgkmcnt(0)")
            for t in pre: A(t)
            if stamp and n in (1, 3, 9, 15): stamp({1:2, 3:3, 9:4, 15:5}[n])
            if n < 15:
                for k, t in enumerate(reads(n+1, isK)):
                    F.append((k, t))
            if (n & 1) and (n >> 1) + 2 <= 7:
                G = dma_stage((n >> 1) + 2)
                for k, (m, d) in enumerate(G):
                    F.append((1 + 3*k, m)); F.append((2 + 3*k, d))
                for k, t in enumerate(bump()):
                    F.append((52 + k, t))
            interleave(A, M, F)
        if stamp: stamp(6)
        A("s_nop 7"); A("s_nop 7")
        A("v_lshrrev_b32 v13, 4, v2")
        A("v_lshrrev_b32 v14, 1, v13")
        A("v_and_b32 v15, 1, v13")
        if isK:
            A("v_bfe_u32 v16, v2, 3, 1")
            A("v_and_b32 v17, 7, v2")
            A("v_lshl_add_u32 v17, v16, 4, v17")
            A("v_lshl_add_u32 v17, v15, 5, v17")
            A("v_lshlrev_b32 v17, 4, v17")
            A("v_lshl_add_u32 v12, v14, 10, v17")
        else:
            A("v_and_b32 v17, 15, v2")
            A("v_lshl_add_u32 v17, v15, 5, v17")
            A("v_lshlrev_b32 v17, 4, v17")
            A("v_lshl_add_u32 v12, v14, 12, v17")
            A("v_add_u32 v12, 16384, v12")
        cnt = 0
        if isK: A("s_mov_b32 s35, 0x3e0293ee")
        for x in range(32):
            if isK:
                j, ip = x >> 2, x & 3
                srcs = [accr(2*ip, j, r) for r in range(4)] + [accr(2*ip+1, j, r) for r in range(4)]
                so = (j >> 2)*32768 + ((j >> 1) & 1)*8192 + (ip >> 1)*4096
                io = (ip & 1)*2048 + (j & 1)*128
            else:
                beta, nb = x >> 3, x & 7
                srcs = [accr(2*beta, nb, r) for r in range(4)] + [accr(2*beta+1, nb, r) for r in range(4)]
                so = (beta >> 1)*32768 + (beta & 1)*8192
                io = (nb >> 1)*1024 + (nb & 1)*256
            t = 16 + 4*(cnt & 3); cnt += 1
            regs = []
            for k, (ty, r) in enumerate(srcs):
                if ty == "a":
                    tmp = 13 + (k & 1) if False else None
                regs.append((ty, r))
            vs = []
            for k, (ty, r) in enumerate(regs):
                if ty == "a":
                    A(f"v_accvgpr_read_b32 v{r_tmp(k)}, a{r}")
                    vs.append(r_tmp(k))
                else:
                    vs.append(r)
            if isK:
                for k in range(8): A(f"v_mul_f32 v{vs[k]}, s35, v{vs[k]}")
            for k in range(4):
                A(f"v_cvt_pk_bf16_f32 v{t+k}, v{vs[2*k]}, v{vs[2*k+1]}")
            A(f"s_mov_b32 s34, {so}")
            A(f"buffer_store_dwordx4 v[{t}:{t+3}], v12, s[12:15], s34 offen offset:{io}")
    def r_tmp(k): return 32 + k if False else [5,6,7,8,9,10,11,13][k]
    lk, lv, le = A.newlabel("KVK"), A.newlabel("KVV"), A.newlabel("KVE")
    A("s_cmp_lt_u32 s16, 2")
    A(f"s_cbranch_scc0 {lv}")
    body(True, "K")
    A(f"s_branch {le}")
    A.label(lv)
    body(False, "V")
    A.label(le)
```

```python
from common import *

def red32(A, x, t):
    A("s_nop 1")
    A(f"v_add_f32_dpp v{x}, v{x}, v{x} quad_perm:[1,0,3,2] row_mask:0xf bank_mask:0xf")
    A("s_nop 1")
    A(f"v_add_f32_dpp v{x}, v{x}, v{x} quad_perm:[2,3,0,1] row_mask:0xf bank_mask:0xf")
    A("s_nop 1")
    A(f"v_add_f32_dpp v{x}, v{x}, v{x} row_half_mirror row_mask:0xf bank_mask:0xf")
    A("s_nop 1")
    A(f"v_add_f32_dpp v{x}, v{x}, v{x} row_mirror row_mask:0xf bank_mask:0xf")
    A(f"v_mov_b32 v{t}, v{x}")
    A("s_nop 1")
    A(f"v_permlane16_swap_b32 v{x}, v{t}")
    A("s_nop 1")
    A(f"v_add_f32 v{x}, v{x}, v{t}")

def ln16(A, X, Pk, t0, t1, sc):
    A(f"v_add_f32 v{t0}, v{X}, v{X+1}")
    for r in range(2, 16): A(f"v_add_f32 v{t0}, v{t0}, v{X+r}")
    red32(A, t0, t1)
    A(f"v_mul_f32 v{t0}, 0x3b000000, v{t0}")
    for r in range(16): A(f"v_sub_f32 v{X+r}, v{X+r}, v{t0}")
    A(f"v_mul_f32 v{t0}, v{X}, v{X}")
    for r in range(1, 16): A(f"v_fma_f32 v{t0}, v{X+r}, v{X+r}, v{t0}")
    red32(A, t0, t1)
    A(f"v_mov_b32 v{t1}, 0x3727c5ac")
    A(f"v_fmac_f32 v{t1}, 0x3b000000, v{t0}")
    A(f"v_rsq_f32 v{t1}, v{t1}")
    A("s_nop 0")
    for r in range(16): A(f"v_mul_f32 v{X+r}, v{X+r}, v{t1}")
    for r in range(8): A(f"v_cvt_pk_bf16_f32 v{Pk+r}, v{X+2*r}, v{X+2*r+1}")

def unpack(A, X, Pk, n):
    for r in range(n):
        A(f"v_lshlrev_b32 v{X+2*r}, 16, v{Pk+r}")
        A(f"v_and_b32 v{X+2*r+1}, 0xffff0000, v{Pk+r}")

def emit_ln(A, wgid="s2", sc1=False):
    load_ptr(A, 40, KA_X); load_ptr(A, 42, KA_WS)
    A("v_lshrrev_b32 v1, 5, v0")
    A("v_and_b32 v2, 31, v0")
    A(f"s_lshl_b32 s44, {wgid}, 3")
    A("v_add_u32 v1, s44, v1")
    A("v_lshlrev_b32 v3, 10, v1")
    A("v_lshl_add_u32 v3, v2, 4, v3")
    A("v_lshrrev_b32 v4, 4, v1")
    A("v_lshlrev_b32 v4, 14, v4")
    A("v_lshrrev_b32 v5, 2, v2")
    A("v_lshl_add_u32 v4, v5, 10, v4")
    A("v_and_b32 v5, 3, v2")
    A("v_and_b32 v6, 15, v1")
    A("v_lshl_add_u32 v5, v5, 4, v6")
    A("v_lshl_add_u32 v4, v5, 4, v4")
    A("v_add_u32 v5, 8192, v4")
    A("s_waitcnt lgkmcnt(0)")
    srd_off(A, 4, 40, 0, 0x200000)
    srd_off(A, 8, 42, WS_XNF, 0x200000)
    srd_off(A, 12, 42, WS_XN2F, 0x200000)
    A("buffer_load_dwordx4 v[8:11], v3, s[4:7], 0 offen")
    A("buffer_load_dwordx4 v[12:15], v3, s[4:7], 0 offen offset:512")
    A("s_waitcnt vmcnt(0)")
    unpack(A, 16, 8, 8)
    ln16(A, 16, 32, 6, 7, None)
    c = " sc1" if sc1 else ""
    A("buffer_store_dwordx4 v[32:35], v4, s[8:11], 0 offen" + c)
    A("buffer_store_dwordx4 v[36:39], v5, s[8:11], 0 offen" + c)
    unpack(A, 16, 32, 8)
    ln16(A, 16, 40, 6, 7, None)
    A("buffer_store_dwordx4 v[40:43], v4, s[12:15], 0 offen" + c)
    A("buffer_store_dwordx4 v[44:47], v5, s[12:15], 0 offen" + c)
```

```python
import sys
from common import *
from kv import emit_kv
from ln import emit_ln
from attn import emit_attn
from bpath import emit_g12, emit_g3
from fin import emit_final
HEADER = open("../cdna_kernels/recurrent_scan__compressed_kv_cla__mixer_s_mlp__prompt.s.ref").read().split("; Override")[0]
def stamp_begin(A):
    A("s_memtime s[96:97]"); A("s_memrealtime s[98:99]")
def mk_stamp(A):
    def st(k):
        A(f"s_memtime s[{62+2*k}:{63+2*k}]")
    return st
def stamp_dump(A, n, wg=17):
    l = A.newlabel("ST")
    A("s_memtime s[92:93]"); A("s_memrealtime s[94:95]")
    A("s_load_dwordx2 s[8:9], s[0:1], 96")
    A("s_waitcnt lgkmcnt(0)")
    A(f"s_cmp_lg_u32 s2, {wg}"); A(f"s_cbranch_scc1 {l}")
    A("s_mov_b32 s4, s8"); A("s_mov_b32 s5, s9"); A("s_mov_b32 s6, 256"); A("s_mov_b32 s7, 0x00020000")
    A("v_lshrrev_b32 v1, 6, v0"); A("v_lshlrev_b32 v1, 6, v1")
    A("v_and_b32 v4, 63, v0")
    A("v_cmp_eq_u32 vcc, 0, v4"); A("s_and_saveexec_b64 s[12:13], vcc")
    for k in range(n):
        A(f"s_sub_u32 s10, s{62+2*k}, s96"); A("v_mov_b32 v2, s10")
        A(f"buffer_store_dword v2, v1, s[4:7], 0 offen offset:{4*k}")
    A("s_sub_u32 s92, s92, s96"); A("s_sub_u32 s94, s94, s98")
    A("v_mov_b32 v2, s92"); A("v_mov_b32 v3, s94")
    A(f"buffer_store_dwordx2 v[2:3], v1, s[4:7], 0 offen offset:{4*n}")
    A("s_waitcnt vmcnt(0)")
    A.label(l)
UID = [0]
def simple_kernel(name, emit, grid, lds, stamp=False, nst=8, wg=17, vgpr=512, accum=256):
    A = Asm(); UID[0] += 100000; A.uid = UID[0]
    kernel_begin(A, name)
    e = A.newlabel("END")
    A(f"s_cmp_ge_u32 s2, {grid}"); A(f"s_cbranch_scc1 {e}")
    if stamp:
        stamp_begin(A)
        for k in range(nst): A(f"s_mov_b64 s[{62+2*k}:{63+2*k}], 0") if False else None
    emit(A, mk_stamp(A) if stamp else None)
    A("s_waitcnt vmcnt(0)")
    if stamp: stamp_dump(A, nst, wg)
    A.label(e); A("s_endpgm")
    return A.text(), kernel_desc(name, vgpr=vgpr, accum=accum), (name, grid, 256, lds)
def k_kv(stamp=False): return simple_kernel("kv_kernel", lambda A, st: emit_kv(A, stamp=st), 256, 131072, stamp)
def k_ln(stamp=False): return simple_kernel("ln_kernel", lambda A, st: emit_ln(A), 256, 0, stamp, vgpr=64, accum=64)
def k_attn(stamp=False, wg=17, nst=7): return simple_kernel("attn_kernel", lambda A, st: emit_attn(A, stamp=st), 256, 163840, stamp, nst=nst, wg=wg)
def k_g1(): return simple_kernel("g1_kernel", lambda A, st: emit_g12(A, 1), 256, 65536)
def k_g2(): return simple_kernel("g2_kernel", lambda A, st: emit_g12(A, 2), 256, 65536)
def k_g3(): return simple_kernel("g3_kernel", lambda A, st: emit_g3(A), 224, 131072)
def k_fin(): return simple_kernel("fin_kernel", lambda A, st: emit_final(A), 256, 131072)
def k_attn_plain(): return simple_kernel("attn_kernel", lambda A, st: emit_attn(A), 256, 163840)
def write(parts, outp):
    open(outp, "w").write(file_text([p[2] for p in parts], "".join(p[0] for p in parts), [p[1] for p in parts], HEADER))
if __name__ == "__main__":
    what = sys.argv[1]; outp = sys.argv[2]
    parts = []
    if what == "kv": parts = [k_kv(True)]
    if what == "attn": parts = [k_ln(), k_kv(), k_attn(True)]
    if what == "attnf":
        import attn; attn.FINE = True
        parts = [k_ln(), k_kv(), k_attn(True, nst=14)]
    if what == "bpath": parts = [k_ln(), k_g1(), k_g2(), k_g3()]
    if what == "full": parts = [k_ln(), k_kv(), k_g1(), k_g2(), k_g3(), k_attn_plain(), k_fin()]
    write(parts, outp)
```

```python
from common import *

V_QLA, V_X, V_Y, V_DMA = 0, 1, 2, 3
E = (4, 6)
L0S, L1S, L0L, L1L = 8, 10, 12, 14
S0, S1, P0, P1 = 16, 32, 48, 56
Q0, Q1 = 64, 96
KF, VF = 128, 160
BA0, BA1, BB0, BB1 = 192, 208, 224, 240
O_S, O_L = 0, 128
S_W, S_HEAD, S_J = 20, 21, 22
S_MX, S_K, S_KB, S_VA, S_VP, S_CNT = 23, 24, 25, 26, 27, 28
S_QBS, S_QBL, S_A, S_B, S_D = 31, 32, 33, 34, 35
S_CSO, S_TMP, S_TMP2 = 36, 37, 38
S_WS, S_WM, S_W4K = 39, 44, 30
SRD_KV, SRD_WQ, SRD_XN, SRD_CTX, SRD_QS = 4, 8, 12, 16, 56
LDS_X = 131072
KE, KO, VE, VO = 0, 16384, 32768, 49152
NEG = "0xff800000"
WS_QS = 0x5000000

def ar(b, n=4): return f"a[{b}:{b+n-1}]"
def vr(b, n=4): return f"v[{b}:{b+n-1}]"

class VM:
    def __init__(s): s.q = []
    def issue(s, tag): s.q.append(tag)
    def cnt(s, tags):
        last = max(i for i, t in enumerate(s.q) if t in tags)
        return len(s.q) - 1 - last

def qk(S, q, c):
    M = []
    for s in range(8):
        cc = c if s == 0 else vr(S, 16)
        M.append(f"v_mfma_f32_32x32x16_bf16 {vr(S,16)}, {vr(KF+4*s)}, {vr(q+4*s)}, {cc}")
    return M
def pv(P, o):
    M = []
    for t in range(2):
        for db in range(4):
            M.append(f"v_mfma_f32_32x32x16_bf16 {ar(o+16*db,16)}, {vr(VF+4*(t*4+db))}, {vr(P+4*t)}, {ar(o+16*db,16)}")
    return M

import os
X = os.environ.get("X", "").split(",")
STD_Q = ["K6", "V2", "K7", "V3"]

def step(A, par, qk0, qk1, o, sm1, tr0, sm0, tr1, dmaV=True, dmaK=True, rdK=True, rdV2=True, rdV1=True,
         nprev=8, salu=None, extra=None, entry=STD_Q, barrier=True, nops=None, std_exit=True):
    salu = salu or {}; extra = extra or {}; nops = nops or {}
    M = [None]*32
    if qk0 is not None: M[0:8] = qk(S0, Q0, qk0)
    if qk1 is not None: M[16:24] = qk(S1, Q1, qk1)
    if o is not None:
        M[8:16] = pv(P0, o); M[24:32] = pv(P1, o + 64)
    G = {g: [] for g in range(32)}
    def add2(l, e): return [f"v_add_f32 v{l}, v{l}, v{e}", f"v_add_f32 v{l+1}, v{l+1}, v{e+1}"]
    def sm(base, S, P, L, tr):
        if tr is not None and L is None:
            G[base] += add2(tr, E[1])
        if L is None: return
        for k in range(8):
            e = E[k & 1]; g = base + 2*k
            G[g].append(f"v_exp_f32 v{e}, v{S+2*k}")
            G[g].append(f"v_exp_f32 v{e+1}, v{S+2*k+1}")
            if k == 0:
                if tr is not None: G[g] += add2(tr, E[1])
                else: G[g].append("s_nop 0")
            else:
                G[g] += add2(L, E[(k-1)&1])
            G[g+1].append(f"v_cvt_pk_bf16_f32 v{P+k}, v{e}, v{e+1}")
    sm(0, S1, P1, sm1, tr0)
    sm(16, S0, P0, sm0, tr1)
    q = list(entry)
    if par == 0: aV1, oV1, aK, oK, aV2, oV2 = V_X, VE, V_Y, KE, V_X, VO
    else:        aV1, oV1, aK, oK, aV2, oV2 = V_X, VO, V_Y, KO, V_Y, VE
    R = {g: [] for g in range(32)}
    if rdV1:
        for i in range(4): R[1+2*i].append((f"V{4+i}", f"ds_read_b128 {vr(VF+4*(4+i))}, v{aV1} offset:{oV1+(4+i)*1024}"))
    if rdK:
        for s in range(8): R[17+2*s].append((f"K{s}", f"ds_read_b128 {vr(KF+4*s)}, v{aK} offset:{oK+s*1024}"))
    if rdV2:
        for i in range(4): R[25+2*i].append((f"V{i}", f"ds_read_b128 {vr(VF+4*i)}, v{aV2} offset:{oV2+i*1024}"))
    for g, l in extra.items(): R[g] += l
    if par == 0: mV, sV, mK, sK = f"s_xor_b32 m0, s{S_MX}, 0x1c000", S_VP, f"s_mov_b32 m0, s{S_MX}", S_K
    else:        mV, sV, mK, sK = f"s_or_b32 m0, s{S_MX}, 0x8000", S_VA, f"s_or_b32 m0, s{S_MX}, 0x4000", S_KB
    D = {g: [] for g in range(32)}
    nb = 0
    if dmaV:
        for i, g in enumerate((1, 3, 7, 9)):
            D[g].append(f"buffer_load_dwordx4 v{V_DMA}, s[{SRD_KV}:{SRD_KV+3}], s{sV} offen offset:{i*1024} lds"); nb += 1
    if dmaK:
        for i, g in enumerate((13, 17, 19, 21)):
            D[g].append(f"buffer_load_dwordx4 v{V_DMA}, s[{SRD_KV}:{SRD_KV+3}], s{sK} offen offset:{i*1024} lds")
            if g < 15: nb += 1
    def wait(tags):
        idx = [i for i, t in enumerate(q) if t in tags]
        if not idx: return None
        n = len(q) - 1 - max(idx)
        del q[:max(idx)+1]
        return f"s_waitcnt lgkmcnt({min(n,15)})"
    waits = {5: ["K6", "K7", "V2", "V3"], 11: ["V4","V5","V6","V7"], 31: ["K0","K1","K2","K3","K4","K5","V0","V1"],
             15: ["QB%d" % i for i in range(8)]}
    waits[31] += ["QA%d" % i for i in range(8)]
    for g in range(32):
        if M[g]: A(M[g])
        if g == 1 and dmaV:
            A(mV)
            if not G[1]: A("s_nop 0")
        if g == 11 and dmaK: pass
        for t in G[g]:
            if "nosm" in X and sm1 is not None and sm0 is not None: continue
            if "noexp" in X and t.startswith("v_exp"): t = t.replace("v_exp_f32", "v_mov_b32")
            A(t)
        for tag, t in R[g]:
            if not ("nord" in X and sm1 is not None and sm0 is not None): A(t)
            q.append(tag)
        if g in waits:
            w = wait(waits[g])
            if w: A(w)
        for t in salu.get(g, []): A(t)
        if g == 11 and dmaK: A(mK)
        for t in D[g]:
            if "nodma" not in X: A(t)
        if g == 15 and barrier:
            if "novm" not in X: A(f"s_waitcnt vmcnt({nprev + nb})")
            if "nobar" not in X: A("s_barrier")
        for t in nops.get(g, []): A(t)
    if std_exit: assert q == STD_Q, q
    return q

def toggle():
    return [f"v_xor_b32 v{V_X}, 0x10000, v{V_X}", f"v_xor_b32 v{V_Y}, 0x10000, v{V_Y}", f"s_xor_b32 s{S_MX}, s{S_MX}, 0x10000"]

def pair(A, kind, nprev=8):
    o = O_S if kind[0] == "S" else O_L
    l0, l1 = (L0S, L1S) if kind[0] == "S" else (L0L, L1L)
    kupd = [f"s_add_u32 s{S_K}, s{S_K}, 0x10000"] if kind != "SP" else [f"s_mov_b32 s{S_K}, 0"]
    sal_even = {5: kupd, 23: [f"s_add_u32 s{S_KB}, s{S_K}, 0x8000", f"s_add_u32 s{S_VA}, s{S_K}, 0x4000"]}
    tg = toggle()
    sal_odd = {23: [f"s_add_u32 s{S_VP}, s{S_K}, 0xc000"], 31: tg}
    if kind[1] == "R":
        step(A, 0, "0", "0", o, l1, l0, l0, l1, salu=sal_even)
        step(A, 1, "0", "0", o, l1, l0, l0, l1, salu=sal_odd)
    elif kind == "SP":
        step(A, 0, "0", "0", o, l1, l0, l0, l1, salu=sal_even)
        step(A, 1, vr(BA0,16), vr(BA1,16), o, l1, l0, l0, l1, salu=sal_odd)
    elif kind == "SL":
        def qr(tag, dst, f): return (f"{tag}{f}", f"ds_read_b128 {vr(dst+4*f)}, v{V_QLA} offset:{f*1024}")
        ex = {}
        for f, g in enumerate((5, 9, 11, 11, 13, 15, 15, 23)): ex.setdefault(g, []).append(qr("QA", Q0, f))
        se = dict(sal_even); se[23] = se[23] + [f"v_xor_b32 v{V_QLA}, 0x2000, v{V_QLA}"]
        for f, g in enumerate((25, 27, 29)): ex.setdefault(g, []).append(qr("QB", Q1, f))
        x = step(A, 0, vr(BB0,16), vr(BB1,16), o, l1, l0, l0, l1, salu=se, extra=ex, std_exit=False)
        ex = {}
        for f, g in zip(range(3, 8), (5, 9, 11, 11, 13)): ex.setdefault(g, []).append(qr("QB", Q1, f))
        step(A, 1, "0", "0", o, L1S, L0S, L0L, L1S, salu=sal_odd, extra=ex, entry=x)
    elif kind == "LP":
        step(A, 0, "0", "0", o, l1, l0, l0, l1, salu={}, dmaK=False)
        step(A, 1, vr(BA0,16), vr(BA1,16), o, l1, l0, l0, l1, salu={31: tg}, dmaK=False, dmaV=False, nprev=4)
    elif kind == "LL":
        x = step(A, 0, vr(BB0,16), vr(BB1,16), o, l1, l0, l0, l1, dmaK=False, dmaV=False, nprev=0, rdK=False, std_exit=False)
        step(A, 1, None, None, o, l1, l0, None, l1, dmaK=False, dmaV=False, rdK=False, rdV2=False, barrier=False,
             entry=x, std_exit=False, nops={16: ["s_nop 1"]})

def emit_attn2(A, wgid="s2", stamp=None, fallback=True):
    st = stamp if stamp else (lambda k: None)
    ool = []
    load_ptr(A, 40, KA_WQ); load_ptr(A, 42, KA_WS)
    A("v_lshrrev_b32 v10, 6, v0")
    A("v_and_b32 v11, 63, v0")
    A(f"v_readfirstlane_b32 s{S_W}, v10")
    A(f"s_and_b32 s{S_HEAD}, {wgid}, 7")
    A(f"s_lshr_b32 s{S_TMP}, {wgid}, 3")
    A(f"s_and_b32 s{S_TMP}, s{S_TMP}, 3")
    A(f"s_lshl_b32 s{S_TMP}, s{S_TMP}, 3")
    A(f"s_add_u32 s{S_HEAD}, s{S_HEAD}, s{S_TMP}")
    A(f"s_lshr_b32 s{S_J}, {wgid}, 5")
    A(f"s_lshl_b32 s{S_QBS}, s{S_J}, 2"); A(f"s_add_u32 s{S_QBS}, s{S_QBS}, s{S_W}")
    A(f"s_sub_u32 s{S_QBL}, 15, s{S_J}"); A(f"s_lshl_b32 s{S_QBL}, s{S_QBL}, 2"); A(f"s_add_u32 s{S_QBL}, s{S_QBL}, s{S_W}")
    A(f"s_lshl_b32 s{S_W4K}, s{S_W}, 12")
    A(f"s_lshl_b32 s{S_CSO}, s{S_HEAD}, 12")
    A(f"v_lshlrev_b32 v2, 4, v11")
    A(f"v_add_u32 v{V_DMA}, s{S_W4K}, v2")
    A(f"s_cmp_eq_u32 s{S_J}, 0")
    A(f"s_cselect_b32 s{S_K}, 0, 0x10000")
    A("s_waitcnt lgkmcnt(0)")
    A(f"s_lshl_b32 s{S_TMP}, s{S_HEAD}, 20")
    A(f"s_add_u32 s4, s42, s{S_TMP}"); A("s_addc_u32 s5, s43, 0")
    if WS_KV: A(f"s_add_u32 s4, s4, {hex(WS_KV)}"); A("s_addc_u32 s5, s5, 0")
    A("s_mov_b32 s6, 0x100000"); A("s_mov_b32 s7, 0x00020000")
    A(f"s_lshl_b32 s{S_TMP}, s{S_HEAD}, 8")
    A(f"s_add_u32 s8, s40, s{S_TMP}"); A("s_addc_u32 s9, s41, 0")
    A(f"s_sub_u32 s10, 0x400000, s{S_TMP}"); A("s_mov_b32 s11, 0x00020000")
    srd_off(A, SRD_XN, 42, WS_XNF, 0x200000)
    srd_off(A, SRD_CTX, 42, WS_CTX, 0x1000000)
    srd_off(A, SRD_QS, 42, WS_QS, 0x800000)
    VW, VB0, VB1, VT = 12, 16, 17, 22
    A("v_lshrrev_b32 v13, 4, v11")
    A("v_and_b32 v14, 15, v11")
    A("v_lshlrev_b32 v15, 2, v13")
    A("v_xor_b32 v15, v14, v15")
    A("v_lshlrev_b32 v15, 4, v15")
    A(f"v_lshl_add_u32 v{VW}, v13, 13, v15")
    A(f"s_lshl_b32 s{S_TMP}, s{S_W}, 18")
    A(f"v_add_u32 v{VW}, s{S_TMP}, v{VW}")
    A("v_and_b32 v18, 1, v13")
    A("v_lshrrev_b32 v19, 5, v11")
    A("v_lshl_add_u32 v20, v19, 4, v14")
    A("v_lshlrev_b32 v20, 4, v20")
    A("v_lshl_add_u32 v21, v18, 14, v20")
    A(f"s_lshl_b32 s{S_TMP}, s{S_QBS}, 15"); A(f"v_add_u32 v{VB0}, s{S_TMP}, v21")
    A(f"s_lshl_b32 s{S_TMP}, s{S_QBL}, 15"); A(f"v_add_u32 v{VB1}, s{S_TMP}, v21")
    A("v_lshrrev_b32 v26, 2, v14")
    A("v_lshrrev_b32 v27, 1, v13")
    A("v_lshl_add_u32 v27, v27, 3, v26")
    A("v_lshlrev_b32 v27, 8, v27")
    A("v_bfe_u32 v28, v14, 1, 1")
    A("v_lshl_add_u32 v28, v18, 1, v28")
    A("v_lshl_add_u32 v27, v28, 4, v27")
    A("v_and_b32 v28, 1, v14")
    A("v_lshl_add_u32 v27, v28, 3, v27")
    for db in range(4):
        A(f"v_xor_b32 v28, {db}, v26")
        A(f"v_lshl_add_u32 v{VT+db}, v28, 6, v27")
    vm = VM()
    WBUF = [LDS_X, 65536, 98304, LDS_X]
    A(f"s_lshl_b32 s{S_WM}, s{S_W}, 13")
    def wdma(c):
        R = []
        for i in range(8):
            R.append([f"s_add_u32 m0, s{S_WM}, {WBUF[c] + i*1024}",
                      f"s_mov_b32 s{S_WS}, {(128*c + 4*i)*8192}",
                      f"buffer_load_dwordx4 v{VW}, s[8:11], s{S_WS} offen lds"])
        return R
    def bload(c, s):
        p = c & 1
        return [f"buffer_load_dwordx4 {ar(64*p + 32*b + 4*s)}, v{vx}, s[12:15], s{45+c} offen offset:{512*s}" for b, vx in ((0, VB0), (1, VB1))]
    for c in range(4): A(f"s_mov_b32 s{45+c}, {4096*c}")
    def kvdma(ldsbase, soff):
        R = [[f"s_add_u32 m0, s{S_W4K}, {ldsbase}"] + ([f"s_mov_b32 s{S_WS}, {soff}"] if isinstance(soff, int) else [])]
        so = f"s{S_WS}" if isinstance(soff, int) else soff
        for i in range(4):
            R.append([f"buffer_load_dwordx4 v{V_DMA}, s[4:7], {so} offen offset:{i*1024} lds"])
        return R
    def emit_list(R, tag):
        for g in R:
            if isinstance(g, str): g = [g]
            for t in g:
                A(t)
                if t.startswith("buffer_"): vm.issue(tag)
    st(0)
    emit_list(wdma(0), "W0")
    for s in range(8): emit_list(bload(0, s), "B0")
    emit_list(wdma(1), "W1")
    for s in range(8): emit_list(bload(1, s), "B1")
    emit_list(wdma(2), "W2")
    def wreads(c, s):
        p = s & 1
        R = []
        for db in range(4):
            for rd in range(2):
                b = 128 + 16*p + 4*db + 2*rd
                R.append(f"ds_read_b64_tr_b16 a[{b}:{b+1}], v{VT+db} offset:{4096*s + 1024*rd}")
        return R
    def setbuf(c):
        d = WBUF[c] - (WBUF[c-1] if c else 0)
        return [(f"v_add_u32 v{VT+db}, {d}, v{VT+db}" if d >= 0 else f"v_subrev_u32 v{VT+db}, {-d}, v{VT+db}") for db in range(4)]
    for t in setbuf(0): A(t)
    A(f"s_waitcnt vmcnt({vm.cnt(['W0','B0'])})")
    A("s_barrier")
    st(1)
    for t in wreads(0, 0): A(t)
    QACC = lambda b, db: vr(128 + 64*b + 16*db, 16)
    kvlist = [(KE, 0), (KO, 32768), (VE, 16384), (VO, 49152)]
    for c in range(4):
        for s in range(8):
            p = s & 1
            pre = ["s_waitcnt lgkmcnt(0)"]
            last = (s == 7)
            if last and c < 3:
                n = vm.cnt([f"W{c+1}", f"B{c+1}"])
                pre = [f"s_waitcnt vmcnt({n}) lgkmcnt(0)", "s_barrier"] + setbuf(c+1)
            if last and c == 3:
                pre = ["s_waitcnt lgkmcnt(0)", "s_barrier"]
            M = []
            for db in range(4):
                for b in range(2):
                    cc = "0" if (c == 0 and s == 0) else QACC(b, db)
                    M.append(f"v_mfma_f32_32x32x16_bf16 {QACC(b,db)}, {ar(128+16*p+4*db)}, {ar(64*(c&1)+32*b+4*s)}, {cc}")
            F = []
            if not last: F += [(i, t) for i, t in enumerate(wreads(c, s+1))]
            elif c < 3: F += [(i, t) for i, t in enumerate(wreads(c+1, 0))]
            ext = []
            if s > 0 and c + 2 <= 3:
                ext += [(t, f"B{c+2}") for t in bload(c+2, s-1)]
            if last and c == 0:
                for g in wdma(3): ext += [(t, "W3") for t in g]
            if last and c == 1:
                for g in kvdma(65536 + KE, f"s{S_K}"): ext += [(t, "KV2") for t in g]
            if c == 0 and s in (1, 3, 5, 6):
                b_, o_ = kvlist[(1, 3, 5, 6).index(s)]
                for g in kvdma(b_, o_): ext += [(t, "KV0") for t in g]
            for t in pre: A(t)
            for k, (t, tag) in enumerate(ext):
                g = min(7, k*8 // max(len(ext), 1))
                F.append((g, t))
                if t.startswith("buffer_"): vm.issue(tag)
            interleave(A, M, F)
            if last and c + 2 <= 3:
                for t in bload(c+2, 7): A(t); vm.issue(f"B{c+2}")
    st(2)
    A("v_and_b32 v11, 63, v0")
    A("v_lshlrev_b32 v2, 4, v11")
    A(f"s_lshl_b32 s{S_TMP}, s{S_W}, 13")
    A(f"s_add_u32 s{S_TMP2}, s{S_TMP}, {LDS_X}")
    A(f"v_add_u32 v{V_QLA}, s{S_TMP2}, v2")
    A(f"s_add_u32 s{S_TMP2}, s{S_TMP}, 98304")
    A(f"v_add_u32 v4, s{S_TMP2}, v2")
    A(f"v_xor_b32 v5, 0x2000, v4")
    A(f"s_lshl_b32 s{S_TMP2}, {wgid}, 15"); A(f"s_add_u32 s{S_TMP2}, s{S_TMP2}, s{S_TMP}")
    A(f"s_mov_b32 s{S_A}, s{S_TMP2}")
    for r in range(4): A(f"v_mov_b32 v{S0+r}, 0")
    A("s_nop 1")
    Z = [f"v_mfma_f32_32x32x16_bf16 {ar(16*i,16)}, {vr(S0)}, {vr(S0)}, 0" for i in range(16)]
    F = []
    def cv(dst, b, f):
        db, t = f >> 1, f & 1
        return [f"v_cvt_pk_bf16_f32 v{dst + 4*f + r}, v{128 + 64*b + 16*db + 8*t + 2*r}, v{128 + 64*b + 16*db + 8*t + 2*r + 1}" for r in range(4)]
    g = 2
    for f in range(8):
        for t in cv(Q0, 0, f): F.append((g, t))
        F.append((g, f"ds_write_b128 v4, {vr(Q0+4*f)} offset:{f*1024}"))
        g += (f & 1) ^ 1 if False else 0
        if f & 1: g += 1
    for f in range(8):
        for t in cv(Q1, 1, f): F.append((g, t))
        F.append((g, f"ds_write_b128 v{V_QLA}, {vr(Q1+4*f)} offset:{f*1024}"))
        if f & 1: g += 1
    for f in range(8):
        F.append((g + f//2, f"buffer_store_dwordx4 {vr(Q0+4*f)}, v2, s[{SRD_QS}:{SRD_QS+3}], s{S_A} offen offset:{(f&3)*1024}" if f < 4 else
                  f"buffer_store_dwordx4 {vr(Q0+4*f)}, v3, s[{SRD_QS}:{SRD_QS+3}], s{S_B} offen offset:{(f&3)*1024}"))
    F = [(a_, t.replace("v3, s[56:59], s34", "v2, s[56:59], s34")) for a_, t in F]
    A(f"s_add_u32 s{S_B}, s{S_A}, 4096")
    interleave(A, Z, F)
    A(f"s_and_b32 s{S_TMP}, s{S_W}, 1"); A(f"s_lshl_b32 s{S_TMP}, s{S_TMP}, 13")
    A(f"v_add_u32 v{V_Y}, s{S_TMP}, v2")
    A(f"v_add_u32 v{V_X}, 0x10000, v{V_Y}")
    A(f"s_add_u32 s{S_MX}, s{S_W4K}, 0x10000")
    A(f"s_add_u32 s{S_KB}, s{S_K}, 0x8000"); A(f"s_add_u32 s{S_VA}, s{S_K}, 0x4000")
    A(f"s_add_u32 s{S_VP}, s{S_K}, 0xc000")
    A("s_waitcnt lgkmcnt(0)")
    A("s_barrier")
    for f in range(8): A(f"ds_read_b128 {vr(Q1+4*f)}, v5 offset:{f*1024}")
    for s in range(8): A(f"ds_read_b128 {vr(KF+4*s)}, v{V_Y} offset:{KE+s*1024}")
    A("v_and_b32 v11, 31, v11"); A("v_bfe_u32 v12, v2, 9, 1")
    A("v_lshlrev_b32 v12, 2, v12"); A("v_sub_u32 v11, v11, v12")
    A(f"v_mov_b32 v12, {NEG}")
    A(f"s_cmp_lt_u32 s{S_W}, 2"); A(f"s_cselect_b32 s{S_A}, -1, 0"); A(f"s_cselect_b32 s{S_B}, {NEG}, 0"); A(f"s_cselect_b32 s{S_D}, 0, -1")
    A(f"s_cmp_eq_u32 s{S_W}, 1"); A(f"s_cselect_b32 s{S_TMP}, {NEG}, 0")
    A(f"s_cmp_eq_u32 s{S_W}, 2"); A(f"s_cselect_b32 s{S_TMP2}, 0, {NEG}")
    for r in range(16):
        key = 16*((r >> 2) & 1) + 8*(r >> 3) + (r & 3)
        A(f"v_cmp_gt_i32 vcc, {key}, v11")
        A(f"v_mov_b32 v{BA1+r}, s{S_TMP}")
        A(f"v_mov_b32 v{BB1+r}, s{S_TMP2}")
        A(f"v_cndmask_b32 v13, 0, v12, vcc")
        A(f"v_and_b32 v{BA0+r}, s{S_A}, v13")
        A(f"v_and_b32 v13, s{S_D}, v13")
        A(f"v_or_b32 v{BB0+r}, s{S_B}, v13")
    A(f"s_cmp_eq_u32 s{S_J}, 0"); A(f"s_cselect_b32 s{S_A}, -1, 0")
    for r in range(16):
        A(f"v_and_b32 v{S0+r}, s{S_A}, v{BA0+r}")
        A(f"v_and_b32 v{S1+r}, s{S_A}, v{BA1+r}")
    for r in range(8, 16): A(f"v_mov_b32 v{r}, 0")
    A("s_waitcnt lgkmcnt(0)")
    A("s_barrier")
    st(3)
    step(A, 1, vr(S0,16), vr(S1,16), None, None, None, L0S, None, rdV1=False, entry=[], nprev=0,
         salu={31: toggle()}, nops={15: ["s_nop 7", "s_nop 7"]})
    lSP, lSL, lSR = A.newlabel("SP"), A.newlabel("SL"), A.newlabel("SR")
    A(f"s_cmp_eq_u32 s{S_J}, 0"); A(f"s_cbranch_scc1 {lSL}")
    A(f"s_sub_u32 s{S_CNT}, s{S_J}, 1")
    A(f"s_cmp_eq_u32 s{S_CNT}, 0"); A(f"s_cbranch_scc1 {lSP}")
    A.label(lSR)
    pair(A, "SR")
    A(f"s_sub_u32 s{S_CNT}, s{S_CNT}, 1"); A(f"s_cmp_lg_u32 s{S_CNT}, 0"); A(f"s_cbranch_scc1 {lSR}")
    A.label(lSP)
    pair(A, "SP")
    A.label(lSL)
    pair(A, "SL")
    st(4)
    A(f"s_sub_u32 s{S_CNT}, 14, s{S_J}")
    lLR = A.newlabel("LR")
    A.label(lLR)
    pair(A, "LR")
    A(f"s_sub_u32 s{S_CNT}, s{S_CNT}, 1"); A(f"s_cmp_lg_u32 s{S_CNT}, 0"); A(f"s_cbranch_scc1 {lLR}")
    pair(A, "LP")
    pair(A, "LL")
    st(5)
    A("s_barrier")
    A(f"v_and_b32 v2, 0x3ff, v{V_Y}")
    A(f"s_lshl_b32 s{S_TMP}, s{S_W}, 15")
    A(f"v_add_u32 v3, s{S_TMP}, v2")
    A(f"v_xor_b32 v1, 0x8000, v3")
    A(f"v_lshrrev_b32 v4, 1, v2")
    A(f"s_lshl_b32 s{S_TMP}, s{S_W}, 9"); A(f"s_add_u32 s{S_TMP}, s{S_TMP}, {LDS_X}")
    A(f"v_add_u32 v4, s{S_TMP}, v4")
    A(f"v_xor_b32 v5, 0x200, v4")
    A(f"v_add_f32 v6, v{L1S}, v{L1S+1}"); A(f"v_add_f32 v7, v{L1L}, v{L1L+1}")
    A(f"v_add_f32 v{L0S}, v{L0S}, v{L0S+1}"); A(f"v_add_f32 v{L0L}, v{L0L}, v{L0L+1}")
    A("ds_write_b64 v4, v[6:7]")
    A("s_nop 7")
    for i in range(16):
        A(f"ds_write_b128 v3, {ar(O_S+64+4*i)} offset:{i*1024}")
        for r in range(4): A(f"v_accvgpr_read_b32 v{128+4*i+r}, a{O_S+4*i+r}")
    for i in range(16):
        A(f"ds_write_b128 v3, {ar(O_L+64+4*i)} offset:{16384+i*1024}")
        for r in range(4): A(f"v_accvgpr_read_b32 v{192+4*i+r}, a{O_L+4*i+r}")
    A("v_lshrrev_b32 v11, 4, v2")
    A("v_and_b32 v14, 15, v11"); A("v_lshrrev_b32 v19, 5, v11"); A("v_bfe_u32 v18, v11, 4, 1")
    A("v_lshl_add_u32 v20, v19, 4, v14"); A("v_lshlrev_b32 v20, 4, v20")
    A("v_lshl_add_u32 v21, v18, 17, v20")
    V_CS, V_CL = 16, 17
    A(f"s_lshl_b32 s{S_TMP}, s{S_QBS}, 18"); A(f"v_add_u32 v{V_CS}, s{S_TMP}, v21")
    A(f"s_lshl_b32 s{S_TMP}, s{S_QBL}, 18"); A(f"v_add_u32 v{V_CL}, s{S_TMP}, v21")
    A("s_waitcnt lgkmcnt(0)")
    A("s_barrier")
    A("ds_read_b64 v[6:7], v5")
    PT = 18
    def prd(which, grp, dst):
        return [f"ds_read_b128 {vr(dst+4*h)}, v1 offset:{which*16384 + (2*grp+h)*1024}" for h in range(2)]
    PB = [96, 104, 112, 120]
    for gi in range(4):
        for t in prd(0, gi, PB[gi]): A(t)
    def half_sum(x, y, op="v_add_f32"):
        A(f"v_mov_b32 v{y}, v{x}"); A("s_nop 1")
        A(f"v_permlane32_swap_b32 v{x}, v{y}"); A("s_nop 1")
        A(f"{op} v{x}, v{x}, v{y}")
    A("s_waitcnt lgkmcnt(8)")
    A(f"v_add_f32 v{L0S}, v{L0S}, v6"); A(f"v_add_f32 v{L0L}, v{L0L}, v7")
    half_sum(L0S, 9); half_sum(L0L, 13)
    lfS, lfL, lrS, lrL = A.newlabel("FS"), A.newlabel("FL"), A.newlabel("RS"), A.newlabel("RL")
    def rangechk(x, mask):
        A(f"v_mov_b32 v9, 0x2b800000")
        A(f"v_cmp_ge_f32 vcc, v{x}, v9")
        A(f"v_mov_b32 v9, 0x53800000")
        A(f"v_cmp_le_f32 s[50:51], v{x}, v9")
        A("s_nop 1")
        A("s_and_b64 vcc, vcc, s[50:51]")
        A("s_cmp_eq_u64 vcc, -1")
        A(f"s_cselect_b32 s{mask}, 0, 1")
    rangechk(L0S, S_A); rangechk(L0L, S_B)
    A(f"v_rcp_f32 v{L0S}, v{L0S}"); A(f"v_rcp_f32 v{L0L}, v{L0L}")
    A("s_nop 0")
    A(f"v_mov_b32 v9, v{L0S}"); A(f"v_mov_b32 v13, v{L0L}")
    TB = [50, 54]
    for n in range(16):
        which, grp = n >> 3, n & 7
        own = (128 if which == 0 else 192) + 8*grp
        pb = PB[n & 3]
        x = L0S if which == 0 else L0L
        outstanding = min(15 - n, 3) * 2
        A(f"s_waitcnt lgkmcnt({outstanding})")
        for h in range(4): A(f"v_pk_add_f32 {vr(own+2*h,2)}, {vr(own+2*h,2)}, {vr(pb+2*h,2)}")
        if n + 4 < 16:
            for t in prd((n+4) >> 3, (n+4) & 7, pb): A(t)
        for h in range(4): A(f"v_pk_mul_f32 {vr(own+2*h,2)}, {vr(own+2*h,2)}, {vr(x,2)}")
        tb = TB[n & 1]
        for h in range(4): A(f"v_cvt_pk_bf16_f32 v{tb+h}, v{own+2*h}, v{own+2*h+1}")
        db, t = grp >> 1, grp & 1
        vc = V_CS if which == 0 else V_CL
        A(f"buffer_store_dwordx4 {vr(tb)}, v{vc}, s[16:19], s{S_CSO} offen offset:{db*1024+t*512}")
    if fallback:
        A(f"s_cmp_eq_u32 s{S_B}, 0"); A(f"s_cbranch_scc0 {lfL}")
        A.label(lrL)
        A(f"s_cmp_eq_u32 s{S_A}, 0"); A(f"s_cbranch_scc0 {lfS}")
        A.label(lrS)
        def store_block(vc, rd):
            cnt = 0
            for db in range(4):
                for t in range(2):
                    b = 232 + 12*(cnt & 1); cnt += 1
                    rd(db, t, b)
                    for r in range(4): A(f"v_cvt_pk_bf16_f32 v{b+8+r}, v{b+2*r}, v{b+2*r+1}")
                    A(f"buffer_store_dwordx4 {vr(b+8)}, v{vc}, s[16:19], s{S_CSO} offen offset:{db*1024+t*512}")
        def fallback_code(vc, qb, reload_q):
            FO, FK, FV = 164, 64, 96
            FS, FP, TRI = 32, 48, 128
            m, l, al, t0, t1, ad, l16 = 228, 229, 230, 231, 10, 11, 12
            S_KB_, S_O1, S_O2 = 52, 53, 54
            A("s_waitcnt vmcnt(0)")
            A(f"v_and_b32 v{l16}, 0x3ff, v{V_Y}")
            if reload_q:
                A(f"s_lshl_b32 s{S_O1}, {wgid}, 15"); A(f"s_lshl_b32 s{S_O2}, s{S_W}, 13"); A(f"s_add_u32 s{S_O1}, s{S_O1}, s{S_O2}")
                A(f"s_add_u32 s{S_O2}, s{S_O1}, 4096")
                for f in range(8):
                    A(f"buffer_load_dwordx4 {vr(Q0+4*f)}, v{l16}, s[{SRD_QS}:{SRD_QS+3}], s{S_O1 if f < 4 else S_O2} offen offset:{(f&3)*1024} sc1")
            A(f"v_lshrrev_b32 v{t0}, 4, v{l16}"); A(f"v_lshrrev_b32 v{t1}, 5, v{t0}"); A(f"v_and_b32 v{t0}, 31, v{t0}")
            A(f"v_lshlrev_b32 v{t1}, 2, v{t1}"); A(f"v_sub_u32 v{t0}, v{t0}, v{t1}"); A(f"v_mov_b32 v{t1}, {NEG}")
            for r in range(16):
                key = 16*((r >> 2) & 1) + 8*(r >> 3) + (r & 3)
                A(f"v_cmp_gt_i32 vcc, {key}, v{t0}"); A("s_nop 1")
                A(f"v_cndmask_b32 v{TRI+r}, 0, v{t1}, vcc")
            for r in range(64): A(f"v_mov_b32 v{FO+r}, 0")
            A(f"v_mov_b32 v{m}, {NEG}"); A(f"v_mov_b32 v{l}, 0")
            A(f"v_add_u32 v{ad}, 4096, v{l16}")
            A(f"s_mov_b32 s{S_KB_}, 0")
            A("s_waitcnt vmcnt(0)")
            lp, ld_, ln_ = A.newlabel("FP"), A.newlabel("FD"), A.newlabel("FN")
            A.label(lp)
            A(f"s_lshr_b32 s{S_O1}, s{S_KB_}, 1"); A(f"s_lshl_b32 s{S_O1}, s{S_O1}, 15")
            A(f"s_and_b32 s{S_O2}, s{S_KB_}, 1"); A(f"s_lshl_b32 s{S_O2}, s{S_O2}, 13")
            A(f"s_add_u32 s{S_O1}, s{S_O1}, s{S_O2}")
            A(f"s_add_u32 s{S_O2}, s{S_O1}, 16384")
            for s_ in range(8):
                A(f"buffer_load_dwordx4 {ar(FK+4*s_)}, v{l16 if s_ < 4 else ad}, s[4:7], s{S_O1} offen offset:{(s_&3)*1024}")
            for s_ in range(8):
                A(f"buffer_load_dwordx4 {ar(FV+4*s_)}, v{l16 if s_ < 4 else ad}, s[4:7], s{S_O2} offen offset:{(s_&3)*1024}")
            A("s_waitcnt vmcnt(8)")
            A(f"s_cmp_eq_u32 s{S_KB_}, s{qb}")
            A(f"s_cbranch_scc1 {ld_}")
            A(f"v_mfma_f32_32x32x16_bf16 {vr(FS,16)}, {ar(FK)}, {vr(Q0)}, 0")
            A(f"s_branch {ln_}")
            A.label(ld_)
            A(f"v_mfma_f32_32x32x16_bf16 {vr(FS,16)}, {ar(FK)}, {vr(Q0)}, {vr(TRI,16)}")
            A.label(ln_)
            for s_ in range(1, 8):
                A(f"v_mfma_f32_32x32x16_bf16 {vr(FS,16)}, {ar(FK+4*s_)}, {vr(Q0+4*s_)}, {vr(FS,16)}")
            A("s_nop 7"); A("s_nop 7")
            A(f"v_max_f32 v{t0}, v{FS}, v{FS+1}")
            for r in range(2, 16, 2): A(f"v_max3_f32 v{t0}, v{t0}, v{FS+r}, v{FS+r+1}")
            half_sum(t0, t1, "v_max_f32")
            A(f"v_max_f32 v{t0}, v{t0}, v{m}")
            A(f"v_sub_f32 v{al}, v{m}, v{t0}")
            A(f"v_exp_f32 v{al}, v{al}")
            A(f"v_mov_b32 v{m}, v{t0}")
            for r in range(16): A(f"v_sub_f32 v{FS+r}, v{FS+r}, v{m}")
            for r in range(16): A(f"v_exp_f32 v{FS+r}, v{FS+r}")
            A(f"v_mul_f32 v{l}, v{l}, v{al}")
            for r in range(16): A(f"v_add_f32 v{l}, v{l}, v{FS+r}")
            for r in range(8): A(f"v_cvt_pk_bf16_f32 v{FP+r}, v{FS+2*r}, v{FS+2*r+1}")
            for r in range(64): A(f"v_mul_f32 v{FO+r}, v{FO+r}, v{al}")
            A("s_waitcnt vmcnt(0)")
            A("s_nop 1")
            for t in range(2):
                for db in range(4):
                    A(f"v_mfma_f32_32x32x16_bf16 {vr(FO+16*db,16)}, {ar(FV+4*(t*4+db))}, {vr(FP+4*t)}, {vr(FO+16*db,16)}")
            A("s_nop 7"); A("s_nop 7")
            A(f"s_add_u32 s{S_KB_}, s{S_KB_}, 1")
            A(f"s_cmp_le_u32 s{S_KB_}, s{qb}")
            A(f"s_cbranch_scc1 {lp}")
            half_sum(l, t1)
            A(f"v_rcp_f32 v{l}, v{l}")
            A("s_nop 0")
            def rd(db, t, b):
                for r in range(8): A(f"v_mul_f32 v{b+r}, v{FO+16*db+8*t+r}, v{l}")
            store_block(vc, rd)
        le = A.newlabel("AE")
        A(f"s_branch {le}")
        A.label(lfL); fallback_code(V_CL, S_QBL, False); A(f"s_branch {lrL}")
        A.label(lfS); fallback_code(V_CS, S_QBS, True); A(f"s_branch {lrS}")
        A.label(le)
```

```python
import sys
from common import *
from kv import emit_kv
from ln import emit_ln
from attn import emit_attn
from bpath import emit_g12, emit_g3
from fin import emit_final
from attn2 import emit_attn2
HEADER = open("../cdna_kernels/recurrent_scan__compressed_kv_cla__mixer_s_mlp__prompt.s.ref").read().split("; Override")[0]
def stamp_begin(A):
    A("s_memtime s[96:97]"); A("s_memrealtime s[98:99]"); A("v_lshrrev_b32 v1, 6, v0"); A("s_nop 1"); A("v_readfirstlane_b32 s91, v1")
def mk_stamp(A):
    def st(k):
        A(f"s_memtime s[{62+2*k}:{63+2*k}]")
    return st
def stamp_dump(A, n, wg=17):
    l = A.newlabel("ST")
    A("s_memtime s[92:93]"); A("s_memrealtime s[94:95]")
    A("s_load_dwordx2 s[8:9], s[0:1], 96")
    A("s_waitcnt lgkmcnt(0)")
    A(f"s_cmp_lg_u32 s2, {wg}"); A(f"s_cbranch_scc1 {l}")
    A("s_mov_b32 s4, s8"); A("s_mov_b32 s5, s9"); A("s_mov_b32 s6, 256"); A("s_mov_b32 s7, 0x00020000")
    A("s_lshl_b32 s91, s91, 6"); A("v_mov_b32 v1, s91")
    A("v_mbcnt_lo_u32_b32 v4, -1, 0"); A("v_mbcnt_hi_u32_b32 v4, -1, v4")
    A("v_cmp_eq_u32 vcc, 0, v4"); A("s_and_saveexec_b64 s[12:13], vcc")
    for k in range(n):
        A(f"s_sub_u32 s10, s{62+2*k}, s96"); A("v_mov_b32 v2, s10")
        A(f"buffer_store_dword v2, v1, s[4:7], 0 offen offset:{4*k}")
    A("s_sub_u32 s92, s92, s96"); A("s_sub_u32 s94, s94, s98")
    A("v_mov_b32 v2, s92"); A("v_mov_b32 v3, s94")
    A(f"buffer_store_dwordx2 v[2:3], v1, s[4:7], 0 offen offset:{4*n}")
    A("s_waitcnt vmcnt(0)")
    A.label(l)
UID = [0]
def simple_kernel(name, emit, grid, lds, stamp=False, nst=8, wg=17, vgpr=512, accum=256):
    A = Asm(); UID[0] += 100000; A.uid = UID[0]
    kernel_begin(A, name)
    e = A.newlabel("END")
    A(f"s_cmp_ge_u32 s2, {grid}"); A(f"s_cbranch_scc1 {e}")
    if stamp:
        stamp_begin(A)
        for k in range(nst): A(f"s_mov_b64 s[{62+2*k}:{63+2*k}], 0") if False else None
    emit(A, mk_stamp(A) if stamp else None)
    A("s_waitcnt vmcnt(0)")
    if stamp: stamp_dump(A, nst, wg)
    A.label(e); A("s_endpgm")
    return A.text(), kernel_desc(name, vgpr=vgpr, accum=accum), (name, grid, 256, lds)
def k_kv(stamp=False): return simple_kernel("kv_kernel", lambda A, st: emit_kv(A, stamp=st), 256, 131072, stamp)
def k_ln(stamp=False): return simple_kernel("ln_kernel", lambda A, st: emit_ln(A), 256, 0, stamp, vgpr=64, accum=64)
def k_attn(stamp=False, wg=17, nst=7): return simple_kernel("attn_kernel", lambda A, st: emit_attn(A, stamp=st), 256, 163840, stamp, nst=nst, wg=wg)
def k_g1(): return simple_kernel("g1_kernel", lambda A, st: emit_g12(A, 1), 256, 65536)
def k_g2(): return simple_kernel("g2_kernel", lambda A, st: emit_g12(A, 2), 256, 65536)
def k_g3(): return simple_kernel("g3_kernel", lambda A, st: emit_g3(A), 224, 131072)
def k_fin(): return simple_kernel("fin_kernel", lambda A, st: emit_final(A), 256, 131072)
def k_attn_plain(): return simple_kernel("attn_kernel", lambda A, st: emit_attn(A), 256, 163840)
def k_attn2(stamp=False, wg=17, nst=6): return simple_kernel("attn_kernel", lambda A, st: emit_attn2(A, stamp=st), 256, 163840, stamp, nst=nst, wg=wg)
def write(parts, outp):
    open(outp, "w").write(file_text([p[2] for p in parts], "".join(p[0] for p in parts), [p[1] for p in parts], HEADER))
if __name__ == "__main__":
    what = sys.argv[1]; outp = sys.argv[2]
    parts = []
    if what == "kv": parts = [k_kv(True)]
    if what == "attn": parts = [k_ln(), k_kv(), k_attn(True)]
    if what == "attnf":
        import attn; attn.FINE = True
        parts = [k_ln(), k_kv(), k_attn(True, nst=14)]
    if what == "bpath": parts = [k_ln(), k_g1(), k_g2(), k_g3()]
    if what == "full": parts = [k_ln(), k_kv(), k_g1(), k_g2(), k_g3(), k_attn_plain(), k_fin()]
    if what == "attn2": parts = [k_ln(), k_kv(), k_attn2(True)]
    if what == "full2": parts = [k_ln(), k_kv(), k_g1(), k_g2(), k_g3(), k_attn2(False), k_fin()]
    write(parts, outp)
```

```python
import sys
from common import *
from kv import emit_kv
from ln import emit_ln
from attn import emit_attn
from bpath import emit_g12, emit_g3
from fin import emit_final
from attn2 import emit_attn2
HEADER = open("../cdna_kernels/recurrent_scan__compressed_kv_cla__mixer_s_mlp__prompt.s.ref").read().split("; Override")[0]
def stamp_begin(A):
    A("s_memtime s[96:97]"); A("s_memrealtime s[98:99]"); A("v_lshrrev_b32 v1, 6, v0"); A("s_nop 1"); A("v_readfirstlane_b32 s91, v1")
def mk_stamp(A):
    def st(k):
        A(f"s_memtime s[{62+2*k}:{63+2*k}]")
    return st
def stamp_dump(A, n, wg=17):
    l = A.newlabel("ST")
    A("s_memtime s[92:93]"); A("s_memrealtime s[94:95]")
    A("s_load_dwordx2 s[8:9], s[0:1], 96")
    A("s_waitcnt lgkmcnt(0)")
    A(f"s_cmp_lg_u32 s2, {wg}"); A(f"s_cbranch_scc1 {l}")
    A("s_mov_b32 s4, s8"); A("s_mov_b32 s5, s9"); A("s_mov_b32 s6, 256"); A("s_mov_b32 s7, 0x00020000")
    A("s_lshl_b32 s91, s91, 6"); A("v_mov_b32 v1, s91")
    A("v_mbcnt_lo_u32_b32 v4, -1, 0"); A("v_mbcnt_hi_u32_b32 v4, -1, v4")
    A("v_cmp_eq_u32 vcc, 0, v4"); A("s_and_saveexec_b64 s[12:13], vcc")
    for k in range(n):
        A(f"s_sub_u32 s10, s{62+2*k}, s96"); A("v_mov_b32 v2, s10")
        A(f"buffer_store_dword v2, v1, s[4:7], 0 offen offset:{4*k}")
    A("s_sub_u32 s92, s92, s96"); A("s_sub_u32 s94, s94, s98")
    A("v_mov_b32 v2, s92"); A("v_mov_b32 v3, s94")
    A(f"buffer_store_dwordx2 v[2:3], v1, s[4:7], 0 offen offset:{4*n}")
    A("s_waitcnt vmcnt(0)")
    A.label(l)
def emit_lid(A, per, lds_addr=0):
    sk, tr, got = A.newlabel("SK"), A.newlabel("TR"), A.newlabel("GOT")
    A("s_load_dwordx2 s[4:5], s[0:1], 96")
    A("s_getreg_b32 s3, hwreg(HW_REG_XCC_ID, 0, 4)")
    A("v_readfirstlane_b32 s6, v0")
    A(f"v_mov_b32 v2, {lds_addr}")
    A("s_cmp_lg_u32 s6, 0"); A(f"s_cbranch_scc1 {sk}")
    A("s_mov_b64 exec, 1")
    A("s_mov_b32 s7, 0")
    A("v_mov_b32 v1, 1")
    A("s_waitcnt lgkmcnt(0)")
    A.label(tr)
    A("s_add_u32 s8, s3, s7"); A("s_and_b32 s8, s8, 7")
    A("s_lshl_b32 s9, s8, 5"); A("v_mov_b32 v3, s9")
    A("global_atomic_add v4, v3, v1, s[4:5] sc0 sc1")
    A("s_waitcnt vmcnt(0)")
    A("v_readfirstlane_b32 s9, v4")
    A(f"s_cmp_lt_u32 s9, {per}"); A(f"s_cbranch_scc1 {got}")
    A("s_add_u32 s7, s7, 1"); A("s_cmp_lt_u32 s7, 8"); A(f"s_cbranch_scc1 {tr}")
    A("s_mov_b32 s9, 0x1000")
    A.label(got)
    A("s_lshl_b32 s9, s9, 3"); A("s_add_u32 s9, s9, s8")
    A("v_mov_b32 v1, s9")
    A("ds_write_b32 v2, v1")
    A("s_mov_b64 exec, -1")
    A.label(sk)
    A("s_waitcnt lgkmcnt(0)"); A("s_barrier")
    A("ds_read_b32 v1, v2")
    A("s_waitcnt lgkmcnt(0)")
    A("v_readfirstlane_b32 s2, v1")
    A("s_barrier")
LID = [False]
UID = [0]
def simple_kernel(name, emit, grid, lds, stamp=False, nst=8, wg=17, vgpr=512, accum=256):
    A = Asm(); UID[0] += 100000; A.uid = UID[0]
    kernel_begin(A, name)
    e = A.newlabel("END")
    A(f"s_cmp_ge_u32 s2, {grid}"); A(f"s_cbranch_scc1 {e}")
    if LID[0]:
        emit_lid(A, grid // 8)
        A(f"s_cmp_ge_u32 s2, {grid}"); A(f"s_cbranch_scc1 {e}")
        lds = max(lds, 64)
    if stamp:
        stamp_begin(A)
        for k in range(nst): A(f"s_mov_b64 s[{62+2*k}:{63+2*k}], 0") if False else None
    emit(A, mk_stamp(A) if stamp else None)
    A("s_waitcnt vmcnt(0)")
    if stamp: stamp_dump(A, nst, wg)
    A.label(e); A("s_endpgm")
    return A.text(), kernel_desc(name, vgpr=vgpr, accum=accum), (name, grid, 256, lds)
def emit_prefetch(A):
    mats = [(KA_CKV, 0x200000), (KA_WUK, 0x400000), (KA_WUV, 0x400000), (KA_W1, 0x80000), (KA_W2, 0x80000), (KA_W3, 0x1c0000), (KA_WQ, 0x400000), (KA_WO, 0x400000), (KA_W4, 0x1c0000)]
    for i, (ka, sz) in enumerate(mats): A(f"s_load_dwordx2 s[{44+2*i}:{45+2*i}], s[0:1], {ka}")
    A("v_lshlrev_b32 v58, 4, v0")
    A("s_lshl_b32 s70, s2, 14")
    A("v_and_b32 v59, 63, v0"); A("v_lshlrev_b32 v59, 4, v59")
    A("v_lshrrev_b32 v57, 6, v0"); A("v_lshlrev_b32 v57, 12, v57")
    A("v_add_u32 v58, v57, v59"); A("v_add_u32 v58, s70, v58")
    A("s_waitcnt lgkmcnt(0)")
    for i, (ka, sz) in enumerate(mats):
        A(f"s_mov_b32 s72, s{44+2*i}"); A(f"s_mov_b32 s73, s{45+2*i}"); A(f"s_mov_b32 s74, {hex(sz)}"); A("s_mov_b32 s75, 0x00020000")
        for k in range(4): A(f"buffer_load_dwordx4 v[60:63], v58, s[72:75], 0 offen offset:{k*1024}")
def k_lnp(): return simple_kernel("ln_kernel", lambda A, st: (emit_ln(A), emit_prefetch(A)), 256, 0, False, vgpr=64, accum=64)
def k_pln(): return simple_kernel("ln_kernel", lambda A, st: (emit_prefetch(A), emit_ln(A)), 256, 0, False, vgpr=64, accum=64)
def k_kv(stamp=False): return simple_kernel("kv_kernel", lambda A, st: emit_kv(A, stamp=st), 256, 131072, stamp)
def k_ln(stamp=False): return simple_kernel("ln_kernel", lambda A, st: emit_ln(A), 256, 0, stamp, vgpr=64, accum=64)
def k_attn(stamp=False, wg=17, nst=7): return simple_kernel("attn_kernel", lambda A, st: emit_attn(A, stamp=st), 256, 163840, stamp, nst=nst, wg=wg)
def k_g1(): return simple_kernel("g1_kernel", lambda A, st: emit_g12(A, 1), 256, 65536)
def k_g2(): return simple_kernel("g2_kernel", lambda A, st: emit_g12(A, 2), 256, 65536)
def k_g3(): return simple_kernel("g3_kernel", lambda A, st: emit_g3(A), 224, 131072)
def k_fin(): return simple_kernel("fin_kernel", lambda A, st: emit_final(A), 256, 131072)
def k_attn_plain(): return simple_kernel("attn_kernel", lambda A, st: emit_attn(A), 256, 163840)
def k_attn2(stamp=False, wg=17, nst=6): return simple_kernel("attn_kernel", lambda A, st: emit_attn2(A, stamp=st), 256, 163840, stamp, nst=nst, wg=wg)
def write(parts, outp):
    open(outp, "w").write(file_text([p[2] for p in parts], "".join(p[0] for p in parts), [p[1] for p in parts], HEADER))
if __name__ == "__main__":
    what = sys.argv[1]; outp = sys.argv[2]
    parts = []
    if what.endswith("x"): LID[0] = True; what = what[:-1]
    if what == "kv": parts = [k_kv(True)]
    if what == "attn": parts = [k_ln(), k_kv(), k_attn(True)]
    if what == "attnf":
        import attn; attn.FINE = True
        parts = [k_ln(), k_kv(), k_attn(True, nst=14)]
    if what == "bpath": parts = [k_ln(), k_g1(), k_g2(), k_g3()]
    if what == "full": parts = [k_ln(), k_kv(), k_g1(), k_g2(), k_g3(), k_attn_plain(), k_fin()]
    if what == "attn2": parts = [k_ln(), k_kv(), k_attn2(True)]
    if what == "full2": parts = [k_ln(), k_kv(), k_g1(), k_g2(), k_g3(), k_attn2(False), k_fin()]
    if what == "full2p": parts = [k_lnp(), k_kv(), k_g1(), k_g2(), k_g3(), k_attn2(False), k_fin()]
    if what == "full2q": parts = [k_pln(), k_kv(), k_g1(), k_g2(), k_g3(), k_attn2(False), k_fin()]
    write(parts, outp)
```

```python
from common import *
from bpath import vr, ar, half_sum, f2h
import math

def emit_final(A, wgid="s2", sc1=False, stamp=None):
    st = stamp if stamp else (lambda k: None)
    C = " sc1" if sc1 else ""
    load_ptr(A, 40, KA_WO); load_ptr(A, 42, KA_WS); load_ptr(A, 44, KA_W4); load_ptr(A, 46, KA_X); load_ptr(A, 48, KA_OUT)
    S_W, S_TB, S_NB, S_T = 24, 25, 26, 27
    S_SW, S_SB, S_M0 = 28, 29, 30
    BRING, ACC, AF = 0, 128, 192
    SAVE = 128
    D = 7; NS = 46
    A("v_lshrrev_b32 v10, 6, v0")
    A("v_and_b32 v11, 63, v0")
    A(f"v_readfirstlane_b32 s{S_W}, v10")
    A(f"s_and_b32 s{S_TB}, {wgid}, 7"); A(f"s_lshr_b32 s{S_T}, {wgid}, 6"); A(f"s_and_b32 s{S_T}, s{S_T}, 3")
    A(f"s_lshl_b32 s{S_T}, s{S_T}, 3"); A(f"s_add_u32 s{S_TB}, s{S_TB}, s{S_T}")
    A(f"s_lshr_b32 s{S_NB}, {wgid}, 3"); A(f"s_and_b32 s{S_NB}, s{S_NB}, 7")
    A("v_and_b32 v12, 15, v11")
    A("v_lshrrev_b32 v13, 5, v11")
    A("v_lshlrev_b32 v14, 8, v13")
    A("v_lshl_add_u32 v14, v12, 4, v14")
    A("v_bfe_u32 v15, v11, 4, 1")
    A(f"s_lshl_b32 s{S_T}, s{S_TB}, 2")
    A(f"v_add_u32 v15, s{S_T}, v15")
    A("v_lshl_add_u32 v2, v15, 17, v14")
    A("v_add_u32 v3, 0x40000, v2")
    A("s_mov_b32 s31, 57344")
    A("v_mul_lo_u32 v4, v15, s31")
    A("v_add_u32 v4, v4, v14")
    A("v_add_u32 v5, 114688, v4")
    A(f"s_cmp_eq_u32 s{S_W}, 3")
    A("s_cselect_b64 vcc, -1, 0")
    A("v_cndmask_b32 v6, v2, v4, vcc")
    A("v_cndmask_b32 v7, v3, v5, vcc")
    A("v_lshrrev_b32 v14, 3, v11")
    A("v_lshlrev_b32 v14, 10, v14")
    A("v_bfe_u32 v15, v11, 4, 1")
    A("v_lshlrev_b32 v15, 2, v15")
    A("v_and_b32 v16, 7, v11")
    A("v_xor_b32 v15, v15, v16")
    A("v_lshl_add_u32 v16, v15, 4, v14")
    for i in range(1, 4): A(f"v_add_u32 v{16+i}, {i*7168}, v16")
    A("v_lshrrev_b32 v15, 4, v11")
    A("v_lshrrev_b32 v20, 1, v15")
    A("v_lshlrev_b32 v20, 2, v20")
    A("v_lshrrev_b32 v21, 2, v12")
    A("v_add_u32 v20, v20, v21")
    A("v_and_b32 v15, 1, v15")
    A("v_lshlrev_b32 v15, 1, v15")
    A("v_and_b32 v21, 1, v12")
    A("v_add_u32 v15, v15, v21")
    A("v_bfe_u32 v21, v12, 3, 1")
    A("v_lshlrev_b32 v21, 2, v21")
    A("v_xor_b32 v15, v15, v21")
    A("v_lshlrev_b32 v15, 4, v15")
    A("v_lshl_add_u32 v8, v20, 7, v15")
    A("v_bfe_u32 v21, v12, 1, 1")
    A("v_lshl_add_u32 v8, v21, 3, v8")
    A(f"s_lshl_b32 s{S_M0}, s{S_W}, 15")
    A(f"v_add_u32 v8, s{S_M0}, v8")
    A("v_xor_b32 v9, 64, v8")
    A("s_waitcnt lgkmcnt(0)")
    A(f"s_lshl_b32 s{S_T}, s{S_NB}, 7")
    A(f"s_add_u32 s4, s40, s{S_T}"); A("s_addc_u32 s5, s41, 0"); A(f"s_sub_u32 s6, 0x400000, s{S_T}"); A("s_mov_b32 s7, 0x00020000")
    A(f"s_add_u32 s12, s44, s{S_T}"); A("s_addc_u32 s13, s45, 0"); A(f"s_sub_u32 s14, {1792*1024}, s{S_T}"); A("s_mov_b32 s15, 0x00020000")
    srd_off(A, 8, 42, WS_CTX, 0x1000000)
    srd_off(A, 16, 42, WS_H3F, 128*57344)
    srd_off(A, 20, 42, WS_X1F, 0x200000)
    A(f"s_mul_i32 s{S_T}, s{S_W}, 46")
    A(f"s_cmp_eq_u32 s{S_W}, 3")
    A(f"s_cselect_b32 s{S_T}, 10, s{S_T}")
    for k in range(4):
        A(f"s_cselect_b32 s{4+k}, s{12+k}, s{4+k}")
        A(f"s_cselect_b32 s{8+k}, s{16+k}, s{8+k}")
    A(f"s_lshl_b32 s{S_SW}, s{S_T}, 15")
    A(f"s_lshl_b32 s{S_SB}, s{S_T}, 10")
    def loads(n):
        sl = n & 7
        R = []
        if n == 36:
            R.append(f"s_cmp_eq_u32 s{S_W}, 2")
            for k in range(4):
                R.append(f"s_cselect_b32 s{4+k}, s{12+k}, s{4+k}")
                R.append(f"s_cselect_b32 s{8+k}, s{16+k}, s{8+k}")
            R.append(f"s_cselect_b32 s{S_SW}, 0, s{S_SW}")
            R.append(f"s_cselect_b32 s{S_SB}, 0, s{S_SB}")
            R.append("s_cselect_b64 vcc, -1, 0")
            R.append("v_cndmask_b32 v6, v6, v4, vcc")
            R.append("v_cndmask_b32 v7, v7, v5, vcc")
            R.append("s_nop 4")
        R.append(f"s_add_u32 m0, s{S_M0}, {sl*4096}")
        R.append("s_nop 0")
        for i in range(4):
            R.append(f"buffer_load_dwordx4 v{16+i}, s[4:7], s{S_SW} offen offset:{i*1024} lds")
        for b in range(2):
            for t in range(2):
                R.append(f"buffer_load_dwordx4 {ar(BRING + 16*sl + 8*b + 4*t)}, v{6+b}, s[8:11], s{S_SB} offen offset:{512*t}" + C)
        R.append(f"s_add_u32 s{S_SW}, s{S_SW}, 32768")
        R.append(f"s_add_u32 s{S_SB}, s{S_SB}, 1024")
        return R
    def reads(n):
        sl = n & 7; p = n & 1
        R = []
        for t in range(2):
            for nb in range(2):
                for rd in range(2):
                    b = AF + 16*p + 8*t + 4*nb + 2*rd
                    R.append(f"ds_read_b64_tr_b16 a[{b}:{b+1}], v{8+nb} offset:{sl*4096 + t*2048 + rd*1024}")
        return R
    st(0)
    for n in range(D):
        for t in loads(n): A(t)
    A(f"s_and_b32 s{S_T}, s{S_W}, 1"); A(f"s_lshl_b32 s{S_T}, s{S_T}, 5")
    A(f"s_lshl_b32 s33, s{S_TB}, 6"); A(f"s_add_u32 s{S_T}, s{S_T}, s33")
    A("v_and_b32 v20, 31, v11")
    A(f"v_add_u32 v20, s{S_T}, v20")
    A("v_lshrrev_b32 v21, 4, v20")
    A("v_lshlrev_b32 v21, 14, v21")
    A("v_and_b32 v22, 15, v20")
    A("v_lshl_add_u32 v21, v22, 4, v21")
    A("v_lshl_add_u32 v22, v13, 8, v21")
    A(f"s_lshl_b32 s32, s{S_NB}, 1"); A(f"s_lshr_b32 s33, s{S_W}, 1"); A("s_add_u32 s32, s32, s33")
    A("s_lshl_b32 s34, s32, 6")
    A("s_lshl_b32 s32, s32, 10")
    A("v_lshlrev_b32 v23, 10, v20")
    A("v_lshl_add_u32 v23, v13, 4, v23")
    A(f"s_waitcnt vmcnt({8*(D-1)})")
    st(1)
    for t in reads(0): A(t)
    for n in range(NS):
        if n == 23: st(2)
        p = n & 1; sl = n & 7
        rem = min(n + D - 1, NS - 1) - (n + 1)
        if n + 1 < NS: A(f"s_waitcnt vmcnt({8*rem}) lgkmcnt(0)")
        else: A("s_waitcnt lgkmcnt(0)")
        if n == 36:
            lsv, lsr = A.newlabel("SV"), A.newlabel("SR")
            A(f"s_cmp_eq_u32 s{S_W}, 2"); A(f"s_cbranch_scc0 {lsr}")
            A("s_nop 7"); A("s_nop 7")
            for r in range(64): A(f"v_accvgpr_read_b32 v{SAVE+r}, a{ACC+r}")
            for r in range(64): A(f"v_accvgpr_write_b32 a{ACC+r}, 0")
            A("s_nop 1")
            A.label(lsr)
        M = []
        for t in range(2):
            for nb in range(2):
                for b in range(2):
                    q = 2*nb + b
                    cc = "0" if (n == 0 and t == 0) else ar(ACC+16*q, 16)
                    M.append(f"v_mfma_f32_32x32x16_bf16 {ar(ACC+16*q,16)}, {ar(AF+16*p+8*t+4*nb)}, {ar(BRING+16*sl+8*b+4*t)}, {cc}")
        F = []
        if n + 1 < NS:
            for k, t in enumerate(reads(n+1)): F.append((k >> 1, t))
        if n + D < NS:
            L = loads(n + D)
            for k, t in enumerate(L): F.append((min(7, 1 + (k*7)//len(L)), t))
        interleave(A, M, F)
    st(3)
    A("s_mov_b32 s8, s46"); A("s_mov_b32 s9, s47"); A("s_mov_b32 s10, 0x200000"); A("s_mov_b32 s11, 0x00020000")
    A("s_mov_b32 s12, s48"); A("s_mov_b32 s13, s49"); A("s_mov_b32 s14, 0x200000"); A("s_mov_b32 s15, 0x00020000")
    A(f"buffer_load_dwordx4 {vr(32)}, v22, s[20:23], s32 offen" + C)
    A(f"buffer_load_dwordx4 {vr(36)}, v22, s[20:23], s32 offen offset:512" + C)
    A(f"buffer_load_dwordx4 {vr(40)}, v23, s[8:11], s34 offen")
    A(f"buffer_load_dwordx4 {vr(44)}, v23, s[8:11], s34 offen offset:32")
    A("v_lshlrev_b32 v24, 4, v11")
    A("s_barrier")
    A(f"s_cmp_ge_u32 s{S_W}, 2"); A(f"s_cselect_b32 s{S_T}, 1, 0"); A(f"s_add_u32 s{S_T}, s{S_T}, s{S_W}")
    A(f"s_lshl_b32 s{S_T}, s{S_T}, 14")
    A(f"v_add_u32 v25, s{S_T}, v24")
    A("s_nop 7"); A("s_nop 3")
    for q in range(4):
        for i in range(4):
            A(f"ds_write_b128 v25, {ar(ACC+16*q+4*i)} offset:{q*4096 + i*1024}")
    lsk = A.newlabel("SK")
    A(f"s_cmp_eq_u32 s{S_W}, 2"); A(f"s_cbranch_scc0 {lsk}")
    for q in range(4):
        for i in range(4):
            A(f"ds_write_b128 v24, {vr(SAVE+16*q+4*i)} offset:{2*16384 + q*4096 + i*1024}")
    A.label(lsk)
    A("s_waitcnt lgkmcnt(0)")
    A("s_barrier")
    A(f"s_lshl_b32 s{S_T}, s{S_W}, 12")
    A(f"v_add_u32 v25, s{S_T}, v24")
    A("v_add_u32 v26, 65536, v25")
    for sl in range(5):
        for i in range(4):
            if sl < 4: A(f"ds_read_b128 {vr(64+16*sl+4*i)}, v25 offset:{sl*16384 + i*1024}")
            else: A(f"ds_read_b128 {vr(64+16*sl+4*i)}, v26 offset:{i*1024}")
    A("s_waitcnt vmcnt(0) lgkmcnt(0)")
    st(4)
    S, H = 64, 112
    for r in range(16):
        A(f"v_add_f32 v{S+r}, v{S+r}, v{80+r}")
        A(f"v_add_f32 v{H+r}, v{H+r}, v{128+r}")
    for r in range(16): A(f"v_add_f32 v{S+r}, v{S+r}, v{96+r}")
    for r in range(8):
        A(f"v_lshlrev_b32 v{80+2*r}, 16, v{32+r}")
        A(f"v_and_b32 v{81+2*r}, 0xffff0000, v{32+r}")
    for r in range(16): A(f"v_add_f32 v{H+r}, v{H+r}, v{80+r}")
    A(f"v_mov_b32 v30, {f2h(-math.log2(math.e))}")
    for r in range(16): A(f"v_mul_f32 v{80+r}, v30, v{H+r}")
    for r in range(16): A(f"v_exp_f32 v{80+r}, v{80+r}")
    A("s_nop 0")
    for r in range(16): A(f"v_add_f32 v{80+r}, 1.0, v{80+r}")
    for r in range(16): A(f"v_rcp_f32 v{80+r}, v{80+r}")
    A("s_nop 0")
    for r in range(16): A(f"v_mul_f32 v{H+r}, v{H+r}, v{80+r}")
    for r in range(8):
        A(f"v_lshlrev_b32 v{80+2*r}, 16, v{40+r}")
        A(f"v_and_b32 v{81+2*r}, 0xffff0000, v{40+r}")
    for r in range(16): A(f"v_fma_f32 v{S+r}, v{S+r}, v{H+r}, v{80+r}")
    for r in range(8): A(f"v_cvt_pk_bf16_f32 v{48+r}, v{S+2*r}, v{S+2*r+1}")
    A(f"buffer_store_dwordx4 {vr(48)}, v23, s[12:15], s34 offen")
    A(f"buffer_store_dwordx4 {vr(52)}, v23, s[12:15], s34 offen offset:32")
```

```python
from common import *
from kv import acc, accr, tfr, wfr, wfr_half, LDS_T, LDS_W
from ln import unpack, ln16
from bpath import GC0, GC1, gelu_block, vr, ar

PF1, PF2 = 36, 48
SRD_W1, SRD_H, SRD_XN2, SRD_DBG = 52, 56, 80, 84
S_M0G, S_GT, S_POLL, S_GOUT = 60, 61, 88, 90
V_B, V_ONE, V_SIG, V_PF, V_PFD, V_TR0, V_TR1, V_WD, V_POLL = 1, 21, 22, 23, 24, 28, 29, 30, 31
G1BASE = [0, 16384, 65536, 81920]
def gB(f): return 160 + 4*f if f < 24 else 32 + 4*(f - 24)

def emit_k1(A, wgid="s2", stamp=None, npoll=1 << 16):
    st = stamp if stamp else (lambda k: None)
    ool = []
    load_ptr(A, 40, KA_CKV); load_ptr(A, 42, KA_WUK); load_ptr(A, 44, KA_WUV); load_ptr(A, 46, KA_WS)
    load_ptr(A, PF1, KA_X); load_ptr(A, SRD_W1, KA_W1); load_ptr(A, SRD_DBG, KA_DBG)
    A("v_lshrrev_b32 v1, 6, v0")
    A("v_and_b32 v2, 63, v0")
    A("v_readfirstlane_b32 s16, v1")
    R = 32
    A(f"v_lshrrev_b32 v{R+1}, 5, v0")
    A(f"v_and_b32 v{R+2}, 31, v0")
    A(f"s_lshl_b32 s19, {wgid}, 3")
    A(f"v_add_u32 v{R+1}, s19, v{R+1}")
    A(f"v_lshlrev_b32 v{R+3}, 10, v{R+1}")
    A(f"v_lshl_add_u32 v{R+3}, v{R+2}, 4, v{R+3}")
    A(f"v_lshrrev_b32 v{R+4}, 4, v{R+1}")
    A(f"v_lshlrev_b32 v{R+4}, 14, v{R+4}")
    A(f"v_lshrrev_b32 v{R+5}, 2, v{R+2}")
    A(f"v_lshl_add_u32 v{R+4}, v{R+5}, 10, v{R+4}")
    A(f"v_and_b32 v{R+5}, 3, v{R+2}")
    A(f"v_and_b32 v{R+6}, 15, v{R+1}")
    A(f"v_lshl_add_u32 v{R+5}, v{R+5}, 4, v{R+6}")
    A(f"v_lshl_add_u32 v{R+4}, v{R+5}, 4, v{R+4}")
    A(f"v_add_u32 v{R+5}, 8192, v{R+4}")
    A(f"s_and_b32 s17, {wgid}, 7")
    A(f"s_lshr_b32 s18, {wgid}, 3")
    A("s_and_b32 s18, s18, 3")
    A("s_lshl_b32 s18, s18, 3")
    A("s_add_u32 s17, s17, s18")
    A(f"s_lshr_b32 s18, {wgid}, 5")
    A("s_waitcnt lgkmcnt(0)")
    A(f"s_mov_b32 s{PF1+2}, 0x200000"); A(f"s_mov_b32 s{PF1+3}, 0x00020000")
    A(f"buffer_load_dwordx4 v[{R+8}:{R+11}], v{R+3}, s[{PF1}:{PF1+3}], 0 offen")
    A(f"buffer_load_dwordx4 v[{R+12}:{R+15}], v{R+3}, s[{PF1}:{PF1+3}], 0 offen offset:512")
    A("s_lshl_b32 s19, s18, 18")
    A("s_add_u32 s4, s40, s19"); A("s_addc_u32 s5, s41, 0")
    A("s_mov_b32 s6, 0x40000"); A("s_mov_b32 s7, 0x00020000")
    A("s_cmp_lt_u32 s16, 2")
    A("s_cselect_b32 s8, s42, s44"); A("s_cselect_b32 s9, s43, s45")
    A("s_mov_b32 s10, 0x400000"); A("s_mov_b32 s11, 0x00020000")
    A("s_lshl_b32 s19, s17, 20")
    A("s_lshl_b32 s20, s18, 17")
    A("s_add_u32 s19, s19, s20")
    A("s_and_b32 s20, s16, 1")
    A("s_lshl_b32 s20, s20, 16")
    A("s_add_u32 s19, s19, s20")
    A("s_add_u32 s12, s46, s19"); A("s_addc_u32 s13, s47, 0")
    A("s_mov_b32 s14, 0x10000"); A("s_mov_b32 s15, 0x00020000")
    for q in range(4): A(f"s_mov_b32 s{20+q}, {q*16384}")
    for x in range(8):
        ks, PI = x >> 2, x & 3
        A(f"s_mov_b32 s{24+x}, {(ks*32 + 16*(PI>>1) + 4*(PI&1))*8192}")
    A("s_lshl_b32 s32, s16, 13")
    A(f"s_add_u32 s33, s32, {LDS_W}")
    A("v_lshrrev_b32 v5, 3, v2")
    A("v_and_b32 v6, 7, v2")
    A("v_lshrrev_b32 v7, 4, v2")
    A("s_lshl_b32 s34, s16, 16")
    A("v_lshlrev_b32 v3, 10, v5")
    A("v_add_u32 v3, s34, v3")
    A("v_xor_b32 v8, v6, v7")
    A("v_lshl_add_u32 v4, v8, 4, v3")
    A("v_xor_b32 v8, 4, v8")
    A("v_lshl_add_u32 v8, v8, 4, v3")
    A("v_add_u32 v8, 8192, v8")
    A("v_mov_b32 v3, v4")
    A("v_mov_b32 v4, v8")
    A("v_and_b32 v8, 3, v5")
    A("v_lshrrev_b32 v9, 2, v5")
    A("v_lshl_add_u32 v8, v9, 3, v8")
    A("v_lshlrev_b32 v8, 13, v8")
    A("v_lshrrev_b32 v9, 1, v5")
    A("v_and_b32 v10, 1, v9")
    A("v_lshrrev_b32 v11, 1, v9")
    A("v_lshl_add_u32 v10, v11, 2, v10")
    A("v_lshlrev_b32 v11, 1, v9")
    A("s_cmp_lt_u32 s16, 2")
    A("s_cselect_b64 vcc, -1, 0")
    A("v_cndmask_b32 v10, v11, v10, vcc")
    A("v_xor_b32 v10, v6, v10")
    A("v_lshl_add_u32 v9, v10, 4, v8")
    A("s_lshl_b32 s34, s17, 8")
    A("s_and_b32 s35, s16, 1")
    A("s_lshl_b32 s35, s35, 7")
    A("s_add_u32 s34, s34, s35")
    A("v_add_u32 v9, s34, v9")

    def dma_stage(stg):
        buf = stg & 1
        G = []
        for p in range(8):
            G.append((f"s_add_u32 m0, s32, {buf*32768 + p*1024}",
                      f"buffer_load_dwordx4 v{3+(p&1)}, s[4:7], s{20+(p>>1)} offen lds"))
        for x in range(8):
            G.append((f"s_add_u32 m0, s33, {buf*32768 + x*1024}",
                      f"buffer_load_dwordx4 v9, s[8:11], s{24+x} offen lds"))
        G2 = []
        for p in range(8):
            G2.append(G[p]); G2.append(G[8+p])
        return G2
    def bump():
        return ["s_add_u32 s4, s4, 128", "s_addc_u32 s5, s5, 0", "s_add_u32 s8, s8, 524288", "s_addc_u32 s9, s9, 0"]
    for stg in range(2):
        for (m, d) in dma_stage(stg):
            A(m); A("s_nop 0"); A(d)
        for t in bump(): A(t)
    A(f"v_lshlrev_b32 v{V_PF}, 4, v0")
    def pf(srd, share_sh, n, tmp="s34"):
        L = []
        for i in range(n):
            L.append([f"s_lshl_b32 {tmp}, {wgid}, {share_sh}"] + ([f"s_add_u32 {tmp}, {tmp}, {i*4096}"] if i else []) +
                     [f"buffer_load_dwordx4 v[{V_PFD}:{V_PFD+3}], v{V_PF}, s[{srd}:{srd+3}], {tmp} offen"])
        return L
    for (p, sz, sh, n) in ((40, 0x200000, 13, 2), (42, 0x400000, 14, 4), (44, 0x400000, 14, 4)):
        A(f"s_mov_b32 s{PF2}, s{p}"); A(f"s_mov_b32 s{PF2+1}, s{p+1}"); A(f"s_mov_b32 s{PF2+2}, {hex(sz)}"); A(f"s_mov_b32 s{PF2+3}, 0x00020000")
        for g in pf(PF2, sh, n):
            for t in g: A(t)
    NPF0 = 10
    A("v_and_b32 v12, 15, v2")
    A("v_lshrrev_b32 v13, 1, v12")
    A("v_xor_b32 v13, v7, v13")
    A("v_lshlrev_b32 v10, 7, v12")
    A("v_lshl_add_u32 v10, v13, 4, v10")
    A("s_and_b32 s34, s16, 1")
    A("s_lshl_b32 s34, s34, 14")
    A("v_add_u32 v10, s34, v10")
    A("v_xor_b32 v11, 64, v10")
    A("v_lshrrev_b32 v13, 2, v12")
    A("v_and_b32 v14, 1, v7")
    A("v_lshl_add_u32 v13, v14, 2, v13")
    A("v_lshrrev_b32 v14, 1, v7")
    A("v_lshlrev_b32 v14, 11, v14")
    A("v_lshl_add_u32 v14, v13, 7, v14")
    A("v_and_b32 v15, 1, v12")
    A("v_lshl_add_u32 v14, v15, 3, v14")
    A("s_lshr_b32 s34, s16, 1")
    A("s_lshl_b32 s34, s34, 14")
    A(f"s_add_u32 s34, s34, {LDS_W}")
    A("v_add_u32 v14, s34, v14")
    A("v_lshrrev_b32 v13, 1, v13")
    A("v_and_b32 v15, 1, v13")
    A("v_lshrrev_b32 v16, 1, v13")
    A("v_lshl_add_u32 v15, v16, 2, v15")
    A("v_lshlrev_b32 v16, 1, v13")
    A("v_bfe_u32 v17, v12, 1, 1")
    A("v_lshlrev_b32 v18, 1, v17")
    A("v_xor_b32 v15, v15, v18")
    A("v_xor_b32 v16, v16, v17")
    A("s_cmp_lt_u32 s16, 2")
    A("s_cselect_b64 vcc, -1, 0")
    A("v_cndmask_b32 v15, v16, v15, vcc")
    A("s_cselect_b32 s34, 1, 2")
    A("s_cselect_b32 s35, 5, 6")
    A("v_lshl_add_u32 v5, v15, 4, v14")
    A("v_xor_b32 v16, s34, v15"); A("v_lshl_add_u32 v6, v16, 4, v14")
    A("v_xor_b32 v16, 4, v15");   A("v_lshl_add_u32 v7, v16, 4, v14")
    A("v_xor_b32 v16, s35, v15"); A("v_lshl_add_u32 v8, v16, 4, v14")
    T0, T1, T2 = 34, 35, 19
    A(f"s_and_b32 s{T0}, {wgid}, 7"); A(f"s_lshr_b32 s{T2}, {wgid}, 6"); A(f"s_and_b32 s{T2}, s{T2}, 3")
    A(f"s_lshl_b32 s{T2}, s{T2}, 3"); A(f"s_add_u32 s{T0}, s{T0}, s{T2}")
    A(f"s_lshr_b32 s{T1}, {wgid}, 3"); A(f"s_and_b32 s{T1}, s{T1}, 7")
    A(f"s_lshl_b32 s{S_POLL}, s{T0}, 3")
    A(f"s_lshl_b32 s{T2}, s{T0}, 6")
    A(f"s_lshr_b32 s{S_GT}, s16, 1"); A(f"s_lshl_b32 s{S_GT}, s{S_GT}, 5"); A(f"s_add_u32 s{T2}, s{T2}, s{S_GT}")
    A("v_and_b32 v12, 31, v2")
    A(f"v_add_u32 v12, s{T2}, v12")
    A("v_lshrrev_b32 v13, 5, v2")
    A("v_lshlrev_b32 v13, 8, v13")
    A("v_lshrrev_b32 v14, 4, v12"); A("v_lshlrev_b32 v14, 14, v14")
    A("v_and_b32 v15, 15, v12"); A("v_lshl_add_u32 v14, v15, 4, v14")
    A(f"v_add_u32 v{V_B}, v14, v13")
    A("v_lshrrev_b32 v14, 3, v2"); A("v_lshlrev_b32 v14, 10, v14")
    A("v_bfe_u32 v15, v2, 4, 1"); A("v_lshlrev_b32 v15, 2, v15")
    A("v_and_b32 v16, 7, v2"); A("v_xor_b32 v15, v15, v16")
    A(f"v_lshl_add_u32 v{V_WD}, v15, 4, v14")
    A(f"s_lshl_b32 s{T2}, s16, 15"); A(f"v_add_u32 v{V_WD}, s{T2}, v{V_WD}")
    A("v_and_b32 v14, 15, v2"); A("v_lshrrev_b32 v15, 4, v2")
    A("v_lshrrev_b32 v16, 1, v15"); A("v_lshlrev_b32 v16, 3, v16")
    A("v_lshrrev_b32 v17, 2, v14"); A("v_add_u32 v16, v16, v17")
    A("v_and_b32 v15, 1, v15"); A("v_lshlrev_b32 v15, 1, v15")
    A("v_and_b32 v17, 1, v14"); A("v_add_u32 v15, v15, v17")
    A(f"s_and_b32 s{T2}, s16, 1"); A(f"s_lshl_b32 s{T2}, s{T2}, 2"); A(f"v_add_u32 v15, s{T2}, v15")
    A("v_bfe_u32 v17, v14, 3, 1"); A("v_lshlrev_b32 v17, 2, v17"); A("v_xor_b32 v15, v15, v17")
    A("v_lshlrev_b32 v15, 4, v15")
    A(f"v_lshl_add_u32 v{V_TR0}, v16, 7, v15")
    A("v_bfe_u32 v17, v14, 1, 1")
    A(f"v_lshl_add_u32 v{V_TR0}, v17, 3, v{V_TR0}")
    A(f"v_add_u32 v{V_TR1}, 0x10000, v{V_TR0}")
    A(f"s_lshl_b32 s{T2}, s{T1}, 7")
    A(f"s_add_u32 s{SRD_W1}, s{SRD_W1}, s{T2}"); A(f"s_addc_u32 s{SRD_W1+1}, s{SRD_W1+1}, 0")
    A(f"s_sub_u32 s{SRD_W1+2}, 0x80000, s{T2}"); A(f"s_mov_b32 s{SRD_W1+3}, 0x00020000")
    srd_off(A, SRD_H, 46, WS_H, 0x200000)
    srd_off(A, SRD_XN2, 46, WS_XN2F, 0x200000)
    srd_off(A, PF2, 46, WS_XNF, 0x200000)
    A(f"s_mov_b32 s{SRD_DBG+2}, 256"); A(f"s_mov_b32 s{SRD_DBG+3}, 0x00020000")
    A(f"s_lshl_b32 s{S_M0G}, s16, 12")
    A(f"s_lshl_b32 s{S_GOUT}, s{T1}, 1"); A(f"s_and_b32 s{T2}, s16, 1"); A(f"s_add_u32 s{S_GOUT}, s{S_GOUT}, s{T2}")
    A(f"s_lshl_b32 s{S_GOUT}, s{S_GOUT}, 10")
    A(f"s_lshr_b32 s{T2}, {wgid}, 3"); A(f"s_lshl_b32 s{T2}, s{T2}, 3")
    A(f"v_mov_b32 v{V_SIG}, s{T2}"); A("v_bfrev_b32 v12, 1")
    A("v_cmp_eq_u32 vcc, 0, v0"); A("s_nop 1")
    A(f"v_cndmask_b32 v{V_SIG}, v12, v{V_SIG}, vcc")
    A(f"v_mov_b32 v{V_ONE}, 1")
    A(f"s_waitcnt vmcnt({32 + NPF0})")
    unpack(A, R+16, R+8, 8)
    ln16(A, R+16, R+32, R+6, R+7, None)
    A(f"buffer_store_dwordx4 v[{R+32}:{R+35}], v{R+4}, s[{PF2}:{PF2+3}], 0 offen sc1")
    A(f"buffer_store_dwordx4 v[{R+36}:{R+39}], v{R+5}, s[{PF2}:{PF2+3}], 0 offen sc1")
    unpack(A, R+16, R+32, 8)
    ln16(A, R+16, R+40, R+6, R+7, None)
    A(f"buffer_store_dwordx4 v[{R+40}:{R+43}], v{R+4}, s[{SRD_XN2}:{SRD_XN2+3}], 0 offen sc1")
    A(f"buffer_store_dwordx4 v[{R+44}:{R+47}], v{R+5}, s[{SRD_XN2}:{SRD_XN2+3}], 0 offen sc1")
    NLN = 4

    def reads(n, isK):
        p = n & 1; stg = n >> 1; ks = n & 1; buf = stg & 1
        Rr = []
        for i in range(8):
            if isK:
                ip, u = i >> 1, i & 1
                ng = ip >> 1; var = 2*(ip & 1) + u
            else:
                ng = i >> 2; var = i & 3
            for rd in range(2):
                off = buf*32768 + (ng*8 + ks*4 + rd)*1024
                Rr.append(f"ds_read_b64_tr_b16 {wfr_half(p,i,rd)}, v{5+var} offset:{off}")
            Rr.append(f"ds_read_b128 {tfr(p,i)}, v{10+ks} offset:{buf*32768 + i*2048}")
        return Rr
    PLAN = {1: [(KA_W1, 0x80000, 12, 1, 0), (KA_W2, 0x80000, 12, 1, 0)],
            3: [(KA_WQ, 0x400000, 14, 2, 0)], 5: [(KA_WQ, 0x400000, 14, 2, 2), (KA_W3, 0x1c0000, 13, 1, 0)],
            7: [(KA_W3, 0x1c0000, 13, 1, 1), (KA_W4, 0x1c0000, 13, 2, 0)],
            9: [(KA_WO, 0x400000, 14, 2, 0)], 11: [(KA_WO, 0x400000, 14, 2, 2)]}
    def npf(n): return sum(x[3] for x in PLAN.get(n, []))
    def r_tmp(k): return [5,6,7,8,9,10,11,13][k]

    def body(isK):
        st(0)
        A(f"s_waitcnt vmcnt({16 + NPF0 + NLN})")
        A("s_barrier")
        st(1)
        for t in reads(0, isK): A(t)
        young = NPF0 + NLN
        for n in range(16):
            p = n & 1
            M = []
            for i in range(8):
                for j in range(8):
                    if isK: a_, b_ = wfr(p, i), tfr(p, j)
                    else:   a_, b_ = tfr(p, i), wfr(p, j)
                    c = "0" if n == 0 else acc(i, j)
                    M.append(f"v_mfma_f32_16x16x32_bf16 {acc(i,j)}, {a_}, {b_}, {c}")
            F = []
            if n & 1:
                A(f"s_waitcnt vmcnt({young if n < 15 else 0}) lgkmcnt(0)")
                if n < 15: A("s_barrier")
            else:
                A("s_waitcnt lgkmcnt(0)")
            if stamp and n in (1, 9): st({1: 2, 9: 3}[n])
            if n == 15:
                lsp, lok = A.newlabel("SPIN"), A.newlabel("OK")
                A(f"v_readfirstlane_b32 s{S_GT}, v{V_POLL}")
                A(f"s_cmp_ge_u32 s{S_GT}, 8"); A(f"s_cbranch_scc0 {lsp}")
                A.label(lok)
                ool.append((lsp, lok))
            if n < 15:
                for k, t in enumerate(reads(n+1, isK)): F.append((k, t))
            if (n & 1) == 0 and n + 1 in PLAN:
                for k, x in enumerate(PLAN[n+1]):
                    F.append((30 + k, f"s_load_dwordx2 s[{(PF1, PF2)[k]}:{(PF1, PF2)[k]+1}], s[0:1], {x[0]}"))
            if (n & 1) and (n >> 1) + 2 <= 7:
                G = dma_stage((n >> 1) + 2)
                for k, (m, d) in enumerate(G):
                    F.append((1 + 3*k, m)); F.append((2 + 3*k, d))
                for k, t in enumerate(bump()): F.append((52 + k, t))
                g = 50
                for k, x in enumerate(PLAN[n]):
                    srd = (PF1, PF2)[k]
                    F.append((g, f"s_mov_b32 s{srd+2}, {hex(x[1])}")); F.append((g, f"s_mov_b32 s{srd+3}, 0x00020000"))
                    for i in range(x[4], x[4] + x[3]):
                        F.append((g, f"s_lshl_b32 s34, {wgid}, {x[2]}"))
                        if i: F.append((g, f"s_add_u32 s34, s34, {i*4096}"))
                        F.append((g + 1, f"buffer_load_dwordx4 v[{V_PFD}:{V_PFD+3}], v{V_PF}, s[{srd}:{srd+3}], s34 offen"))
                        g += 3
                young = npf(n)
                if n == 3:
                    F.append((63, f"buffer_atomic_add v{V_ONE}, v{V_SIG}, s[{SRD_DBG}:{SRD_DBG+3}], 0 offen sc1"))
                    young += 1
            if n == 13:
                k = 0
                for c in range(4):
                    for i in range(4):
                        F.append((1 + 3*k, f"s_add_u32 m0, s{S_M0G}, {G1BASE[c] + i*1024}"))
                        F.append((1 + 3*k, f"s_mov_b32 s{S_GT}, {c*131072 + i*8192}"))
                        F.append((2 + 3*k, f"buffer_load_dwordx4 v{V_WD}, s[{SRD_W1}:{SRD_W1+3}], s{S_GT} offen lds"))
                        k += 1
                F.append((55, f"v_mov_b32 v{V_POLL}, 0"))
                F.append((57, f"buffer_load_dword v{V_POLL}, v{V_POLL}, s[{SRD_DBG}:{SRD_DBG+3}], s{S_POLL} offen sc1"))
            if n == 15:
                for f in range(32):
                    c, s_ = f >> 3, f & 7
                    if s_ == 0: F.append((2*f, f"s_mov_b32 s{S_GT}, {4096*c}"))
                    F.append((2*f + 1, f"buffer_load_dwordx4 {ar(gB(f))}, v{V_B}, s[{SRD_XN2}:{SRD_XN2+3}], s{S_GT} offen offset:{512*s_} sc1"))
            interleave(A, M, F)
        st(4)
        A("s_nop 7"); A("s_nop 7")
        A("v_lshrrev_b32 v13, 4, v2")
        A("v_lshrrev_b32 v14, 1, v13")
        A("v_and_b32 v15, 1, v13")
        if isK:
            A("v_bfe_u32 v16, v2, 3, 1")
            A("v_and_b32 v17, 7, v2")
            A("v_lshl_add_u32 v17, v16, 4, v17")
            A("v_lshl_add_u32 v17, v15, 5, v17")
            A("v_lshlrev_b32 v17, 4, v17")
            A("v_lshl_add_u32 v12, v14, 10, v17")
        else:
            A("v_and_b32 v17, 15, v2")
            A("v_lshl_add_u32 v17, v15, 5, v17")
            A("v_lshlrev_b32 v17, 4, v17")
            A("v_lshl_add_u32 v12, v14, 12, v17")
            A("v_add_u32 v12, 16384, v12")
        cnt = 0
        if isK: A("s_mov_b32 s35, 0x3e0293ee")
        for x in range(32):
            if isK:
                j, ip = x >> 2, x & 3
                srcs = [accr(2*ip, j, r) for r in range(4)] + [accr(2*ip+1, j, r) for r in range(4)]
                so = (j >> 2)*32768 + ((j >> 1) & 1)*8192 + (ip >> 1)*4096
                io = (ip & 1)*2048 + (j & 1)*128
            else:
                beta, nb = x >> 3, x & 7
                srcs = [accr(2*beta, nb, r) for r in range(4)] + [accr(2*beta+1, nb, r) for r in range(4)]
                so = (beta >> 1)*32768 + (beta & 1)*8192
                io = (nb >> 1)*1024 + (nb & 1)*256
            t = 16 + 4*(cnt % 3); cnt += 1
            vs = []
            for k, (ty, r) in enumerate(srcs):
                if ty == "a":
                    A(f"v_accvgpr_read_b32 v{r_tmp(k)}, a{r}")
                    vs.append(r_tmp(k))
                else:
                    vs.append(r)
            if isK:
                for k in range(8): A(f"v_mul_f32 v{vs[k]}, s35, v{vs[k]}")
            for k in range(4):
                A(f"v_cvt_pk_bf16_f32 v{t+k}, v{vs[2*k]}, v{vs[2*k+1]}")
            A(f"s_mov_b32 s34, {so}")
            A(f"buffer_store_dwordx4 v[{t}:{t+3}], v12, s[12:15], s34 offen offset:{io}")
    lv, le = A.newlabel("KVV"), A.newlabel("KVE")
    A("s_cmp_lt_u32 s16, 2")
    A(f"s_cbranch_scc0 {lv}")
    body(True)
    A(f"s_branch {le}")
    A.label(lv)
    body(False)
    A.label(le)
    st(5)
    A("s_waitcnt vmcnt(32)")
    A("s_barrier")
    ACC = 32
    def wr(c):
        L = []
        for s_ in range(8):
            for rd in range(2):
                b = 64 + 32*(c & 1) + 4*s_ + 2*rd
                base = G1BASE[c]
                L.append(f"ds_read_b64_tr_b16 a[{b}:{b+1}], v{V_TR0 if base < 65536 else V_TR1} offset:{(base & 65535) + s_*2048 + rd*512}")
        return L
    for t in wr(0): A(t)
    for c in range(4):
        M = []
        for s_ in range(8):
            cc = "0" if (c == 0 and s_ == 0) else vr(ACC, 16)
            M.append(f"v_mfma_f32_32x32x16_bf16 {vr(ACC,16)}, {ar(64+32*(c&1)+4*s_)}, {ar(gB(8*c+s_))}, {cc}")
        A("s_waitcnt lgkmcnt(0)")
        F = [(k >> 1, t) for k, t in enumerate(wr(c+1))] if c < 3 else []
        interleave(A, M, F)
    A(f"v_mov_b32 v48, {GC0}"); A(f"v_mov_b32 v49, {GC0}"); A(f"v_mov_b32 v50, {GC1}"); A(f"v_mov_b32 v51, {GC1}")
    A("s_nop 7"); A("s_nop 7")
    st(6)
    gelu_block(A, ACC, 16, 64, 48, 50)
    for r in range(8): A(f"v_cvt_pk_bf16_f32 v{52+r}, v{ACC+2*r}, v{ACC+2*r+1}")
    A(f"buffer_store_dwordx4 {vr(52)}, v{V_B}, s[{SRD_H}:{SRD_H+3}], s{S_GOUT} offen")
    A(f"buffer_store_dwordx4 {vr(56)}, v{V_B}, s[{SRD_H}:{SRD_H+3}], s{S_GOUT} offen offset:512")
    A("s_waitcnt vmcnt(0)")
    if ool:
        lend = A.newlabel("K1E")
        A(f"s_branch {lend}")
        for lsp, lok in ool:
            lp = A.newlabel("SP")
            A.label(lsp)
            A(f"s_mov_b32 s34, {npoll}")
            A.label(lp)
            A(f"v_mov_b32 v{V_POLL}, 0")
            A(f"buffer_load_dword v{V_POLL}, v{V_POLL}, s[{SRD_DBG}:{SRD_DBG+3}], s{S_POLL} offen sc1")
            A("s_waitcnt vmcnt(0)")
            A(f"v_readfirstlane_b32 s{S_GT}, v{V_POLL}")
            A(f"s_cmp_ge_u32 s{S_GT}, 8"); A(f"s_cbranch_scc1 {lok}")
            A("s_sleep 8")
            A("s_sub_u32 s34, s34, 1"); A("s_cmp_lg_u32 s34, 0"); A(f"s_cbranch_scc1 {lp}")
            A(f"s_branch {lok}")
        A.label(lend)
```

```python
import sys
from common import *
from kv import emit_kv
from ln import emit_ln
from attn import emit_attn
from bpath import emit_g12, emit_g3
from fin import emit_final
from attn2 import emit_attn2
from k1 import emit_k1
HEADER = open("../cdna_kernels/recurrent_scan__compressed_kv_cla__mixer_s_mlp__prompt.s.ref").read().split("; Override")[0]
def stamp_begin(A):
    A("s_memtime s[96:97]"); A("s_memrealtime s[98:99]"); A("v_lshrrev_b32 v1, 6, v0"); A("s_nop 1"); A("v_readfirstlane_b32 s91, v1")
def mk_stamp(A):
    def st(k):
        A(f"s_memtime s[{62+2*k}:{63+2*k}]")
    return st
def stamp_dump(A, n, wg=17):
    l = A.newlabel("ST")
    A("s_memtime s[92:93]"); A("s_memrealtime s[94:95]")
    A("s_load_dwordx2 s[8:9], s[0:1], 96")
    A("s_waitcnt lgkmcnt(0)")
    A(f"s_cmp_lg_u32 s2, {wg}"); A(f"s_cbranch_scc1 {l}")
    A("s_add_u32 s4, s8, 256"); A("s_addc_u32 s5, s9, 0"); A("s_mov_b32 s6, 256"); A("s_mov_b32 s7, 0x00020000")
    A("s_lshl_b32 s91, s91, 6"); A("v_mov_b32 v1, s91")
    A("v_mbcnt_lo_u32_b32 v4, -1, 0"); A("v_mbcnt_hi_u32_b32 v4, -1, v4")
    A("v_cmp_eq_u32 vcc, 0, v4"); A("s_and_saveexec_b64 s[12:13], vcc")
    for k in range(n):
        A(f"s_sub_u32 s10, s{62+2*k}, s96"); A("v_mov_b32 v2, s10")
        A(f"buffer_store_dword v2, v1, s[4:7], 0 offen offset:{4*k}")
    A("s_sub_u32 s92, s92, s96"); A("s_sub_u32 s94, s94, s98")
    A("v_mov_b32 v2, s92"); A("v_mov_b32 v3, s94")
    A(f"buffer_store_dwordx2 v[2:3], v1, s[4:7], 0 offen offset:{4*n}")
    A("s_waitcnt vmcnt(0)")
    A.label(l)
def emit_lid(A, per, lds_addr=0):
    sk, tr, got = A.newlabel("SK"), A.newlabel("TR"), A.newlabel("GOT")
    A("s_load_dwordx2 s[4:5], s[0:1], 96")
    A("s_getreg_b32 s3, hwreg(HW_REG_XCC_ID, 0, 4)")
    A("v_readfirstlane_b32 s6, v0")
    A(f"v_mov_b32 v2, {lds_addr}")
    A("s_cmp_lg_u32 s6, 0"); A(f"s_cbranch_scc1 {sk}")
    A("s_mov_b64 exec, 1")
    A("s_mov_b32 s7, 0")
    A("v_mov_b32 v1, 1")
    A("s_waitcnt lgkmcnt(0)")
    A.label(tr)
    A("s_add_u32 s8, s3, s7"); A("s_and_b32 s8, s8, 7")
    A("s_lshl_b32 s9, s8, 5"); A("v_mov_b32 v3, s9")
    A("global_atomic_add v4, v3, v1, s[4:5] sc0 sc1")
    A("s_waitcnt vmcnt(0)")
    A("v_readfirstlane_b32 s9, v4")
    A(f"s_cmp_lt_u32 s9, {per}"); A(f"s_cbranch_scc1 {got}")
    A("s_add_u32 s7, s7, 1"); A("s_cmp_lt_u32 s7, 8"); A(f"s_cbranch_scc1 {tr}")
    A("s_mov_b32 s9, 0x1000")
    A.label(got)
    A("s_lshl_b32 s9, s9, 3"); A("s_add_u32 s9, s9, s8")
    A("v_mov_b32 v1, s9")
    A("ds_write_b32 v2, v1")
    A("s_mov_b64 exec, -1")
    A.label(sk)
    A("s_waitcnt lgkmcnt(0)"); A("s_barrier")
    A("ds_read_b32 v1, v2")
    A("s_waitcnt lgkmcnt(0)")
    A("v_readfirstlane_b32 s2, v1")
    A("s_barrier")
LID = [False]
UID = [0]
def simple_kernel(name, emit, grid, lds, stamp=False, nst=8, wg=17, vgpr=512, accum=256):
    A = Asm(); UID[0] += 100000; A.uid = UID[0]
    kernel_begin(A, name)
    e = A.newlabel("END")
    A(f"s_cmp_ge_u32 s2, {grid}"); A(f"s_cbranch_scc1 {e}")
    if LID[0]:
        emit_lid(A, grid // 8)
        A(f"s_cmp_ge_u32 s2, {grid}"); A(f"s_cbranch_scc1 {e}")
        lds = max(lds, 64)
    if stamp:
        stamp_begin(A)
        for k in range(nst): A(f"s_mov_b64 s[{62+2*k}:{63+2*k}], 0") if False else None
    emit(A, mk_stamp(A) if stamp else None)
    A("s_waitcnt vmcnt(0)")
    if stamp: stamp_dump(A, nst, wg)
    A.label(e); A("s_endpgm")
    return A.text(), kernel_desc(name, vgpr=vgpr, accum=accum), (name, grid, 256, lds)
def emit_prefetch(A):
    mats = [(KA_CKV, 0x200000), (KA_WUK, 0x400000), (KA_WUV, 0x400000), (KA_W1, 0x80000), (KA_W2, 0x80000), (KA_W3, 0x1c0000), (KA_WQ, 0x400000), (KA_WO, 0x400000), (KA_W4, 0x1c0000)]
    for i, (ka, sz) in enumerate(mats): A(f"s_load_dwordx2 s[{44+2*i}:{45+2*i}], s[0:1], {ka}")
    A("v_lshlrev_b32 v58, 4, v0")
    A("s_lshl_b32 s70, s2, 14")
    A("v_and_b32 v59, 63, v0"); A("v_lshlrev_b32 v59, 4, v59")
    A("v_lshrrev_b32 v57, 6, v0"); A("v_lshlrev_b32 v57, 12, v57")
    A("v_add_u32 v58, v57, v59"); A("v_add_u32 v58, s70, v58")
    A("s_waitcnt lgkmcnt(0)")
    for i, (ka, sz) in enumerate(mats):
        A(f"s_mov_b32 s72, s{44+2*i}"); A(f"s_mov_b32 s73, s{45+2*i}"); A(f"s_mov_b32 s74, {hex(sz)}"); A("s_mov_b32 s75, 0x00020000")
        for k in range(4): A(f"buffer_load_dwordx4 v[60:63], v58, s[72:75], 0 offen offset:{k*1024}")
def k_lnp(): return simple_kernel("ln_kernel", lambda A, st: (emit_ln(A), emit_prefetch(A)), 256, 0, False, vgpr=64, accum=64)
def k_pln(): return simple_kernel("ln_kernel", lambda A, st: (emit_prefetch(A), emit_ln(A)), 256, 0, False, vgpr=64, accum=64)
def k_kv(stamp=False): return simple_kernel("kv_kernel", lambda A, st: emit_kv(A, stamp=st), 256, 131072, stamp)
def k_ln(stamp=False): return simple_kernel("ln_kernel", lambda A, st: emit_ln(A), 256, 0, stamp, vgpr=64, accum=64)
def k_attn(stamp=False, wg=17, nst=7): return simple_kernel("attn_kernel", lambda A, st: emit_attn(A, stamp=st), 256, 163840, stamp, nst=nst, wg=wg)
def k_g1(): return simple_kernel("g1_kernel", lambda A, st: emit_g12(A, 1), 256, 65536)
def k_g2(): return simple_kernel("g2_kernel", lambda A, st: emit_g12(A, 2), 256, 65536)
def k_g3(): return simple_kernel("g3_kernel", lambda A, st: emit_g3(A), 224, 131072)
def k_fin(stamp=False): return simple_kernel("fin_kernel", lambda A, st: emit_final(A, stamp=st), 256, 131072, stamp, nst=5)
def k_k1(stamp=False): return simple_kernel("k1_kernel", lambda A, st: emit_k1(A, stamp=st), 256, 131072, stamp, nst=7)
def k_attn_plain(): return simple_kernel("attn_kernel", lambda A, st: emit_attn(A), 256, 163840)
def k_attn2(stamp=False, wg=17, nst=6): return simple_kernel("attn_kernel", lambda A, st: emit_attn2(A, stamp=st), 256, 163840, stamp, nst=nst, wg=wg)
def write(parts, outp):
    open(outp, "w").write(file_text([p[2] for p in parts], "".join(p[0] for p in parts), [p[1] for p in parts], HEADER))
if __name__ == "__main__":
    what = sys.argv[1]; outp = sys.argv[2]
    parts = []
    if what.endswith("x"): LID[0] = True; what = what[:-1]
    if what == "kv": parts = [k_kv(True)]
    if what == "attn": parts = [k_ln(), k_kv(), k_attn(True)]
    if what == "attnf":
        import attn; attn.FINE = True
        parts = [k_ln(), k_kv(), k_attn(True, nst=14)]
    if what == "bpath": parts = [k_ln(), k_g1(), k_g2(), k_g3()]
    if what == "full": parts = [k_ln(), k_kv(), k_g1(), k_g2(), k_g3(), k_attn_plain(), k_fin()]
    if what == "attn2": parts = [k_ln(), k_kv(), k_attn2(True)]
    if what == "full2": parts = [k_ln(), k_kv(), k_g1(), k_g2(), k_g3(), k_attn2(False), k_fin()]
    if what == "full2p": parts = [k_lnp(), k_kv(), k_g1(), k_g2(), k_g3(), k_attn2(False), k_fin()]
    if what == "full2q": parts = [k_pln(), k_kv(), k_g1(), k_g2(), k_g3(), k_attn2(False), k_fin()]
    if what == "finst": parts = [k_pln(), k_kv(), k_g1(), k_g2(), k_g3(), k_attn2(False), k_fin(True)]
    if what == "f3a": parts = [k_k1(), k_g2(), k_g3(), k_attn2(False), k_fin()]
    if what == "k1st": parts = [k_k1(True), k_g2(), k_g3(), k_attn2(False), k_fin()]
    write(parts, outp)
```

```python
from common import *

V_QLA, V_X, V_Y, V_DMA = 0, 1, 2, 3
E = (4, 6)
L0S, L1S, L0L, L1L = 8, 10, 12, 14
S0, S1, P0, P1 = 16, 32, 48, 56
Q0, Q1 = 64, 96
KF, VF = 128, 160
BA0, BA1, BB0, BB1 = 192, 208, 224, 240
O_S, O_L = 0, 128
S_W, S_HEAD, S_J = 20, 21, 22
S_MX, S_K, S_KB, S_VA, S_VP, S_CNT = 23, 24, 25, 26, 27, 28
S_QBS, S_QBL, S_A, S_B, S_D = 31, 32, 33, 34, 35
S_CSO, S_TMP, S_TMP2 = 36, 37, 38
S_WS, S_WM, S_W4K = 39, 44, 30
SRD_KV, SRD_WQ, SRD_XN, SRD_CTX, SRD_QS = 4, 8, 12, 16, 56
LDS_X = 131072
KE, KO, VE, VO = 0, 16384, 32768, 49152
NEG = "0xff800000"
WS_QS = 0x5000000

def ar(b, n=4): return f"a[{b}:{b+n-1}]"
def vr(b, n=4): return f"v[{b}:{b+n-1}]"

class VM:
    def __init__(s): s.q = []
    def issue(s, tag): s.q.append(tag)
    def cnt(s, tags):
        last = max(i for i, t in enumerate(s.q) if t in tags)
        return len(s.q) - 1 - last

def qk(S, q, c):
    M = []
    for s in range(8):
        cc = c if s == 0 else vr(S, 16)
        M.append(f"v_mfma_f32_32x32x16_bf16 {vr(S,16)}, {vr(KF+4*s)}, {vr(q+4*s)}, {cc}")
    return M
def pv(P, o):
    M = []
    for t in range(2):
        for db in range(4):
            M.append(f"v_mfma_f32_32x32x16_bf16 {ar(o+16*db,16)}, {vr(VF+4*(t*4+db))}, {vr(P+4*t)}, {ar(o+16*db,16)}")
    return M

import os
X = os.environ.get("X", "").split(",")
STD_Q = ["K6", "V2", "K7", "V3"]

def step(A, par, qk0, qk1, o, sm1, tr0, sm0, tr1, dmaV=True, dmaK=True, rdK=True, rdV2=True, rdV1=True,
         nprev=8, salu=None, extra=None, entry=STD_Q, barrier=True, nops=None, std_exit=True):
    salu = salu or {}; extra = extra or {}; nops = nops or {}
    M = [None]*32
    if qk0 is not None: M[0:8] = qk(S0, Q0, qk0)
    if qk1 is not None: M[16:24] = qk(S1, Q1, qk1)
    if o is not None:
        M[8:16] = pv(P0, o); M[24:32] = pv(P1, o + 64)
    G = {g: [] for g in range(32)}
    def add2(l, e): return [f"v_add_f32 v{l}, v{l}, v{e}", f"v_add_f32 v{l+1}, v{l+1}, v{e+1}"]
    def sm(base, S, P, L, tr):
        if tr is not None and L is None:
            G[base] += add2(tr, E[1])
        if L is None: return
        for k in range(8):
            e = E[k & 1]; g = base + 2*k
            G[g].append(f"v_exp_f32 v{e}, v{S+2*k}")
            G[g].append(f"v_exp_f32 v{e+1}, v{S+2*k+1}")
            if k == 0:
                if tr is not None: G[g] += add2(tr, E[1])
                else: G[g].append("s_nop 0")
            else:
                G[g] += add2(L, E[(k-1)&1])
            G[g+1].append(f"v_cvt_pk_bf16_f32 v{P+k}, v{e}, v{e+1}")
    sm(0, S1, P1, sm1, tr0)
    sm(16, S0, P0, sm0, tr1)
    q = list(entry)
    if par == 0: aV1, oV1, aK, oK, aV2, oV2 = V_X, VE, V_Y, KE, V_X, VO
    else:        aV1, oV1, aK, oK, aV2, oV2 = V_X, VO, V_Y, KO, V_Y, VE
    R = {g: [] for g in range(32)}
    if rdV1:
        for i in range(4): R[1+2*i].append((f"V{4+i}", f"ds_read_b128 {vr(VF+4*(4+i))}, v{aV1} offset:{oV1+(4+i)*1024}"))
    if rdK:
        for s in range(8): R[17+2*s].append((f"K{s}", f"ds_read_b128 {vr(KF+4*s)}, v{aK} offset:{oK+s*1024}"))
    if rdV2:
        for i in range(4): R[25+2*i].append((f"V{i}", f"ds_read_b128 {vr(VF+4*i)}, v{aV2} offset:{oV2+i*1024}"))
    for g, l in extra.items(): R[g] += l
    if par == 0: mV, sV, mK, sK = f"s_xor_b32 m0, s{S_MX}, 0x1c000", S_VP, f"s_mov_b32 m0, s{S_MX}", S_K
    else:        mV, sV, mK, sK = f"s_or_b32 m0, s{S_MX}, 0x8000", S_VA, f"s_or_b32 m0, s{S_MX}, 0x4000", S_KB
    D = {g: [] for g in range(32)}
    nb = 0
    if dmaV:
        for i, g in enumerate((1, 3, 7, 9)):
            D[g].append(f"buffer_load_dwordx4 v{V_DMA}, s[{SRD_KV}:{SRD_KV+3}], s{sV} offen offset:{i*1024} lds"); nb += 1
    if dmaK:
        for i, g in enumerate((13, 17, 19, 21)):
            D[g].append(f"buffer_load_dwordx4 v{V_DMA}, s[{SRD_KV}:{SRD_KV+3}], s{sK} offen offset:{i*1024} lds")
            if g < 15: nb += 1
    def wait(tags):
        idx = [i for i, t in enumerate(q) if t in tags]
        if not idx: return None
        n = len(q) - 1 - max(idx)
        del q[:max(idx)+1]
        return f"s_waitcnt lgkmcnt({min(n,15)})"
    waits = {5: ["K6", "K7", "V2", "V3"], 11: ["V4","V5","V6","V7"], 31: ["K0","K1","K2","K3","K4","K5","V0","V1"],
             15: ["QB%d" % i for i in range(8)]}
    waits[31] += ["QA%d" % i for i in range(8)]
    for g in range(32):
        if M[g]: A(M[g])
        if g == 1 and dmaV:
            A(mV)
            if not G[1]: A("s_nop 0")
        if g == 11 and dmaK: pass
        for t in G[g]:
            if "nosm" in X and sm1 is not None and sm0 is not None: continue
            if "noexp" in X and t.startswith("v_exp"): t = t.replace("v_exp_f32", "v_mov_b32")
            A(t)
        for tag, t in R[g]:
            if not ("nord" in X and sm1 is not None and sm0 is not None): A(t)
            q.append(tag)
        if g in waits:
            w = wait(waits[g])
            if w: A(w)
        for t in salu.get(g, []): A(t)
        if g == 11 and dmaK: A(mK)
        for t in D[g]:
            if "nodma" not in X: A(t)
        if g == 15 and barrier:
            if "novm" not in X: A(f"s_waitcnt vmcnt({nprev + nb})")
            if "nobar" not in X: A("s_barrier")
        for t in nops.get(g, []): A(t)
    if std_exit: assert q == STD_Q, q
    return q

def toggle():
    return [f"v_xor_b32 v{V_X}, 0x10000, v{V_X}", f"v_xor_b32 v{V_Y}, 0x10000, v{V_Y}", f"s_xor_b32 s{S_MX}, s{S_MX}, 0x10000"]

def pair(A, kind, nprev=8):
    o = O_S if kind[0] == "S" else O_L
    l0, l1 = (L0S, L1S) if kind[0] == "S" else (L0L, L1L)
    kupd = [f"s_add_u32 s{S_K}, s{S_K}, 0x10000"] if kind != "SP" else [f"s_mov_b32 s{S_K}, 0"]
    sal_even = {5: kupd, 23: [f"s_add_u32 s{S_KB}, s{S_K}, 0x8000", f"s_add_u32 s{S_VA}, s{S_K}, 0x4000"]}
    tg = toggle()
    sal_odd = {23: [f"s_add_u32 s{S_VP}, s{S_K}, 0xc000"], 31: tg}
    if kind[1] == "R":
        step(A, 0, "0", "0", o, l1, l0, l0, l1, salu=sal_even)
        step(A, 1, "0", "0", o, l1, l0, l0, l1, salu=sal_odd)
    elif kind == "SP":
        step(A, 0, "0", "0", o, l1, l0, l0, l1, salu=sal_even)
        step(A, 1, vr(BA0,16), vr(BA1,16), o, l1, l0, l0, l1, salu=sal_odd)
    elif kind == "SL":
        def qr(tag, dst, f): return (f"{tag}{f}", f"ds_read_b128 {vr(dst+4*f)}, v{V_QLA} offset:{f*1024}")
        ex = {}
        for f, g in enumerate((5, 9, 11, 11, 13, 15, 15, 23)): ex.setdefault(g, []).append(qr("QA", Q0, f))
        se = dict(sal_even); se[23] = se[23] + [f"v_xor_b32 v{V_QLA}, 0x2000, v{V_QLA}"]
        for f, g in enumerate((25, 27, 29)): ex.setdefault(g, []).append(qr("QB", Q1, f))
        x = step(A, 0, vr(BB0,16), vr(BB1,16), o, l1, l0, l0, l1, salu=se, extra=ex, std_exit=False)
        ex = {}
        for f, g in zip(range(3, 8), (5, 9, 11, 11, 13)): ex.setdefault(g, []).append(qr("QB", Q1, f))
        step(A, 1, "0", "0", o, L1S, L0S, L0L, L1S, salu=sal_odd, extra=ex, entry=x)
    elif kind == "LP":
        step(A, 0, "0", "0", o, l1, l0, l0, l1, salu={}, dmaK=False)
        step(A, 1, vr(BA0,16), vr(BA1,16), o, l1, l0, l0, l1, salu={31: tg}, dmaK=False, dmaV=False, nprev=4)
    elif kind == "LL":
        x = step(A, 0, vr(BB0,16), vr(BB1,16), o, l1, l0, l0, l1, dmaK=False, dmaV=False, nprev=0, rdK=False, std_exit=False)
        step(A, 1, None, None, o, l1, l0, None, l1, dmaK=False, dmaV=False, rdK=False, rdV2=False, barrier=False,
             entry=x, std_exit=False, nops={16: ["s_nop 1"]})

def emit_attn2(A, wgid="s2", stamp=None, fallback=True, g2=False, g3=False):
    import k2
    st_ = stamp if stamp else (lambda k: None)
    SM = dict(x.split(":") for x in os.environ.get("SM", "0:0,1:1,2:2,3:3,4:4,5:5,6:6").split(","))
    def st(k):
        if str(k) in SM: st_(int(SM[str(k)]))
    ool = []
    load_ptr(A, 40, KA_WQ); load_ptr(A, 42, KA_WS)
    if g2: k2.g2_ptrs(A)
    A("v_lshrrev_b32 v10, 6, v0")
    A("v_and_b32 v11, 63, v0")
    A(f"v_readfirstlane_b32 s{S_W}, v10")
    A(f"s_and_b32 s{S_HEAD}, {wgid}, 7")
    A(f"s_lshr_b32 s{S_TMP}, {wgid}, 3")
    A(f"s_and_b32 s{S_TMP}, s{S_TMP}, 3")
    A(f"s_lshl_b32 s{S_TMP}, s{S_TMP}, 3")
    A(f"s_add_u32 s{S_HEAD}, s{S_HEAD}, s{S_TMP}")
    A(f"s_lshr_b32 s{S_J}, {wgid}, 5")
    A(f"s_lshl_b32 s{S_QBS}, s{S_J}, 2"); A(f"s_add_u32 s{S_QBS}, s{S_QBS}, s{S_W}")
    A(f"s_sub_u32 s{S_QBL}, 15, s{S_J}"); A(f"s_lshl_b32 s{S_QBL}, s{S_QBL}, 2"); A(f"s_add_u32 s{S_QBL}, s{S_QBL}, s{S_W}")
    A(f"s_lshl_b32 s{S_W4K}, s{S_W}, 12")
    A(f"s_lshl_b32 s{S_CSO}, s{S_HEAD}, 12")
    A(f"v_lshlrev_b32 v2, 4, v11")
    A(f"v_add_u32 v{V_DMA}, s{S_W4K}, v2")
    A(f"s_cmp_eq_u32 s{S_J}, 0")
    A(f"s_cselect_b32 s{S_K}, 0, 0x10000")
    A("s_waitcnt lgkmcnt(0)")
    A(f"s_lshl_b32 s{S_TMP}, s{S_HEAD}, 20")
    A(f"s_add_u32 s4, s42, s{S_TMP}"); A("s_addc_u32 s5, s43, 0")
    if WS_KV: A(f"s_add_u32 s4, s4, {hex(WS_KV)}"); A("s_addc_u32 s5, s5, 0")
    A("s_mov_b32 s6, 0x100000"); A("s_mov_b32 s7, 0x00020000")
    A(f"s_lshl_b32 s{S_TMP}, s{S_HEAD}, 8")
    A(f"s_add_u32 s8, s40, s{S_TMP}"); A("s_addc_u32 s9, s41, 0")
    A(f"s_sub_u32 s10, 0x400000, s{S_TMP}"); A("s_mov_b32 s11, 0x00020000")
    srd_off(A, SRD_XN, 42, WS_XNF, 0x200000)
    srd_off(A, SRD_CTX, 42, WS_CTX, 0x1000000)
    srd_off(A, SRD_QS, 42, WS_QS, 0x800000)
    VW, VB0, VB1, VT = 12, 16, 17, 22
    A("v_lshrrev_b32 v13, 4, v11")
    A("v_and_b32 v14, 15, v11")
    A("v_lshlrev_b32 v15, 2, v13")
    A("v_xor_b32 v15, v14, v15")
    A("v_lshlrev_b32 v15, 4, v15")
    A(f"v_lshl_add_u32 v{VW}, v13, 13, v15")
    A(f"s_lshl_b32 s{S_TMP}, s{S_W}, 18")
    A(f"v_add_u32 v{VW}, s{S_TMP}, v{VW}")
    A("v_and_b32 v18, 1, v13")
    A("v_lshrrev_b32 v19, 5, v11")
    A("v_lshl_add_u32 v20, v19, 4, v14")
    A("v_lshlrev_b32 v20, 4, v20")
    A("v_lshl_add_u32 v21, v18, 14, v20")
    A(f"s_lshl_b32 s{S_TMP}, s{S_QBS}, 15"); A(f"v_add_u32 v{VB0}, s{S_TMP}, v21")
    A(f"s_lshl_b32 s{S_TMP}, s{S_QBL}, 15"); A(f"v_add_u32 v{VB1}, s{S_TMP}, v21")
    A("v_lshrrev_b32 v26, 2, v14")
    A("v_lshrrev_b32 v27, 1, v13")
    A("v_lshl_add_u32 v27, v27, 3, v26")
    A("v_lshlrev_b32 v27, 8, v27")
    A("v_bfe_u32 v28, v14, 1, 1")
    A("v_lshl_add_u32 v28, v18, 1, v28")
    A("v_lshl_add_u32 v27, v28, 4, v27")
    A("v_and_b32 v28, 1, v14")
    A("v_lshl_add_u32 v27, v28, 3, v27")
    for db in range(4):
        A(f"v_xor_b32 v28, {db}, v26")
        A(f"v_lshl_add_u32 v{VT+db}, v28, 6, v27")
    vm = VM()
    WBUF = [LDS_X, 65536, 98304, LDS_X]
    A(f"s_lshl_b32 s{S_WM}, s{S_W}, 13")
    def wdma(c):
        R = []
        for i in range(8):
            R.append([f"s_add_u32 m0, s{S_WM}, {WBUF[c] + i*1024}",
                      f"s_mov_b32 s{S_WS}, {(128*c + 4*i)*8192}",
                      f"buffer_load_dwordx4 v{VW}, s[8:11], s{S_WS} offen lds"])
        return R
    def bload(c, s):
        p = c & 1
        return [f"buffer_load_dwordx4 {ar(64*p + 32*b + 4*s)}, v{vx}, s[12:15], s{45+c} offen offset:{512*s}" for b, vx in ((0, VB0), (1, VB1))]
    for c in range(4): A(f"s_mov_b32 s{45+c}, {4096*c}")
    def kvdma(ldsbase, soff):
        R = [[f"s_add_u32 m0, s{S_W4K}, {ldsbase}"] + ([f"s_mov_b32 s{S_WS}, {soff}"] if isinstance(soff, int) else [])]
        so = f"s{S_WS}" if isinstance(soff, int) else soff
        for i in range(4):
            R.append([f"buffer_load_dwordx4 v{V_DMA}, s[4:7], {so} offen offset:{i*1024} lds"])
        return R
    def emit_list(R, tag):
        for g in R:
            if isinstance(g, str): g = [g]
            for t in g:
                A(t)
                if t.startswith("buffer_"): vm.issue(tag)
    st(0)
    if not g2:
        emit_list(wdma(0), "W0")
        for s in range(8): emit_list(bload(0, s), "B0")
        emit_list(wdma(1), "W1")
        for s in range(8): emit_list(bload(1, s), "B1")
        emit_list(wdma(2), "W2")
    else:
        k2.g2_setup(A, wgid, S_W, 11, 42)
        for c in range(4): emit_list(k2.g2_loads(c), f"G{c}")
        emit_list(k2.g2_xloads(SRD_XN), "GX")
        emit_list(wdma(0), "W0")
        later = [([t for s in range(8) for t in bload(0, s)], "B0"), (wdma(1), "W1"), ([t for s in range(8) for t in bload(1, s)], "B1"), (wdma(2), "W2")]
        flat = [(g, tag) for (L, tag) in later for g in L]
        per = (len(flat) + 3) // 4
        for c in range(4):
            A(f"s_waitcnt vmcnt({vm.cnt([f'G{c}'])})")
            st(10 + c)
            A("s_barrier")
            for t in k2.g2_wreads(c): A(t)
            for g, tag in flat[c*per:(c+1)*per]: emit_list([g], tag)
            for s in range(8):
                A(f"s_waitcnt lgkmcnt({min(14 - 2*s, 15)})")
                A(k2.g2_mfma(c, s))
        A(f"s_waitcnt vmcnt({vm.cnt(['GX'])})")
        st(6)
        k2.g2_epilogue(A, vm)
        A("s_barrier")
    def wreads(c, s):
        p = s & 1
        R = []
        for db in range(4):
            for rd in range(2):
                b = 128 + 16*p + 4*db + 2*rd
                R.append(f"ds_read_b64_tr_b16 a[{b}:{b+1}], v{VT+db} offset:{4096*s + 1024*rd}")
        return R
    def setbuf(c):
        d = WBUF[c] - (WBUF[c-1] if c else 0)
        return [(f"v_add_u32 v{VT+db}, {d}, v{VT+db}" if d >= 0 else f"v_subrev_u32 v{VT+db}, {-d}, v{VT+db}") for db in range(4)]
    for t in setbuf(0): A(t)
    A(f"s_waitcnt vmcnt({vm.cnt(['W0','B0'])})")
    A("s_barrier")
    st(1)
    for t in wreads(0, 0): A(t)
    QACC = lambda b, db: vr(128 + 64*b + 16*db, 16)
    kvlist = [(KE, 0), (KO, 32768), (VE, 16384), (VO, 49152)]
    for c in range(4):
        for s in range(8):
            p = s & 1
            pre = ["s_waitcnt lgkmcnt(0)"]
            last = (s == 7)
            if last and c < 3:
                n = vm.cnt([f"W{c+1}", f"B{c+1}"])
                pre = [f"s_waitcnt vmcnt({n}) lgkmcnt(0)", "s_barrier"] + setbuf(c+1)
            if last and c == 3:
                pre = ["s_waitcnt lgkmcnt(0)", "s_barrier"]
            M = []
            for db in range(4):
                for b in range(2):
                    cc = "0" if (c == 0 and s == 0) else QACC(b, db)
                    M.append(f"v_mfma_f32_32x32x16_bf16 {QACC(b,db)}, {ar(128+16*p+4*db)}, {ar(64*(c&1)+32*b+4*s)}, {cc}")
            F = []
            if not last: F += [(i, t) for i, t in enumerate(wreads(c, s+1))]
            elif c < 3: F += [(i, t) for i, t in enumerate(wreads(c+1, 0))]
            ext = []
            if s > 0 and c + 2 <= 3:
                ext += [(t, f"B{c+2}") for t in bload(c+2, s-1)]
            if last and c == 0:
                for g in wdma(3): ext += [(t, "W3") for t in g]
            if last and c == 1:
                for g in kvdma(65536 + KE, f"s{S_K}"): ext += [(t, "KV2") for t in g]
            if c == 0 and s in (1, 3, 5, 6):
                b_, o_ = kvlist[(1, 3, 5, 6).index(s)]
                for g in kvdma(b_, o_): ext += [(t, "KV0") for t in g]
            for t in pre: A(t)
            if g2 and last and c == 1:
                A(k2.g2_signal()); vm.issue("SIG")
            for k, (t, tag) in enumerate(ext):
                g = min(7, k*8 // max(len(ext), 1))
                F.append((g, t))
                if t.startswith("buffer_"): vm.issue(tag)
            interleave(A, M, F)
            if last and c + 2 <= 3:
                for t in bload(c+2, 7): A(t); vm.issue(f"B{c+2}")
    st(2)
    A("v_and_b32 v11, 63, v0")
    A("v_lshlrev_b32 v2, 4, v11")
    A(f"s_lshl_b32 s{S_TMP}, s{S_W}, 13")
    A(f"s_add_u32 s{S_TMP2}, s{S_TMP}, {LDS_X}")
    A(f"v_add_u32 v{V_QLA}, s{S_TMP2}, v2")
    A(f"s_add_u32 s{S_TMP2}, s{S_TMP}, 98304")
    A(f"v_add_u32 v4, s{S_TMP2}, v2")
    A(f"v_xor_b32 v5, 0x2000, v4")
    A(f"s_lshl_b32 s{S_TMP2}, {wgid}, 15"); A(f"s_add_u32 s{S_TMP2}, s{S_TMP2}, s{S_TMP}")
    A(f"s_mov_b32 s{S_A}, s{S_TMP2}")
    for r in range(4): A(f"v_mov_b32 v{S0+r}, 0")
    A("s_nop 1")
    Z = [f"v_mfma_f32_32x32x16_bf16 {ar(16*i,16)}, {vr(S0)}, {vr(S0)}, 0" for i in range(16)]
    F = []
    def cv(dst, b, f):
        db, t = f >> 1, f & 1
        return [f"v_cvt_pk_bf16_f32 v{dst + 4*f + r}, v{128 + 64*b + 16*db + 8*t + 2*r}, v{128 + 64*b + 16*db + 8*t + 2*r + 1}" for r in range(4)]
    g = 2
    for f in range(8):
        for t in cv(Q0, 0, f): F.append((g, t))
        F.append((g, f"ds_write_b128 v4, {vr(Q0+4*f)} offset:{f*1024}"))
        g += (f & 1) ^ 1 if False else 0
        if f & 1: g += 1
    for f in range(8):
        for t in cv(Q1, 1, f): F.append((g, t))
        F.append((g, f"ds_write_b128 v{V_QLA}, {vr(Q1+4*f)} offset:{f*1024}"))
        if f & 1: g += 1
    for f in range(8):
        F.append((g + f//2, f"buffer_store_dwordx4 {vr(Q0+4*f)}, v2, s[{SRD_QS}:{SRD_QS+3}], s{S_A} offen offset:{(f&3)*1024}" if f < 4 else
                  f"buffer_store_dwordx4 {vr(Q0+4*f)}, v3, s[{SRD_QS}:{SRD_QS+3}], s{S_B} offen offset:{(f&3)*1024}"))
    F = [(a_, t.replace("v3, s[56:59], s34", "v2, s[56:59], s34")) for a_, t in F]
    A(f"s_add_u32 s{S_B}, s{S_A}, 4096")
    interleave(A, Z, F)
    A(f"s_and_b32 s{S_TMP}, s{S_W}, 1"); A(f"s_lshl_b32 s{S_TMP}, s{S_TMP}, 13")
    A(f"v_add_u32 v{V_Y}, s{S_TMP}, v2")
    A(f"v_add_u32 v{V_X}, 0x10000, v{V_Y}")
    A(f"s_add_u32 s{S_MX}, s{S_W4K}, 0x10000")
    A(f"s_add_u32 s{S_KB}, s{S_K}, 0x8000"); A(f"s_add_u32 s{S_VA}, s{S_K}, 0x4000")
    A(f"s_add_u32 s{S_VP}, s{S_K}, 0xc000")
    A("s_waitcnt lgkmcnt(0)")
    A("s_barrier")
    for f in range(8): A(f"ds_read_b128 {vr(Q1+4*f)}, v5 offset:{f*1024}")
    for s in range(8): A(f"ds_read_b128 {vr(KF+4*s)}, v{V_Y} offset:{KE+s*1024}")
    A("v_and_b32 v11, 31, v11"); A("v_bfe_u32 v12, v2, 9, 1")
    A("v_lshlrev_b32 v12, 2, v12"); A("v_sub_u32 v11, v11, v12")
    A(f"v_mov_b32 v12, {NEG}")
    A(f"s_cmp_lt_u32 s{S_W}, 2"); A(f"s_cselect_b32 s{S_A}, -1, 0"); A(f"s_cselect_b32 s{S_B}, {NEG}, 0"); A(f"s_cselect_b32 s{S_D}, 0, -1")
    A(f"s_cmp_eq_u32 s{S_W}, 1"); A(f"s_cselect_b32 s{S_TMP}, {NEG}, 0")
    A(f"s_cmp_eq_u32 s{S_W}, 2"); A(f"s_cselect_b32 s{S_TMP2}, 0, {NEG}")
    for r in range(16):
        key = 16*((r >> 2) & 1) + 8*(r >> 3) + (r & 3)
        A(f"v_cmp_gt_i32 vcc, {key}, v11")
        A(f"v_mov_b32 v{BA1+r}, s{S_TMP}")
        A(f"v_mov_b32 v{BB1+r}, s{S_TMP2}")
        A(f"v_cndmask_b32 v13, 0, v12, vcc")
        A(f"v_and_b32 v{BA0+r}, s{S_A}, v13")
        A(f"v_and_b32 v13, s{S_D}, v13")
        A(f"v_or_b32 v{BB0+r}, s{S_B}, v13")
    A(f"s_cmp_eq_u32 s{S_J}, 0"); A(f"s_cselect_b32 s{S_A}, -1, 0")
    for r in range(16):
        A(f"v_and_b32 v{S0+r}, s{S_A}, v{BA0+r}")
        A(f"v_and_b32 v{S1+r}, s{S_A}, v{BA1+r}")
    for r in range(8, 16): A(f"v_mov_b32 v{r}, 0")
    A("s_waitcnt lgkmcnt(0)")
    A("s_barrier")
    st(3)
    step(A, 1, vr(S0,16), vr(S1,16), None, None, None, L0S, None, rdV1=False, entry=[], nprev=0,
         salu={31: toggle()}, nops={15: ["s_nop 7", "s_nop 7"]})
    lSP, lSL, lSR = A.newlabel("SP"), A.newlabel("SL"), A.newlabel("SR")
    A(f"s_cmp_eq_u32 s{S_J}, 0"); A(f"s_cbranch_scc1 {lSL}")
    A(f"s_sub_u32 s{S_CNT}, s{S_J}, 1")
    A(f"s_cmp_eq_u32 s{S_CNT}, 0"); A(f"s_cbranch_scc1 {lSP}")
    A.label(lSR)
    pair(A, "SR")
    A(f"s_sub_u32 s{S_CNT}, s{S_CNT}, 1"); A(f"s_cmp_lg_u32 s{S_CNT}, 0"); A(f"s_cbranch_scc1 {lSR}")
    A.label(lSP)
    pair(A, "SP")
    A.label(lSL)
    pair(A, "SL")
    st(4)
    A(f"s_sub_u32 s{S_CNT}, 14, s{S_J}")
    lLR = A.newlabel("LR")
    A.label(lLR)
    pair(A, "LR")
    A(f"s_sub_u32 s{S_CNT}, s{S_CNT}, 1"); A(f"s_cmp_lg_u32 s{S_CNT}, 0"); A(f"s_cbranch_scc1 {lLR}")
    pair(A, "LP")
    pair(A, "LL")
    st(5)
    if g3:
        A(f"s_and_b32 s{k2.T0}, {wgid}, 7"); A(f"s_lshr_b32 s{k2.T2}, {wgid}, 3"); A(f"s_and_b32 s{k2.T2}, s{k2.T2}, 3")
        A(f"s_lshl_b32 s{k2.T2}, s{k2.T2}, 3"); A(f"s_add_u32 s{k2.T0}, s{k2.T0}, s{k2.T2}"); A(f"s_lshl_b32 s{k2.T0}, s{k2.T0}, 3")
        A("v_mov_b32 v60, 0")
        A(f"buffer_load_dword v60, v60, s[{k2.SRD_DBG}:{k2.SRD_DBG+3}], s{k2.T0} offen sc1")
    A("s_barrier")
    A(f"v_and_b32 v2, 0x3ff, v{V_Y}")
    A(f"s_lshl_b32 s{S_TMP}, s{S_W}, 15")
    A(f"v_add_u32 v3, s{S_TMP}, v2")
    A(f"v_xor_b32 v1, 0x8000, v3")
    A(f"v_lshrrev_b32 v4, 1, v2")
    A(f"s_lshl_b32 s{S_TMP}, s{S_W}, 9"); A(f"s_add_u32 s{S_TMP}, s{S_TMP}, {LDS_X}")
    A(f"v_add_u32 v4, s{S_TMP}, v4")
    A(f"v_xor_b32 v5, 0x200, v4")
    A(f"v_add_f32 v6, v{L1S}, v{L1S+1}"); A(f"v_add_f32 v7, v{L1L}, v{L1L+1}")
    A(f"v_add_f32 v{L0S}, v{L0S}, v{L0S+1}"); A(f"v_add_f32 v{L0L}, v{L0L}, v{L0L+1}")
    A("ds_write_b64 v4, v[6:7]")
    A("s_nop 7")
    for i in range(16):
        A(f"ds_write_b128 v3, {ar(O_S+64+4*i)} offset:{i*1024}")
        for r in range(4): A(f"v_accvgpr_read_b32 v{128+4*i+r}, a{O_S+4*i+r}")
    for i in range(16):
        A(f"ds_write_b128 v3, {ar(O_L+64+4*i)} offset:{16384+i*1024}")
        for r in range(4): A(f"v_accvgpr_read_b32 v{192+4*i+r}, a{O_L+4*i+r}")
    A("v_lshrrev_b32 v11, 4, v2")
    A("v_and_b32 v14, 15, v11"); A("v_lshrrev_b32 v19, 5, v11"); A("v_bfe_u32 v18, v11, 4, 1")
    A("v_lshl_add_u32 v20, v19, 4, v14"); A("v_lshlrev_b32 v20, 4, v20")
    A("v_lshl_add_u32 v21, v18, 17, v20")
    V_CS, V_CL = 16, 17
    A(f"s_lshl_b32 s{S_TMP}, s{S_QBS}, 18"); A(f"v_add_u32 v{V_CS}, s{S_TMP}, v21")
    A(f"s_lshl_b32 s{S_TMP}, s{S_QBL}, 18"); A(f"v_add_u32 v{V_CL}, s{S_TMP}, v21")
    A("s_waitcnt lgkmcnt(0)")
    A("s_barrier")
    A("ds_read_b64 v[6:7], v5")
    PT = 18
    def prd(which, grp, dst):
        return [f"ds_read_b128 {vr(dst+4*h)}, v1 offset:{which*16384 + (2*grp+h)*1024}" for h in range(2)]
    PB = [96, 104, 112, 120]
    for gi in range(4):
        for t in prd(0, gi, PB[gi]): A(t)
    def half_sum(x, y, op="v_add_f32"):
        A(f"v_mov_b32 v{y}, v{x}"); A("s_nop 1")
        A(f"v_permlane32_swap_b32 v{x}, v{y}"); A("s_nop 1")
        A(f"{op} v{x}, v{x}, v{y}")
    A("s_waitcnt lgkmcnt(8)")
    A(f"v_add_f32 v{L0S}, v{L0S}, v6"); A(f"v_add_f32 v{L0L}, v{L0L}, v7")
    half_sum(L0S, 9); half_sum(L0L, 13)
    lfS, lfL, lrS, lrL = A.newlabel("FS"), A.newlabel("FL"), A.newlabel("RS"), A.newlabel("RL")
    def rangechk(x, mask):
        A(f"v_mov_b32 v9, 0x2b800000")
        A(f"v_cmp_ge_f32 vcc, v{x}, v9")
        A(f"v_mov_b32 v9, 0x53800000")
        A(f"v_cmp_le_f32 s[50:51], v{x}, v9")
        A("s_nop 1")
        A("s_and_b64 vcc, vcc, s[50:51]")
        A("s_cmp_eq_u64 vcc, -1")
        A(f"s_cselect_b32 s{mask}, 0, 1")
    rangechk(L0S, S_A); rangechk(L0L, S_B)
    A(f"v_rcp_f32 v{L0S}, v{L0S}"); A(f"v_rcp_f32 v{L0L}, v{L0L}")
    A("s_nop 0")
    A(f"v_mov_b32 v9, v{L0S}"); A(f"v_mov_b32 v13, v{L0L}")
    TB = [50, 54]
    for n in range(16):
        which, grp = n >> 3, n & 7
        own = (128 if which == 0 else 192) + 8*grp
        pb = PB[n & 3]
        x = L0S if which == 0 else L0L
        outstanding = min(15 - n, 3) * 2
        A(f"s_waitcnt lgkmcnt({outstanding})")
        for h in range(4): A(f"v_pk_add_f32 {vr(own+2*h,2)}, {vr(own+2*h,2)}, {vr(pb+2*h,2)}")
        if n + 4 < 16:
            for t in prd((n+4) >> 3, (n+4) & 7, pb): A(t)
        for h in range(4): A(f"v_pk_mul_f32 {vr(own+2*h,2)}, {vr(own+2*h,2)}, {vr(x,2)}")
        tb = TB[n & 1]
        for h in range(4): A(f"v_cvt_pk_bf16_f32 v{tb+h}, v{own+2*h}, v{own+2*h+1}")
        db, t = grp >> 1, grp & 1
        vc = V_CS if which == 0 else V_CL
        A(f"buffer_store_dwordx4 {vr(tb)}, v{vc}, s[16:19], s{S_CSO} offen offset:{db*1024+t*512}")
    if fallback:
        A(f"s_cmp_eq_u32 s{S_B}, 0"); A(f"s_cbranch_scc0 {lfL}")
        A.label(lrL)
        A(f"s_cmp_eq_u32 s{S_A}, 0"); A(f"s_cbranch_scc0 {lfS}")
        A.label(lrS)
        def store_block(vc, rd):
            cnt = 0
            for db in range(4):
                for t in range(2):
                    b = 232 + 12*(cnt & 1); cnt += 1
                    rd(db, t, b)
                    for r in range(4): A(f"v_cvt_pk_bf16_f32 v{b+8+r}, v{b+2*r}, v{b+2*r+1}")
                    A(f"buffer_store_dwordx4 {vr(b+8)}, v{vc}, s[16:19], s{S_CSO} offen offset:{db*1024+t*512}")
        def fallback_code(vc, qb, reload_q):
            FO, FK, FV = 164, 64, 96
            FS, FP, TRI = 32, 48, 128
            m, l, al, t0, t1, ad, l16 = 228, 229, 230, 231, 10, 11, 12
            S_KB_, S_O1, S_O2 = 52, 53, 54
            A("s_waitcnt vmcnt(0)")
            A(f"v_and_b32 v{l16}, 0x3ff, v{V_Y}")
            if reload_q:
                A(f"s_lshl_b32 s{S_O1}, {wgid}, 15"); A(f"s_lshl_b32 s{S_O2}, s{S_W}, 13"); A(f"s_add_u32 s{S_O1}, s{S_O1}, s{S_O2}")
                A(f"s_add_u32 s{S_O2}, s{S_O1}, 4096")
                for f in range(8):
                    A(f"buffer_load_dwordx4 {vr(Q0+4*f)}, v{l16}, s[{SRD_QS}:{SRD_QS+3}], s{S_O1 if f < 4 else S_O2} offen offset:{(f&3)*1024} sc1")
            A(f"v_lshrrev_b32 v{t0}, 4, v{l16}"); A(f"v_lshrrev_b32 v{t1}, 5, v{t0}"); A(f"v_and_b32 v{t0}, 31, v{t0}")
            A(f"v_lshlrev_b32 v{t1}, 2, v{t1}"); A(f"v_sub_u32 v{t0}, v{t0}, v{t1}"); A(f"v_mov_b32 v{t1}, {NEG}")
            for r in range(16):
                key = 16*((r >> 2) & 1) + 8*(r >> 3) + (r & 3)
                A(f"v_cmp_gt_i32 vcc, {key}, v{t0}"); A("s_nop 1")
                A(f"v_cndmask_b32 v{TRI+r}, 0, v{t1}, vcc")
            for r in range(64): A(f"v_mov_b32 v{FO+r}, 0")
            A(f"v_mov_b32 v{m}, {NEG}"); A(f"v_mov_b32 v{l}, 0")
            A(f"v_add_u32 v{ad}, 4096, v{l16}")
            A(f"s_mov_b32 s{S_KB_}, 0")
            A("s_waitcnt vmcnt(0)")
            lp, ld_, ln_ = A.newlabel("FP"), A.newlabel("FD"), A.newlabel("FN")
            A.label(lp)
            A(f"s_lshr_b32 s{S_O1}, s{S_KB_}, 1"); A(f"s_lshl_b32 s{S_O1}, s{S_O1}, 15")
            A(f"s_and_b32 s{S_O2}, s{S_KB_}, 1"); A(f"s_lshl_b32 s{S_O2}, s{S_O2}, 13")
            A(f"s_add_u32 s{S_O1}, s{S_O1}, s{S_O2}")
            A(f"s_add_u32 s{S_O2}, s{S_O1}, 16384")
            for s_ in range(8):
                A(f"buffer_load_dwordx4 {ar(FK+4*s_)}, v{l16 if s_ < 4 else ad}, s[4:7], s{S_O1} offen offset:{(s_&3)*1024}")
            for s_ in range(8):
                A(f"buffer_load_dwordx4 {ar(FV+4*s_)}, v{l16 if s_ < 4 else ad}, s[4:7], s{S_O2} offen offset:{(s_&3)*1024}")
            A("s_waitcnt vmcnt(8)")
            A(f"s_cmp_eq_u32 s{S_KB_}, s{qb}")
            A(f"s_cbranch_scc1 {ld_}")
            A(f"v_mfma_f32_32x32x16_bf16 {vr(FS,16)}, {ar(FK)}, {vr(Q0)}, 0")
            A(f"s_branch {ln_}")
            A.label(ld_)
            A(f"v_mfma_f32_32x32x16_bf16 {vr(FS,16)}, {ar(FK)}, {vr(Q0)}, {vr(TRI,16)}")
            A.label(ln_)
            for s_ in range(1, 8):
                A(f"v_mfma_f32_32x32x16_bf16 {vr(FS,16)}, {ar(FK+4*s_)}, {vr(Q0+4*s_)}, {vr(FS,16)}")
            A("s_nop 7"); A("s_nop 7")
            A(f"v_max_f32 v{t0}, v{FS}, v{FS+1}")
            for r in range(2, 16, 2): A(f"v_max3_f32 v{t0}, v{t0}, v{FS+r}, v{FS+r+1}")
            half_sum(t0, t1, "v_max_f32")
            A(f"v_max_f32 v{t0}, v{t0}, v{m}")
            A(f"v_sub_f32 v{al}, v{m}, v{t0}")
            A(f"v_exp_f32 v{al}, v{al}")
            A(f"v_mov_b32 v{m}, v{t0}")
            for r in range(16): A(f"v_sub_f32 v{FS+r}, v{FS+r}, v{m}")
            for r in range(16): A(f"v_exp_f32 v{FS+r}, v{FS+r}")
            A(f"v_mul_f32 v{l}, v{l}, v{al}")
            for r in range(16): A(f"v_add_f32 v{l}, v{l}, v{FS+r}")
            for r in range(8): A(f"v_cvt_pk_bf16_f32 v{FP+r}, v{FS+2*r}, v{FS+2*r+1}")
            for r in range(64): A(f"v_mul_f32 v{FO+r}, v{FO+r}, v{al}")
            A("s_waitcnt vmcnt(0)")
            A("s_nop 1")
            for t in range(2):
                for db in range(4):
                    A(f"v_mfma_f32_32x32x16_bf16 {vr(FO+16*db,16)}, {ar(FV+4*(t*4+db))}, {vr(FP+4*t)}, {vr(FO+16*db,16)}")
            A("s_nop 7"); A("s_nop 7")
            A(f"s_add_u32 s{S_KB_}, s{S_KB_}, 1")
            A(f"s_cmp_le_u32 s{S_KB_}, s{qb}")
            A(f"s_cbranch_scc1 {lp}")
            half_sum(l, t1)
            A(f"v_rcp_f32 v{l}, v{l}")
            A("s_nop 0")
            def rd(db, t, b):
                for r in range(8): A(f"v_mul_f32 v{b+r}, v{FO+16*db+8*t+r}, v{l}")
            store_block(vc, rd)
        le = A.newlabel("AE")
        A(f"s_branch {le}")
        A.label(lfL); fallback_code(V_CL, S_QBL, False); A(f"s_branch {lrL}")
        A.label(lfS); fallback_code(V_CS, S_QBS, True); A(f"s_branch {lrS}")
        A.label(le)
    if g3:
        from bpath import emit_g3
        lx, lsp, lok, lp = A.newlabel("G3X"), A.newlabel("SPIN"), A.newlabel("OK"), A.newlabel("SP")
        A(f"s_cmp_ge_u32 {wgid}, 224"); A(f"s_cbranch_scc1 {lx}")
        A("s_waitcnt vmcnt(16)")
        A(f"v_readfirstlane_b32 s{k2.T2}, v60")
        A(f"s_cmp_ge_u32 s{k2.T2}, 8"); A(f"s_cbranch_scc1 {lok}")
        A(f"s_mov_b32 s{k2.T3}, 65536")
        A.label(lp)
        A("v_mov_b32 v60, 0")
        A(f"buffer_load_dword v60, v60, s[{k2.SRD_DBG}:{k2.SRD_DBG+3}], s{k2.T0} offen sc1")
        A("s_waitcnt vmcnt(0)")
        A(f"v_readfirstlane_b32 s{k2.T2}, v60")
        A(f"s_cmp_ge_u32 s{k2.T2}, 8"); A(f"s_cbranch_scc1 {lok}")
        A("s_sleep 8")
        A(f"s_sub_u32 s{k2.T3}, s{k2.T3}, 1"); A(f"s_cmp_lg_u32 s{k2.T3}, 0"); A(f"s_cbranch_scc1 {lp}")
        A.label(lok)
        A("v_mbcnt_lo_u32_b32 v0, -1, 0"); A("v_mbcnt_hi_u32_b32 v0, -1, v0")
        A(f"s_lshl_b32 s{k2.T2}, s{S_W}, 6"); A(f"v_add_u32 v0, s{k2.T2}, v0")
        A("s_barrier")
        st(7)
        emit_g3(A, wgid, sc1=True, stamp=st)
        A.label(lx)
```

```python
from common import *
WS_STAT = 0x3F80000

def vr(b, n=4): return f"v[{b}:{b+n-1}]"
def ar(b, n=4): return f"a[{b}:{b+n-1}]"

GC0 = "0xc0135761"
GC1 = "0xbdd2d3e8"
import struct
def f2h(x): return "0x%08x" % struct.unpack("<I", struct.pack("<f", x))[0]
import math
_c0 = -2*math.sqrt(2/math.pi)*math.log2(math.e)
GC0 = f2h(_c0); GC1 = f2h(_c0*0.044715)

def gelu_block(A, X, n, T, sc0, sc1):
    for r in range(0, n, 2): A(f"v_pk_mul_f32 {vr(T+r,2)}, {vr(X+r,2)}, {vr(X+r,2)}")
    for r in range(0, n, 2): A(f"v_pk_fma_f32 {vr(T+r,2)}, {vr(T+r,2)}, {vr(sc1,2)}, {vr(sc0,2)}")
    for r in range(0, n, 2): A(f"v_pk_mul_f32 {vr(T+r,2)}, {vr(T+r,2)}, {vr(X+r,2)}")
    for r in range(n): A(f"v_exp_f32 v{T+r}, v{T+r}")
    A("s_nop 0")
    for r in range(n): A(f"v_add_f32 v{T+r}, 1.0, v{T+r}")
    for r in range(n): A(f"v_rcp_f32 v{T+r}, v{T+r}")
    A("s_nop 0")
    for r in range(0, n, 2): A(f"v_pk_mul_f32 {vr(X+r,2)}, {vr(X+r,2)}, {vr(T+r,2)}")

def half_sum(A, x, y, op="v_add_f32"):
    A(f"v_mov_b32 v{y}, v{x}")
    A("s_nop 1")
    A(f"v_permlane32_swap_b32 v{x}, v{y}")
    A("s_nop 1")
    A(f"{op} v{x}, v{x}, v{y}")

def emit_g12(A, which, wgid="s2", sc1=False):
    C = " sc1" if sc1 else ""
    load_ptr(A, 40, KA_W1 if which == 1 else KA_W2); load_ptr(A, 42, KA_WS)
    S_W, S_TB, S_NB, S_T = 24, 25, 26, 27
    A("v_lshrrev_b32 v10, 6, v0")
    A("v_and_b32 v11, 63, v0")
    A(f"v_readfirstlane_b32 s{S_W}, v10")
    A(f"s_and_b32 s{S_TB}, {wgid}, 7"); A(f"s_lshr_b32 s{S_T}, {wgid}, 6"); A(f"s_and_b32 s{S_T}, s{S_T}, 3")
    A(f"s_lshl_b32 s{S_T}, s{S_T}, 3"); A(f"s_add_u32 s{S_TB}, s{S_TB}, s{S_T}")
    A(f"s_lshr_b32 s{S_NB}, {wgid}, 3"); A(f"s_and_b32 s{S_NB}, s{S_NB}, 7")
    A(f"s_lshl_b32 s{S_T}, s{S_TB}, 6")
    A(f"s_lshr_b32 s28, s{S_W}, 1"); A("s_lshl_b32 s28, s28, 5"); A(f"s_add_u32 s{S_T}, s{S_T}, s28")
    A("v_and_b32 v12, 31, v11")
    A(f"v_add_u32 v12, s{S_T}, v12")
    A("v_lshrrev_b32 v13, 5, v11")
    A("v_lshlrev_b32 v13, 8, v13")
    def f16off(dst, tok, stride_sh=14):
        A(f"v_lshrrev_b32 v14, 4, v{tok}")
        A(f"v_lshlrev_b32 v14, {stride_sh}, v14")
        A(f"v_and_b32 v15, 15, v{tok}")
        A(f"v_lshl_add_u32 v14, v15, 4, v14")
        A(f"v_add_u32 v{dst}, v14, v13")
    f16off(1, 12)
    if which == 2:
        for c, d in enumerate((-1, 1, -2, 2)):
            A(f"v_add_u32 v16, {d}, v12")
            f16off(2+c, 16)
            A("v_mov_b32 v17, 0x800")
            A("v_cmp_gt_u32 vcc, v17, v16")
            A("v_bfrev_b32 v17, 1")
            A(f"v_cndmask_b32 v{2+c}, v17, v{2+c}, vcc")
    A("v_lshrrev_b32 v14, 3, v11")
    A("v_lshlrev_b32 v14, 10, v14")
    A("v_bfe_u32 v15, v11, 4, 1")
    A("v_lshlrev_b32 v15, 2, v15")
    A("v_and_b32 v16, 7, v11")
    A("v_xor_b32 v15, v15, v16")
    A("v_lshl_add_u32 v6, v15, 4, v14")
    A(f"s_lshl_b32 s{S_T}, s{S_W}, 15")
    A(f"v_add_u32 v6, s{S_T}, v6")
    A("v_and_b32 v14, 15, v11")
    A("v_lshrrev_b32 v15, 4, v11")
    A("v_lshrrev_b32 v16, 1, v15")
    A("v_lshlrev_b32 v16, 3, v16")
    A("v_lshrrev_b32 v17, 2, v14")
    A("v_add_u32 v16, v16, v17")
    A("v_and_b32 v15, 1, v15")
    A("v_lshlrev_b32 v15, 1, v15")
    A("v_and_b32 v17, 1, v14")
    A("v_add_u32 v15, v15, v17")
    A(f"s_and_b32 s{S_T}, s{S_W}, 1"); A(f"s_lshl_b32 s{S_T}, s{S_T}, 2")
    A(f"v_add_u32 v15, s{S_T}, v15")
    A("v_bfe_u32 v17, v14, 3, 1")
    A("v_lshlrev_b32 v17, 2, v17")
    A("v_xor_b32 v15, v15, v17")
    A("v_lshlrev_b32 v15, 4, v15")
    A("v_lshl_add_u32 v7, v16, 7, v15")
    A("v_bfe_u32 v17, v14, 1, 1")
    A("v_lshl_add_u32 v7, v17, 3, v7")
    A("s_waitcnt lgkmcnt(0)")
    A(f"s_lshl_b32 s{S_T}, s{S_NB}, 7")
    A(f"s_add_u32 s4, s40, s{S_T}"); A("s_addc_u32 s5, s41, 0")
    A(f"s_sub_u32 s6, 0x80000, s{S_T}"); A("s_mov_b32 s7, 0x00020000")
    srd_off(A, 8, 42, WS_XN2F if which == 1 else WS_H, 0x200000)
    srd_off(A, 12, 42, WS_H if which == 1 else WS_X1F, 0x200000)
    if which == 2:
        srd_off(A, 16, 42, WS_XNF, 0x200000)
        srd_off(A, 20, 42, WS_STAT, 0x40000)
    A(f"s_lshl_b32 s29, s{S_W}, 12")
    for c in range(4): A(f"s_mov_b32 s{30+c}, {4096*c}")
    A(f"s_lshl_b32 s34, s{S_NB}, 1"); A(f"s_and_b32 s{S_T}, s{S_W}, 1"); A(f"s_add_u32 s34, s34, s{S_T}")
    A("s_lshl_b32 s35, s34, 3")
    A("s_lshl_b32 s34, s34, 10")
    nv = 0
    marks = []
    for c in range(4):
        for i in range(4):
            A(f"s_add_u32 m0, s29, {c*16384 + i*1024}")
            A(f"s_mov_b32 s36, {c*131072 + i*8192}")
            A(f"buffer_load_dwordx4 v6, s[4:7], s36 offen lds"); nv += 1
        for s in range(8):
            vx = 1 if which == 1 else 2 + c
            A(f"buffer_load_dwordx4 {ar(32*c + 4*s)}, v{vx}, s[8:11], s{30+c} offen offset:{512*s}" + C); nv += 1
        marks.append(nv)
    if which == 2:
        A(f"buffer_load_dwordx4 {vr(40)}, v1, s[16:19], s34 offen" + C)
        A(f"buffer_load_dwordx4 {vr(44)}, v1, s[16:19], s34 offen offset:512" + C)
        nv += 2
    ACC = 16
    for c in range(4):
        A(f"s_waitcnt vmcnt({nv - marks[c]})")
        A("s_barrier")
        for s in range(8):
            for rd in range(2):
                b = 128 + 4*s + 2*rd
                A(f"ds_read_b64_tr_b16 a[{b}:{b+1}], v7 offset:{c*16384 + s*2048 + rd*512}")
        for s in range(8):
            A(f"s_waitcnt lgkmcnt({min(14 - 2*s, 15)})")
            cc = "0" if (c == 0 and s == 0) else vr(ACC, 16)
            A(f"v_mfma_f32_32x32x16_bf16 {vr(ACC,16)}, {ar(128+4*s)}, {ar(32*c+4*s)}, {cc}")
    if which == 1:
        A(f"v_mov_b32 v48, {GC0}"); A(f"v_mov_b32 v49, {GC0}"); A(f"v_mov_b32 v50, {GC1}"); A(f"v_mov_b32 v51, {GC1}")
        A("s_nop 7"); A("s_nop 7")
        gelu_block(A, ACC, 16, 64, 48, 50)
        for r in range(8): A(f"v_cvt_pk_bf16_f32 v{32+r}, v{ACC+2*r}, v{ACC+2*r+1}")
        A(f"buffer_store_dwordx4 {vr(32)}, v1, s[12:15], s34 offen" + C)
        A(f"buffer_store_dwordx4 {vr(36)}, v1, s[12:15], s34 offen offset:512" + C)
    else:
        A("s_waitcnt vmcnt(0)")
        for r in range(8):
            A(f"v_lshlrev_b32 v{64+2*r}, 16, v{40+r}")
            A(f"v_and_b32 v{65+2*r}, 0xffff0000, v{40+r}")
        A("s_nop 7"); A("s_nop 3")
        for r in range(16): A(f"v_add_f32 v{ACC+r}, v{ACC+r}, v{64+r}")
        for r in range(8): A(f"v_cvt_pk_bf16_f32 v{32+r}, v{ACC+2*r}, v{ACC+2*r+1}")
        A(f"buffer_store_dwordx4 {vr(32)}, v1, s[12:15], s34 offen" + C)
        A(f"buffer_store_dwordx4 {vr(36)}, v1, s[12:15], s34 offen offset:512" + C)
        for r in range(8):
            A(f"v_lshlrev_b32 v{64+2*r}, 16, v{32+r}")
            A(f"v_and_b32 v{65+2*r}, 0xffff0000, v{32+r}")
        A("v_add_f32 v48, v64, v65")
        for r in range(2, 16): A(f"v_add_f32 v48, v48, v{64+r}")
        half_sum(A, 48, 50)
        A("v_mul_f32 v48, 0x3d000000, v48")
        for r in range(16): A(f"v_sub_f32 v{64+r}, v{64+r}, v48")
        A("v_mul_f32 v49, v64, v64")
        for r in range(1, 16): A(f"v_fma_f32 v49, v{64+r}, v{64+r}, v49")
        half_sum(A, 49, 50)
        A("v_lshlrev_b32 v50, 7, v12")
        A(f"buffer_store_dwordx2 v[48:49], v50, s[20:23], s35 offen" + C)

def emit_g3(A, wgid="s2", sc1=False, stamp=None):
    C = " sc1" if sc1 else ""
    st = stamp if stamp else (lambda k: None)
    load_ptr(A, 40, KA_W3); load_ptr(A, 42, KA_WS)
    S_W, S_TB, S_NB, S_T = 24, 25, 26, 27
    BR = 64
    ACC = 192
    A("v_lshrrev_b32 v10, 6, v0")
    A("v_and_b32 v11, 63, v0")
    A(f"v_readfirstlane_b32 s{S_W}, v10")
    A(f"s_and_b32 s{S_TB}, {wgid}, 7"); A(f"s_lshr_b32 s{S_T}, {wgid}, 3"); A(f"s_and_b32 s{S_T}, s{S_T}, 3")
    A(f"s_lshl_b32 s{S_T}, s{S_T}, 3"); A(f"s_add_u32 s{S_TB}, s{S_TB}, s{S_T}")
    A(f"s_lshr_b32 s{S_NB}, {wgid}, 5")
    A(f"s_lshl_b32 s{S_T}, s{S_TB}, 6")
    A(f"s_lshr_b32 s28, s{S_W}, 1"); A("s_lshl_b32 s28, s28, 5"); A(f"s_add_u32 s{S_T}, s{S_T}, s28")
    A("v_and_b32 v12, 31, v11")
    A(f"v_add_u32 v12, s{S_T}, v12")
    A("v_lshrrev_b32 v9, 5, v11")
    A("v_lshlrev_b32 v13, 8, v9")
    A("v_lshrrev_b32 v14, 4, v12"); A("v_and_b32 v15, 15, v12")
    A("v_lshl_add_u32 v13, v15, 4, v13")
    A("v_lshl_add_u32 v1, v14, 14, v13")
    A("s_mov_b32 s28, 57344")
    A("v_mul_lo_u32 v14, v14, s28")
    A("v_add_u32 v2, v14, v13")
    A("v_lshlrev_b32 v3, 7, v12")
    A("v_lshl_add_u32 v3, v9, 6, v3")
    A("v_lshrrev_b32 v14, 4, v11")
    A("v_and_b32 v15, 15, v11")
    A("v_lshlrev_b32 v16, 2, v14")
    A("v_xor_b32 v16, v15, v16")
    A("v_lshlrev_b32 v16, 4, v16")
    A("s_mov_b32 s28, 3584")
    A("v_mul_lo_u32 v17, v14, s28")
    A("v_add_u32 v6, v16, v17")
    A(f"s_lshr_b32 s28, s{S_W}, 1"); A(f"s_mul_i32 s28, s28, {32*3584}")
    A(f"s_and_b32 s{S_T}, s{S_W}, 1"); A(f"s_lshl_b32 s{S_T}, s{S_T}, 8"); A(f"s_add_u32 s28, s28, s{S_T}")
    A("v_add_u32 v6, s28, v6")
    A("v_lshrrev_b32 v16, 2, v15")
    A("v_lshrrev_b32 v17, 1, v14")
    A("v_lshl_add_u32 v17, v17, 3, v16")
    A("v_lshlrev_b32 v17, 8, v17")
    A("v_and_b32 v18, 1, v14")
    A("v_lshl_add_u32 v17, v18, 5, v17")
    A("v_and_b32 v18, 3, v15")
    A("v_lshl_add_u32 v17, v18, 3, v17")
    A(f"s_and_b32 s{S_T}, s{S_W}, 1"); A(f"s_lshl_b32 s{S_T}, s{S_T}, 14")
    A(f"v_add_u32 v17, s{S_T}, v17")
    for db in range(4):
        A(f"v_xor_b32 v18, {db}, v16")
        A(f"v_lshl_add_u32 v{20+db}, v18, 6, v17")
    A("s_waitcnt lgkmcnt(0)")
    A(f"s_lshl_b32 s{S_T}, s{S_NB}, 9")
    A(f"s_add_u32 s4, s40, s{S_T}"); A("s_addc_u32 s5, s41, 0")
    A(f"s_sub_u32 s6, {512*3584}, s{S_T}"); A("s_mov_b32 s7, 0x00020000")
    srd_off(A, 8, 42, WS_X1F, 0x200000)
    srd_off(A, 12, 42, WS_H3F, 128*57344)
    srd_off(A, 16, 42, WS_STAT, 0x40000)
    A(f"s_and_b32 s29, s{S_W}, 1"); A("s_lshl_b32 s29, s29, 14")
    A(f"s_lshr_b32 s28, s{S_W}, 1"); A("s_lshl_b32 s28, s28, 13"); A("s_add_u32 s29, s29, s28")
    for c in range(4): A(f"s_mov_b32 s{30+c}, {4096*c}")
    A(f"s_lshl_b32 s34, s{S_NB}, 1"); A(f"s_and_b32 s{S_T}, s{S_W}, 1"); A(f"s_add_u32 s34, s34, s{S_T}")
    A("s_lshl_b32 s34, s34, 12")
    q = []
    def wdma(c):
        for i in range(8):
            yield [f"s_add_u32 m0, s29, {(c&3)*32768 + i*1024}",
                   f"s_mov_b32 s36, {(64*c + 4*i)*3584}",
                   f"buffer_load_dwordx4 v6, s[4:7], s36 offen lds"]
    def issue(groups, tag):
        for g in groups:
            for t in g:
                A(t)
                if t.startswith("buffer_"): q.append(tag)
    def cnt(tags):
        last = max(i for i, t in enumerate(q) if t in tags)
        return len(q) - 1 - last
    def bl(s): return [f"buffer_load_dwordx4 {vr(BR+4*s)}, v1, s[8:11], s{30+(s>>3)} offen offset:{512*(s&7)}" + C]
    issue([[f"buffer_load_dwordx4 {vr(32+4*i)}, v3, s[16:19], 0 offen offset:{16*i}" + C] for i in range(4)], "ST")
    issue(wdma(0), "W0")
    issue([bl(s) for s in range(8)], "B0")
    issue(wdma(1), "W1")
    issue([bl(s) for s in range(8, 16)], "B1")
    issue(wdma(2), "W2")
    issue([bl(s) for s in range(16, 24)], "B2")
    st(20)
    A(f"s_waitcnt vmcnt({cnt(['ST'])})")
    st(21)
    A("v_add_f32 v48, v32, v34")
    for i in range(2, 8): A(f"v_add_f32 v48, v48, v{32+2*i}")
    half_sum(A, 48, 50)
    A("v_mul_f32 v48, 0x3d800000, v48")
    for i in range(8): A(f"v_sub_f32 v{32+2*i}, v{32+2*i}, v48")
    A("v_mul_f32 v49, v32, v32")
    for i in range(1, 8): A(f"v_fma_f32 v49, v{32+2*i}, v{32+2*i}, v49")
    A("v_add_f32 v51, v33, v35")
    for i in range(2, 8): A(f"v_add_f32 v51, v51, v{33+2*i}")
    A("v_mov_b32 v52, 0x42000000")
    A("v_fma_f32 v49, v49, v52, v51")
    half_sum(A, 49, 50)
    A("v_mov_b32 v50, 0x3727c5ac")
    A("v_fmac_f32 v50, 0x3b000000, v49")
    A("v_rsq_f32 v50, v50")
    A("s_nop 0")
    A("v_mov_b32 v51, v50")
    A("v_mul_f32 v52, v48, v50")
    A("v_sub_f32 v52, 0, v52")
    A("v_mov_b32 v53, v52")
    def norm(s):
        R = []
        b = BR + 4*s; T = 32 + 8*(s & 1)
        for r in range(4):
            R.append(f"v_lshlrev_b32 v{T+2*r}, 16, v{b+r}")
            R.append(f"v_and_b32 v{T+2*r+1}, 0xffff0000, v{b+r}")
        for r in range(4): R.append(f"v_pk_fma_f32 {vr(T+2*r,2)}, {vr(T+2*r,2)}, {vr(50,2)}, {vr(52,2)}")
        for r in range(4): R.append(f"v_cvt_pk_bf16_f32 v{b+r}, v{T+2*r}, v{T+2*r+1}")
        return R
    def wreads(s):
        c = s >> 2; ks = s & 3; p = s & 1
        R = []
        for db in range(4):
            for rd in range(2):
                b = 16*p + 4*db + 2*rd
                R.append(f"ds_read_b64_tr_b16 a[{b}:{b+1}], v{20+db} offset:{(c&1)*32768 + ks*4096 + rd*1024}")
        return R
    A(f"s_waitcnt vmcnt({cnt(['W0','B0'])})")
    A("s_barrier")
    st(22)
    issue([bl(s) for s in range(24, 32)], "B3")
    issue(wdma(3), "W3")
    for t in wreads(0): A(t)
    for t in norm(0): A(t)
    for t in norm(1): A(t)
    for s in range(32):
        c = s >> 2; p = s & 1
        last = (s & 3) == 3
        pre = ["s_waitcnt lgkmcnt(0)"]
        if last and c < 7:
            n = cnt([f"W{c+1}"])
            pre = [f"s_waitcnt vmcnt({n}) lgkmcnt(0)", "s_barrier"]
            if (c + 1) % 2 == 0:
                for db in range(4): pre.append(f"v_xor_b32 v{20+db}, 0x10000, v{20+db}")
        if s + 2 < 32 and ((s + 2) & 7) == 0:
            n = cnt([f"B{(s+2)>>3}"])
            pre.insert(0, f"s_waitcnt vmcnt({n})")
        for t in pre: A(t)
        M = [f"v_mfma_f32_32x32x16_bf16 {vr(ACC+16*db,16)}, {ar(16*p+4*db)}, {vr(BR+4*s)}, " + ("0" if s == 0 else vr(ACC+16*db,16)) for db in range(4)]
        F = []
        if s + 1 < 32:
            R = wreads(s+1)
            for k, t in enumerate(R): F.append((0 if k < 6 else 1, t))
        if s + 2 < 32:
            N = norm(s+2)
            for k, t in enumerate(N): F.append((1 if k < 4 else (2 if k < 10 else 3), t))
        if last and c + 4 <= 7:
            G = list(wdma(c + 4))
            for k, g in enumerate(G):
                for t in g:
                    F.append((k >> 1, t))
                    if t.startswith("buffer_"): q.append(f"W{c+4}")
        interleave(A, M, F)
    st(23)
    A(f"v_mov_b32 v48, {GC0}"); A(f"v_mov_b32 v49, {GC0}"); A(f"v_mov_b32 v50, {GC1}"); A(f"v_mov_b32 v51, {GC1}")
    A("s_nop 7"); A("s_nop 7")
    for db in range(4):
        X = ACC + 16*db
        gelu_block(A, X, 16, 64, 48, 50)
        o = 32 + 8*(db & 1)
        for r in range(8): A(f"v_cvt_pk_bf16_f32 v{o+r}, v{X+2*r}, v{X+2*r+1}")
        A(f"buffer_store_dwordx4 {vr(o)}, v2, s[12:15], s34 offen offset:{1024*db}")
        A(f"buffer_store_dwordx4 {vr(o+4)}, v2, s[12:15], s34 offen offset:{1024*db+512}")
```

```python
from common import *
from bpath import vr, ar, half_sum, WS_STAT
SRD_B, SRD_W2, SRD_DBG = 76, 80, 84
S_M0, S_OUT, S_ST = 88, 89, 90
T0, T1, T2, T3 = 49, 55, 60, 61
V_U, V_SH, V_WD, V_TR, V_TOK, V_T = 96, 97, 101, 102, 103, 104
V_SIG, V_ONE = 62, 63
BF = 128
ACC, XR = 32, 48
OFF_X1F, OFF_STAT = WS_X1F - WS_H, WS_STAT - WS_H

def g2_ptrs(A):
    load_ptr(A, SRD_W2, KA_W2); load_ptr(A, SRD_DBG, KA_DBG)

def g2_setup(A, wgid, S_W, lane, ws):
    a, b, c, d, e = V_T, V_T+1, V_T+2, V_T+3, V_T+4
    A(f"s_and_b32 s{T0}, {wgid}, 7"); A(f"s_lshr_b32 s{T2}, {wgid}, 6"); A(f"s_and_b32 s{T2}, s{T2}, 3")
    A(f"s_lshl_b32 s{T2}, s{T2}, 3"); A(f"s_add_u32 s{T0}, s{T0}, s{T2}")
    A(f"s_lshr_b32 s{T1}, {wgid}, 3"); A(f"s_and_b32 s{T1}, s{T1}, 7")
    A(f"s_lshl_b32 s{T2}, s{T0}, 6")
    A(f"s_lshr_b32 s{T3}, s{S_W}, 1"); A(f"s_lshl_b32 s{T3}, s{T3}, 5"); A(f"s_add_u32 s{T2}, s{T2}, s{T3}")
    A(f"v_and_b32 v{V_TOK}, 31, v{lane}")
    A(f"v_add_u32 v{V_TOK}, s{T2}, v{V_TOK}")
    A(f"v_lshrrev_b32 v{a}, 5, v{lane}"); A(f"v_lshlrev_b32 v{a}, 8, v{a}")
    def f16off(dst, tok):
        A(f"v_lshrrev_b32 v{b}, 4, v{tok}"); A(f"v_lshlrev_b32 v{b}, 14, v{b}")
        A(f"v_and_b32 v{c}, 15, v{tok}"); A(f"v_lshl_add_u32 v{b}, v{c}, 4, v{b}")
        A(f"v_add_u32 v{dst}, v{b}, v{a}")
    f16off(V_U, V_TOK)
    for cc, dd in enumerate((-1, 1, -2, 2)):
        A(f"v_add_u32 v{d}, {dd}, v{V_TOK}")
        f16off(V_SH+cc, d)
        A(f"v_mov_b32 v{e}, 0x800")
        A(f"v_cmp_gt_u32 vcc, v{e}, v{d}")
        A(f"v_bfrev_b32 v{e}, 1")
        A(f"v_cndmask_b32 v{V_SH+cc}, v{e}, v{V_SH+cc}, vcc")
    A(f"v_lshrrev_b32 v{a}, 3, v{lane}"); A(f"v_lshlrev_b32 v{a}, 10, v{a}")
    A(f"v_bfe_u32 v{b}, v{lane}, 4, 1"); A(f"v_lshlrev_b32 v{b}, 2, v{b}")
    A(f"v_and_b32 v{c}, 7, v{lane}"); A(f"v_xor_b32 v{b}, v{b}, v{c}")
    A(f"v_lshl_add_u32 v{V_WD}, v{b}, 4, v{a}")
    A(f"s_lshl_b32 s{T2}, s{S_W}, 15"); A(f"v_add_u32 v{V_WD}, s{T2}, v{V_WD}")
    A(f"v_and_b32 v{a}, 15, v{lane}"); A(f"v_lshrrev_b32 v{b}, 4, v{lane}")
    A(f"v_lshrrev_b32 v{c}, 1, v{b}"); A(f"v_lshlrev_b32 v{c}, 3, v{c}")
    A(f"v_lshrrev_b32 v{d}, 2, v{a}"); A(f"v_add_u32 v{c}, v{c}, v{d}")
    A(f"v_and_b32 v{b}, 1, v{b}"); A(f"v_lshlrev_b32 v{b}, 1, v{b}")
    A(f"v_and_b32 v{d}, 1, v{a}"); A(f"v_add_u32 v{b}, v{b}, v{d}")
    A(f"s_and_b32 s{T2}, s{S_W}, 1"); A(f"s_lshl_b32 s{T2}, s{T2}, 2"); A(f"v_add_u32 v{b}, s{T2}, v{b}")
    A(f"v_bfe_u32 v{d}, v{a}, 3, 1"); A(f"v_lshlrev_b32 v{d}, 2, v{d}"); A(f"v_xor_b32 v{b}, v{b}, v{d}")
    A(f"v_lshlrev_b32 v{b}, 4, v{b}")
    A(f"v_lshl_add_u32 v{V_TR}, v{c}, 7, v{b}")
    A(f"v_bfe_u32 v{d}, v{a}, 1, 1")
    A(f"v_lshl_add_u32 v{V_TR}, v{d}, 3, v{V_TR}")
    A(f"s_lshl_b32 s{T2}, s{T0}, 3"); A(f"v_mov_b32 v{V_SIG}, s{T2}"); A(f"v_bfrev_b32 v{a}, 1")
    A(f"s_lshl_b32 s{T3}, s{S_W}, 6"); A(f"v_add_u32 v{b}, s{T3}, v{lane}")
    A(f"v_cmp_eq_u32 vcc, 0, v{b}"); A("s_nop 1")
    A(f"v_cndmask_b32 v{V_SIG}, v{a}, v{V_SIG}, vcc")
    A(f"v_mov_b32 v{V_ONE}, 1")
    A(f"s_lshl_b32 s{T2}, s{T1}, 7")
    A(f"s_add_u32 s{SRD_W2}, s{SRD_W2}, s{T2}"); A(f"s_addc_u32 s{SRD_W2+1}, s{SRD_W2+1}, 0")
    A(f"s_sub_u32 s{SRD_W2+2}, 0x80000, s{T2}"); A(f"s_mov_b32 s{SRD_W2+3}, 0x00020000")
    srd_off(A, SRD_B, ws, WS_H, OFF_STAT + 0x40000)
    A(f"s_mov_b32 s{SRD_DBG+2}, 256"); A(f"s_mov_b32 s{SRD_DBG+3}, 0x00020000")
    A(f"s_lshl_b32 s{S_M0}, s{S_W}, 12")
    A(f"s_lshl_b32 s{S_OUT}, s{T1}, 1"); A(f"s_and_b32 s{T2}, s{S_W}, 1"); A(f"s_add_u32 s{S_OUT}, s{S_OUT}, s{T2}")
    A(f"s_lshl_b32 s{S_ST}, s{S_OUT}, 3"); A(f"s_add_u32 s{S_ST}, s{S_ST}, {hex(OFF_STAT)}")
    A(f"s_lshl_b32 s{S_OUT}, s{S_OUT}, 10")

def g2_loads(c):
    G = []
    for i in range(4):
        G.append([f"s_add_u32 m0, s{S_M0}, {c*16384 + i*1024}", f"s_mov_b32 s{T3}, {c*131072 + i*8192}",
                  f"buffer_load_dwordx4 v{V_WD}, s[{SRD_W2}:{SRD_W2+3}], s{T3} offen lds"])
    for s in range(8):
        G.append(([f"s_mov_b32 s{T2}, {4096*c}"] if s == 0 else []) +
                 [f"buffer_load_dwordx4 {vr(BF + 32*c + 4*s)}, v{V_SH+c}, s[{SRD_B}:{SRD_B+3}], s{T2} offen offset:{512*s}"])
    return G
def g2_xloads(srd_xn):
    return [[f"buffer_load_dwordx4 {vr(XR)}, v{V_U}, s[{srd_xn}:{srd_xn+3}], s{S_OUT} offen"],
            [f"buffer_load_dwordx4 {vr(XR+4)}, v{V_U}, s[{srd_xn}:{srd_xn+3}], s{S_OUT} offen offset:512"]]
def g2_wreads(c):
    R = []
    for s in range(8):
        for rd in range(2):
            b = 128 + 4*s + 2*rd
            R.append(f"ds_read_b64_tr_b16 a[{b}:{b+1}], v{V_TR} offset:{c*16384 + s*2048 + rd*512}")
    return R
def g2_mfma(c, s):
    cc = "0" if (c == 0 and s == 0) else vr(ACC, 16)
    return f"v_mfma_f32_32x32x16_bf16 {vr(ACC,16)}, {ar(128+4*s)}, {vr(BF+32*c+4*s)}, {cc}"
def g2_epilogue(A, vm):
    X = 64
    for r in range(8):
        A(f"v_lshlrev_b32 v{X+2*r}, 16, v{XR+r}")
        A(f"v_and_b32 v{X+2*r+1}, 0xffff0000, v{XR+r}")
    A("s_nop 7")
    for r in range(16): A(f"v_add_f32 v{ACC+r}, v{ACC+r}, v{X+r}")
    P = 80
    for r in range(8): A(f"v_cvt_pk_bf16_f32 v{P+r}, v{ACC+2*r}, v{ACC+2*r+1}")
    A(f"s_add_u32 s{T2}, s{S_OUT}, {hex(OFF_X1F)}")
    A(f"buffer_store_dwordx4 {vr(P)}, v{V_U}, s[{SRD_B}:{SRD_B+3}], s{T2} offen sc1"); vm.issue("G2S")
    A(f"buffer_store_dwordx4 {vr(P+4)}, v{V_U}, s[{SRD_B}:{SRD_B+3}], s{T2} offen offset:512 sc1"); vm.issue("G2S")
    for r in range(8):
        A(f"v_lshlrev_b32 v{X+2*r}, 16, v{P+r}")
        A(f"v_and_b32 v{X+2*r+1}, 0xffff0000, v{P+r}")
    m, q, t = 88, 89, 90
    A(f"v_add_f32 v{m}, v{X}, v{X+1}")
    for r in range(2, 16): A(f"v_add_f32 v{m}, v{m}, v{X+r}")
    half_sum(A, m, t)
    A(f"v_mul_f32 v{m}, 0x3d000000, v{m}")
    for r in range(16): A(f"v_sub_f32 v{X+r}, v{X+r}, v{m}")
    A(f"v_mul_f32 v{q}, v{X}, v{X}")
    for r in range(1, 16): A(f"v_fma_f32 v{q}, v{X+r}, v{X+r}, v{q}")
    half_sum(A, q, t)
    A(f"v_lshlrev_b32 v{t}, 7, v{V_TOK}")
    A(f"buffer_store_dwordx2 v[{m}:{q}], v{t}, s[{SRD_B}:{SRD_B+3}], s{S_ST} offen sc1"); vm.issue("G2S")
def g2_signal():
    return f"buffer_atomic_add v{V_ONE}, v{V_SIG}, s[{SRD_DBG}:{SRD_DBG+3}], 0 offen sc1"
```

```python
import sys
from common import *
from kv import emit_kv
from ln import emit_ln
from attn import emit_attn
from bpath import emit_g12, emit_g3
from fin import emit_final
from attn2 import emit_attn2
from k1 import emit_k1
HEADER = open("../cdna_kernels/recurrent_scan__compressed_kv_cla__mixer_s_mlp__prompt.s.ref").read().split("; Override")[0]
def stamp_begin(A):
    A("s_memtime s[96:97]"); A("s_memrealtime s[98:99]"); A("v_lshrrev_b32 v1, 6, v0"); A("s_nop 1"); A("v_readfirstlane_b32 s91, v1")
def mk_stamp(A):
    def st(k):
        A(f"s_memtime s[{62+2*k}:{63+2*k}]")
    return st
def stamp_dump(A, n, wg=17):
    l = A.newlabel("ST")
    A("s_memtime s[92:93]"); A("s_memrealtime s[94:95]")
    A("s_load_dwordx2 s[8:9], s[0:1], 96")
    A("s_waitcnt lgkmcnt(0)")
    A(f"s_cmp_lg_u32 s2, {wg}"); A(f"s_cbranch_scc1 {l}")
    A("s_add_u32 s4, s8, 256"); A("s_addc_u32 s5, s9, 0"); A("s_mov_b32 s6, 256"); A("s_mov_b32 s7, 0x00020000")
    A("s_lshl_b32 s91, s91, 6"); A("v_mov_b32 v1, s91")
    A("v_mbcnt_lo_u32_b32 v4, -1, 0"); A("v_mbcnt_hi_u32_b32 v4, -1, v4")
    A("v_cmp_eq_u32 vcc, 0, v4"); A("s_and_saveexec_b64 s[12:13], vcc")
    for k in range(n):
        A(f"s_sub_u32 s10, s{62+2*k}, s96"); A("v_mov_b32 v2, s10")
        A(f"buffer_store_dword v2, v1, s[4:7], 0 offen offset:{4*k}")
    A("s_sub_u32 s92, s92, s96"); A("s_sub_u32 s94, s94, s98")
    A("v_mov_b32 v2, s92"); A("v_mov_b32 v3, s94")
    A(f"buffer_store_dwordx2 v[2:3], v1, s[4:7], 0 offen offset:{4*n}")
    A("s_waitcnt vmcnt(0)")
    A.label(l)
def emit_lid(A, per, lds_addr=0):
    sk, tr, got = A.newlabel("SK"), A.newlabel("TR"), A.newlabel("GOT")
    A("s_load_dwordx2 s[4:5], s[0:1], 96")
    A("s_getreg_b32 s3, hwreg(HW_REG_XCC_ID, 0, 4)")
    A("v_readfirstlane_b32 s6, v0")
    A(f"v_mov_b32 v2, {lds_addr}")
    A("s_cmp_lg_u32 s6, 0"); A(f"s_cbranch_scc1 {sk}")
    A("s_mov_b64 exec, 1")
    A("s_mov_b32 s7, 0")
    A("v_mov_b32 v1, 1")
    A("s_waitcnt lgkmcnt(0)")
    A.label(tr)
    A("s_add_u32 s8, s3, s7"); A("s_and_b32 s8, s8, 7")
    A("s_lshl_b32 s9, s8, 5"); A("v_mov_b32 v3, s9")
    A("global_atomic_add v4, v3, v1, s[4:5] sc0 sc1")
    A("s_waitcnt vmcnt(0)")
    A("v_readfirstlane_b32 s9, v4")
    A(f"s_cmp_lt_u32 s9, {per}"); A(f"s_cbranch_scc1 {got}")
    A("s_add_u32 s7, s7, 1"); A("s_cmp_lt_u32 s7, 8"); A(f"s_cbranch_scc1 {tr}")
    A("s_mov_b32 s9, 0x1000")
    A.label(got)
    A("s_lshl_b32 s9, s9, 3"); A("s_add_u32 s9, s9, s8")
    A("v_mov_b32 v1, s9")
    A("ds_write_b32 v2, v1")
    A("s_mov_b64 exec, -1")
    A.label(sk)
    A("s_waitcnt lgkmcnt(0)"); A("s_barrier")
    A("ds_read_b32 v1, v2")
    A("s_waitcnt lgkmcnt(0)")
    A("v_readfirstlane_b32 s2, v1")
    A("s_barrier")
LID = [False]
UID = [0]
def simple_kernel(name, emit, grid, lds, stamp=False, nst=8, wg=17, vgpr=512, accum=256):
    A = Asm(); UID[0] += 100000; A.uid = UID[0]
    kernel_begin(A, name)
    e = A.newlabel("END")
    A(f"s_cmp_ge_u32 s2, {grid}"); A(f"s_cbranch_scc1 {e}")
    if LID[0]:
        emit_lid(A, grid // 8)
        A(f"s_cmp_ge_u32 s2, {grid}"); A(f"s_cbranch_scc1 {e}")
        lds = max(lds, 64)
    if stamp:
        stamp_begin(A)
        for k in range(nst): A(f"s_mov_b64 s[{62+2*k}:{63+2*k}], 0") if False else None
    emit(A, mk_stamp(A) if stamp else None)
    A("s_waitcnt vmcnt(0)")
    if stamp: stamp_dump(A, nst, wg)
    A.label(e); A("s_endpgm")
    return A.text(), kernel_desc(name, vgpr=vgpr, accum=accum), (name, grid, 256, lds)
def emit_prefetch(A):
    mats = [(KA_CKV, 0x200000), (KA_WUK, 0x400000), (KA_WUV, 0x400000), (KA_W1, 0x80000), (KA_W2, 0x80000), (KA_W3, 0x1c0000), (KA_WQ, 0x400000), (KA_WO, 0x400000), (KA_W4, 0x1c0000)]
    for i, (ka, sz) in enumerate(mats): A(f"s_load_dwordx2 s[{44+2*i}:{45+2*i}], s[0:1], {ka}")
    A("v_lshlrev_b32 v58, 4, v0")
    A("s_lshl_b32 s70, s2, 14")
    A("v_and_b32 v59, 63, v0"); A("v_lshlrev_b32 v59, 4, v59")
    A("v_lshrrev_b32 v57, 6, v0"); A("v_lshlrev_b32 v57, 12, v57")
    A("v_add_u32 v58, v57, v59"); A("v_add_u32 v58, s70, v58")
    A("s_waitcnt lgkmcnt(0)")
    for i, (ka, sz) in enumerate(mats):
        A(f"s_mov_b32 s72, s{44+2*i}"); A(f"s_mov_b32 s73, s{45+2*i}"); A(f"s_mov_b32 s74, {hex(sz)}"); A("s_mov_b32 s75, 0x00020000")
        for k in range(4): A(f"buffer_load_dwordx4 v[60:63], v58, s[72:75], 0 offen offset:{k*1024}")
def k_lnp(): return simple_kernel("ln_kernel", lambda A, st: (emit_ln(A), emit_prefetch(A)), 256, 0, False, vgpr=64, accum=64)
def k_pln(): return simple_kernel("ln_kernel", lambda A, st: (emit_prefetch(A), emit_ln(A)), 256, 0, False, vgpr=64, accum=64)
def k_kv(stamp=False): return simple_kernel("kv_kernel", lambda A, st: emit_kv(A, stamp=st), 256, 131072, stamp)
def k_ln(stamp=False): return simple_kernel("ln_kernel", lambda A, st: emit_ln(A), 256, 0, stamp, vgpr=64, accum=64)
def k_attn(stamp=False, wg=17, nst=7): return simple_kernel("attn_kernel", lambda A, st: emit_attn(A, stamp=st), 256, 163840, stamp, nst=nst, wg=wg)
def k_g1(): return simple_kernel("g1_kernel", lambda A, st: emit_g12(A, 1), 256, 65536)
def k_g2(): return simple_kernel("g2_kernel", lambda A, st: emit_g12(A, 2), 256, 65536)
def k_g3(): return simple_kernel("g3_kernel", lambda A, st: emit_g3(A), 224, 131072)
def k_fin(stamp=False): return simple_kernel("fin_kernel", lambda A, st: emit_final(A, stamp=st), 256, 131072, stamp, nst=5)
def k_k1(stamp=False): return simple_kernel("k1_kernel", lambda A, st: emit_k1(A, stamp=st), 256, 131072, stamp, nst=7)
def k_k2(stamp=False, g2=True, g3=True, wg=17): return simple_kernel("attn_kernel", lambda A, st: emit_attn2(A, stamp=st, g2=g2, g3=g3), 256, 163840, stamp, nst=7, wg=wg)
def k_attn_plain(): return simple_kernel("attn_kernel", lambda A, st: emit_attn(A), 256, 163840)
def k_attn2(stamp=False, wg=17, nst=6): return simple_kernel("attn_kernel", lambda A, st: emit_attn2(A, stamp=st), 256, 163840, stamp, nst=nst, wg=wg)
def write(parts, outp):
    open(outp, "w").write(file_text([p[2] for p in parts], "".join(p[0] for p in parts), [p[1] for p in parts], HEADER))
if __name__ == "__main__":
    what = sys.argv[1]; outp = sys.argv[2]
    parts = []
    if what.endswith("x"): LID[0] = True; what = what[:-1]
    if what == "kv": parts = [k_kv(True)]
    if what == "attn": parts = [k_ln(), k_kv(), k_attn(True)]
    if what == "attnf":
        import attn; attn.FINE = True
        parts = [k_ln(), k_kv(), k_attn(True, nst=14)]
    if what == "bpath": parts = [k_ln(), k_g1(), k_g2(), k_g3()]
    if what == "full": parts = [k_ln(), k_kv(), k_g1(), k_g2(), k_g3(), k_attn_plain(), k_fin()]
    if what == "attn2": parts = [k_ln(), k_kv(), k_attn2(True)]
    if what == "full2": parts = [k_ln(), k_kv(), k_g1(), k_g2(), k_g3(), k_attn2(False), k_fin()]
    if what == "full2p": parts = [k_lnp(), k_kv(), k_g1(), k_g2(), k_g3(), k_attn2(False), k_fin()]
    if what == "full2q": parts = [k_pln(), k_kv(), k_g1(), k_g2(), k_g3(), k_attn2(False), k_fin()]
    if what == "finst": parts = [k_pln(), k_kv(), k_g1(), k_g2(), k_g3(), k_attn2(False), k_fin(True)]
    if what == "f3a": parts = [k_k1(), k_g2(), k_g3(), k_attn2(False), k_fin()]
    if what == "k1st": parts = [k_k1(True), k_g2(), k_g3(), k_attn2(False), k_fin()]
    if what == "f3b": parts = [k_k1(), k_k2(), k_fin()]
    if what == "f4a": parts = [k_k1(), k_k2(g3=2), k_fin()]
    if what == "f4st": parts = [k_k1(), k_k2(True, g3=2), k_fin()]
    if what == "f3c": parts = [k_k1(), k_k2(g3=False), k_g3(), k_fin()]
    if what == "k2st": parts = [k_k1(), k_k2(True), k_fin()]
    write(parts, outp)
```

```python
from common import *

V_QLA, V_X, V_Y, V_DMA = 0, 1, 2, 3
E = (4, 6)
L0S, L1S, L0L, L1L = 8, 10, 12, 14
S0, S1, P0, P1 = 16, 32, 48, 56
Q0, Q1 = 64, 96
KF, VF = 128, 160
BA0, BA1, BB0, BB1 = 192, 208, 224, 240
O_S, O_L = 0, 128
S_W, S_HEAD, S_J = 20, 21, 22
S_MX, S_K, S_KB, S_VA, S_VP, S_CNT = 23, 24, 25, 26, 27, 28
S_QBS, S_QBL, S_A, S_B, S_D = 31, 32, 33, 34, 35
S_CSO, S_TMP, S_TMP2 = 36, 37, 38
S_WS, S_WM, S_W4K = 39, 44, 30
SRD_KV, SRD_WQ, SRD_XN, SRD_CTX, SRD_QS = 4, 8, 12, 16, 56
LDS_X = 131072
KE, KO, VE, VO = 0, 16384, 32768, 49152
NEG = "0xff800000"
WS_QS = 0x5000000

def ar(b, n=4): return f"a[{b}:{b+n-1}]"
def vr(b, n=4): return f"v[{b}:{b+n-1}]"

class VM:
    def __init__(s): s.q = []
    def issue(s, tag): s.q.append(tag)
    def cnt(s, tags):
        last = max(i for i, t in enumerate(s.q) if t in tags)
        return len(s.q) - 1 - last

def qk(S, q, c):
    M = []
    for s in range(8):
        cc = c if s == 0 else vr(S, 16)
        M.append(f"v_mfma_f32_32x32x16_bf16 {vr(S,16)}, {vr(KF+4*s)}, {vr(q+4*s)}, {cc}")
    return M
def pv(P, o):
    M = []
    for t in range(2):
        for db in range(4):
            M.append(f"v_mfma_f32_32x32x16_bf16 {ar(o+16*db,16)}, {vr(VF+4*(t*4+db))}, {vr(P+4*t)}, {ar(o+16*db,16)}")
    return M

import os
X = os.environ.get("X", "").split(",")
STD_Q = ["K6", "V2", "K7", "V3"]

def step(A, par, qk0, qk1, o, sm1, tr0, sm0, tr1, dmaV=True, dmaK=True, rdK=True, rdV2=True, rdV1=True,
         nprev=8, salu=None, extra=None, entry=STD_Q, barrier=True, nops=None, std_exit=True):
    salu = salu or {}; extra = extra or {}; nops = nops or {}
    M = [None]*32
    if qk0 is not None: M[0:8] = qk(S0, Q0, qk0)
    if qk1 is not None: M[16:24] = qk(S1, Q1, qk1)
    if o is not None:
        M[8:16] = pv(P0, o); M[24:32] = pv(P1, o + 64)
    G = {g: [] for g in range(32)}
    def add2(l, e): return [f"v_add_f32 v{l}, v{l}, v{e}", f"v_add_f32 v{l+1}, v{l+1}, v{e+1}"]
    def sm(base, S, P, L, tr):
        if tr is not None and L is None:
            G[base] += add2(tr, E[1])
        if L is None: return
        for k in range(8):
            e = E[k & 1]; g = base + 2*k
            G[g].append(f"v_exp_f32 v{e}, v{S+2*k}")
            G[g].append(f"v_exp_f32 v{e+1}, v{S+2*k+1}")
            if k == 0:
                if tr is not None: G[g] += add2(tr, E[1])
                else: G[g].append("s_nop 0")
            else:
                G[g] += add2(L, E[(k-1)&1])
            G[g+1].append(f"v_cvt_pk_bf16_f32 v{P+k}, v{e}, v{e+1}")
    sm(0, S1, P1, sm1, tr0)
    sm(16, S0, P0, sm0, tr1)
    q = list(entry)
    if par == 0: aV1, oV1, aK, oK, aV2, oV2 = V_X, VE, V_Y, KE, V_X, VO
    else:        aV1, oV1, aK, oK, aV2, oV2 = V_X, VO, V_Y, KO, V_Y, VE
    R = {g: [] for g in range(32)}
    if rdV1:
        for i in range(4): R[1+2*i].append((f"V{4+i}", f"ds_read_b128 {vr(VF+4*(4+i))}, v{aV1} offset:{oV1+(4+i)*1024}"))
    if rdK:
        for s in range(8): R[17+2*s].append((f"K{s}", f"ds_read_b128 {vr(KF+4*s)}, v{aK} offset:{oK+s*1024}"))
    if rdV2:
        for i in range(4): R[25+2*i].append((f"V{i}", f"ds_read_b128 {vr(VF+4*i)}, v{aV2} offset:{oV2+i*1024}"))
    for g, l in extra.items(): R[g] += l
    if par == 0: mV, sV, mK, sK = f"s_xor_b32 m0, s{S_MX}, 0x1c000", S_VP, f"s_mov_b32 m0, s{S_MX}", S_K
    else:        mV, sV, mK, sK = f"s_or_b32 m0, s{S_MX}, 0x8000", S_VA, f"s_or_b32 m0, s{S_MX}, 0x4000", S_KB
    D = {g: [] for g in range(32)}
    nb = 0
    if dmaV:
        for i, g in enumerate((1, 3, 7, 9)):
            D[g].append(f"buffer_load_dwordx4 v{V_DMA}, s[{SRD_KV}:{SRD_KV+3}], s{sV} offen offset:{i*1024} lds"); nb += 1
    if dmaK:
        for i, g in enumerate((13, 17, 19, 21)):
            D[g].append(f"buffer_load_dwordx4 v{V_DMA}, s[{SRD_KV}:{SRD_KV+3}], s{sK} offen offset:{i*1024} lds")
            if g < 15: nb += 1
    def wait(tags):
        idx = [i for i, t in enumerate(q) if t in tags]
        if not idx: return None
        n = len(q) - 1 - max(idx)
        del q[:max(idx)+1]
        return f"s_waitcnt lgkmcnt({min(n,15)})"
    waits = {5: ["K6", "K7", "V2", "V3"], 11: ["V4","V5","V6","V7"], 31: ["K0","K1","K2","K3","K4","K5","V0","V1"],
             15: ["QB%d" % i for i in range(8)]}
    waits[31] += ["QA%d" % i for i in range(8)]
    for g in range(32):
        if M[g]: A(M[g])
        if g == 1 and dmaV:
            A(mV)
            if not G[1]: A("s_nop 0")
        if g == 11 and dmaK: pass
        for t in G[g]:
            if "nosm" in X and sm1 is not None and sm0 is not None: continue
            if "noexp" in X and t.startswith("v_exp"): t = t.replace("v_exp_f32", "v_mov_b32")
            A(t)
        for tag, t in R[g]:
            if not ("nord" in X and sm1 is not None and sm0 is not None): A(t)
            q.append(tag)
        if g in waits:
            w = wait(waits[g])
            if w: A(w)
        for t in salu.get(g, []):
            if t.endswith(":"): A.label(t[:-1])
            else: A(t)
        if g == 11 and dmaK: A(mK)
        for t in D[g]:
            if "nodma" not in X: A(t)
        if g == 15 and barrier:
            if "novm" not in X: A(f"s_waitcnt vmcnt({nprev + nb})")
            if "nobar" not in X: A("s_barrier")
        for t in nops.get(g, []): A(t)
    if std_exit: assert q == STD_Q, q
    return q

def toggle():
    return [f"v_xor_b32 v{V_X}, 0x10000, v{V_X}", f"v_xor_b32 v{V_Y}, 0x10000, v{V_Y}", f"s_xor_b32 s{S_MX}, s{S_MX}, 0x10000"]

def pair(A, kind, nprev=8, hook=None, extra_prev=0, hook0=None, nprev0=8, nprev1=8):
    o = O_S if kind[0] == "S" else O_L
    l0, l1 = (L0S, L1S) if kind[0] == "S" else (L0L, L1L)
    kupd = [f"s_add_u32 s{S_K}, s{S_K}, 0x10000"] if kind != "SP" else [f"s_mov_b32 s{S_K}, 0"]
    sal_even = {5: kupd, 23: [f"s_add_u32 s{S_KB}, s{S_K}, 0x8000", f"s_add_u32 s{S_VA}, s{S_K}, 0x4000"]}
    tg = toggle()
    sal_odd = {23: [f"s_add_u32 s{S_VP}, s{S_K}, 0xc000"], 31: tg}
    if kind[1] == "R":
        for g_, L_ in (hook0 or {}).items(): sal_even[g_] = sal_even.get(g_, []) + L_
        step(A, 0, "0", "0", o, l1, l0, l0, l1, salu=sal_even, nprev=nprev0)
        step(A, 1, "0", "0", o, l1, l0, l0, l1, salu=sal_odd, nprev=nprev1)
    elif kind == "SP":
        step(A, 0, "0", "0", o, l1, l0, l0, l1, salu=sal_even)
        step(A, 1, vr(BA0,16), vr(BA1,16), o, l1, l0, l0, l1, salu=sal_odd)
    elif kind == "SL":
        def qr(tag, dst, f): return (f"{tag}{f}", f"ds_read_b128 {vr(dst+4*f)}, v{V_QLA} offset:{f*1024}")
        ex = {}
        for f, g in enumerate((5, 9, 11, 11, 13, 15, 15, 23)): ex.setdefault(g, []).append(qr("QA", Q0, f))
        se = dict(sal_even); se[23] = se[23] + [f"v_xor_b32 v{V_QLA}, 0x2000, v{V_QLA}"]
        for f, g in enumerate((25, 27, 29)): ex.setdefault(g, []).append(qr("QB", Q1, f))
        x = step(A, 0, vr(BB0,16), vr(BB1,16), o, l1, l0, l0, l1, salu=se, extra=ex, std_exit=False)
        ex = {}
        for f, g in zip(range(3, 8), (5, 9, 11, 11, 13)): ex.setdefault(g, []).append(qr("QB", Q1, f))
        step(A, 1, "0", "0", o, L1S, L0S, L0L, L1S, salu=sal_odd, extra=ex, entry=x)
    elif kind == "LP":
        step(A, 0, "0", "0", o, l1, l0, l0, l1, salu=dict(hook0 or {}), dmaK=False, nprev=nprev0)
        sal = dict(hook or {}); sal[31] = sal.get(31, []) + tg
        step(A, 1, vr(BA0,16), vr(BA1,16), o, l1, l0, l0, l1, salu=sal, dmaK=False, dmaV=False, nprev=nprev1)
    elif kind == "LL":
        x = step(A, 0, vr(BB0,16), vr(BB1,16), o, l1, l0, l0, l1, dmaK=False, dmaV=False, nprev=extra_prev, rdK=False, std_exit=False, salu=dict(hook0 or {}))
        step(A, 1, None, None, o, l1, l0, None, l1, dmaK=False, dmaV=False, rdK=False, rdV2=False, barrier=False,
             entry=x, std_exit=False, nops={16: ["s_nop 1"]})

def emit_attn2(A, wgid="s2", stamp=None, fallback=True, g2=False, g3=False):
    import k2
    st_ = stamp if stamp else (lambda k: None)
    SM = dict(x.split(":") for x in os.environ.get("SM", "0:0,1:1,2:2,3:3,4:4,5:5,6:6").split(","))
    def st(k):
        if str(k) in SM: st_(int(SM[str(k)]))
    ool = []
    load_ptr(A, 40, KA_WQ); load_ptr(A, 42, KA_WS)
    if g2: k2.g2_ptrs(A)
    if g3 == 2:
        import g3v2
        g3v2.ptr(A)
    A("v_lshrrev_b32 v10, 6, v0")
    A("v_and_b32 v11, 63, v0")
    A(f"v_readfirstlane_b32 s{S_W}, v10")
    A(f"s_and_b32 s{S_HEAD}, {wgid}, 7")
    A(f"s_lshr_b32 s{S_TMP}, {wgid}, 3")
    A(f"s_and_b32 s{S_TMP}, s{S_TMP}, 3")
    A(f"s_lshl_b32 s{S_TMP}, s{S_TMP}, 3")
    A(f"s_add_u32 s{S_HEAD}, s{S_HEAD}, s{S_TMP}")
    A(f"s_lshr_b32 s{S_J}, {wgid}, 5")
    A(f"s_lshl_b32 s{S_QBS}, s{S_J}, 2"); A(f"s_add_u32 s{S_QBS}, s{S_QBS}, s{S_W}")
    A(f"s_sub_u32 s{S_QBL}, 15, s{S_J}"); A(f"s_lshl_b32 s{S_QBL}, s{S_QBL}, 2"); A(f"s_add_u32 s{S_QBL}, s{S_QBL}, s{S_W}")
    A(f"s_lshl_b32 s{S_W4K}, s{S_W}, 12")
    A(f"s_lshl_b32 s{S_CSO}, s{S_HEAD}, 12")
    A(f"v_lshlrev_b32 v2, 4, v11")
    A(f"v_add_u32 v{V_DMA}, s{S_W4K}, v2")
    A(f"s_cmp_eq_u32 s{S_J}, 0")
    A(f"s_cselect_b32 s{S_K}, 0, 0x10000")
    A("s_waitcnt lgkmcnt(0)")
    A(f"s_lshl_b32 s{S_TMP}, s{S_HEAD}, 20")
    A(f"s_add_u32 s4, s42, s{S_TMP}"); A("s_addc_u32 s5, s43, 0")
    if WS_KV: A(f"s_add_u32 s4, s4, {hex(WS_KV)}"); A("s_addc_u32 s5, s5, 0")
    A("s_mov_b32 s6, 0x100000"); A("s_mov_b32 s7, 0x00020000")
    A(f"s_lshl_b32 s{S_TMP}, s{S_HEAD}, 8")
    A(f"s_add_u32 s8, s40, s{S_TMP}"); A("s_addc_u32 s9, s41, 0")
    A(f"s_sub_u32 s10, 0x400000, s{S_TMP}"); A("s_mov_b32 s11, 0x00020000")
    srd_off(A, SRD_XN, 42, WS_XNF, 0x200000)
    srd_off(A, SRD_CTX, 42, WS_CTX, 0x1000000)
    srd_off(A, SRD_QS, 42, WS_QS, 0x800000)
    VW, VB0, VB1, VT = 12, 16, 17, 22
    A("v_lshrrev_b32 v13, 4, v11")
    A("v_and_b32 v14, 15, v11")
    A("v_lshlrev_b32 v15, 2, v13")
    A("v_xor_b32 v15, v14, v15")
    A("v_lshlrev_b32 v15, 4, v15")
    A(f"v_lshl_add_u32 v{VW}, v13, 13, v15")
    A(f"s_lshl_b32 s{S_TMP}, s{S_W}, 18")
    A(f"v_add_u32 v{VW}, s{S_TMP}, v{VW}")
    A("v_and_b32 v18, 1, v13")
    A("v_lshrrev_b32 v19, 5, v11")
    A("v_lshl_add_u32 v20, v19, 4, v14")
    A("v_lshlrev_b32 v20, 4, v20")
    A("v_lshl_add_u32 v21, v18, 14, v20")
    A(f"s_lshl_b32 s{S_TMP}, s{S_QBS}, 15"); A(f"v_add_u32 v{VB0}, s{S_TMP}, v21")
    A(f"s_lshl_b32 s{S_TMP}, s{S_QBL}, 15"); A(f"v_add_u32 v{VB1}, s{S_TMP}, v21")
    A("v_lshrrev_b32 v26, 2, v14")
    A("v_lshrrev_b32 v27, 1, v13")
    A("v_lshl_add_u32 v27, v27, 3, v26")
    A("v_lshlrev_b32 v27, 8, v27")
    A("v_bfe_u32 v28, v14, 1, 1")
    A("v_lshl_add_u32 v28, v18, 1, v28")
    A("v_lshl_add_u32 v27, v28, 4, v27")
    A("v_and_b32 v28, 1, v14")
    A("v_lshl_add_u32 v27, v28, 3, v27")
    for db in range(4):
        A(f"v_xor_b32 v28, {db}, v26")
        A(f"v_lshl_add_u32 v{VT+db}, v28, 6, v27")
    vm = VM()
    WBUF = [LDS_X, 65536, 98304, LDS_X]
    A(f"s_lshl_b32 s{S_WM}, s{S_W}, 13")
    def wdma(c):
        R = []
        for i in range(8):
            R.append([f"s_add_u32 m0, s{S_WM}, {WBUF[c] + i*1024}",
                      f"s_mov_b32 s{S_WS}, {(128*c + 4*i)*8192}",
                      f"buffer_load_dwordx4 v{VW}, s[8:11], s{S_WS} offen lds"])
        return R
    def bload(c, s):
        p = c & 1
        return [f"buffer_load_dwordx4 {ar(64*p + 32*b + 4*s)}, v{vx}, s[12:15], s{45+c} offen offset:{512*s}" for b, vx in ((0, VB0), (1, VB1))]
    for c in range(4): A(f"s_mov_b32 s{45+c}, {4096*c}")
    def kvdma(ldsbase, soff):
        R = [[f"s_add_u32 m0, s{S_W4K}, {ldsbase}"] + ([f"s_mov_b32 s{S_WS}, {soff}"] if isinstance(soff, int) else [])]
        so = f"s{S_WS}" if isinstance(soff, int) else soff
        for i in range(4):
            R.append([f"buffer_load_dwordx4 v{V_DMA}, s[4:7], {so} offen offset:{i*1024} lds"])
        return R
    def emit_list(R, tag):
        for g in R:
            if isinstance(g, str): g = [g]
            for t in g:
                A(t)
                if t.startswith("buffer_"): vm.issue(tag)
    st(0)
    if not g2:
        emit_list(wdma(0), "W0")
        for s in range(8): emit_list(bload(0, s), "B0")
        emit_list(wdma(1), "W1")
        for s in range(8): emit_list(bload(1, s), "B1")
        emit_list(wdma(2), "W2")
    else:
        k2.g2_setup(A, wgid, S_W, 11, 42)
        for c in range(4): emit_list(k2.g2_loads(c), f"G{c}")
        emit_list(k2.g2_xloads(SRD_XN), "GX")
        emit_list(wdma(0), "W0")
        later = [([t for s in range(8) for t in bload(0, s)], "B0"), (wdma(1), "W1"), ([t for s in range(8) for t in bload(1, s)], "B1"), (wdma(2), "W2")]
        flat = [(g, tag) for (L, tag) in later for g in L]
        per = (len(flat) + 3) // 4
        for c in range(4):
            A(f"s_waitcnt vmcnt({vm.cnt([f'G{c}'])})")
            st(10 + c)
            A("s_barrier")
            for t in k2.g2_wreads(c): A(t)
            for g, tag in flat[c*per:(c+1)*per]: emit_list([g], tag)
            for s in range(8):
                A(f"s_waitcnt lgkmcnt({min(14 - 2*s, 15)})")
                A(k2.g2_mfma(c, s))
        A(f"s_waitcnt vmcnt({vm.cnt(['GX'])})")
        st(6)
        k2.g2_epilogue(A, vm)
        A("s_barrier")
    def wreads(c, s):
        p = s & 1
        R = []
        for db in range(4):
            for rd in range(2):
                b = 128 + 16*p + 4*db + 2*rd
                R.append(f"ds_read_b64_tr_b16 a[{b}:{b+1}], v{VT+db} offset:{4096*s + 1024*rd}")
        return R
    def setbuf(c):
        d = WBUF[c] - (WBUF[c-1] if c else 0)
        return [(f"v_add_u32 v{VT+db}, {d}, v{VT+db}" if d >= 0 else f"v_subrev_u32 v{VT+db}, {-d}, v{VT+db}") for db in range(4)]
    for t in setbuf(0): A(t)
    A(f"s_waitcnt vmcnt({vm.cnt(['W0','B0'])})")
    A("s_barrier")
    st(1)
    for t in wreads(0, 0): A(t)
    QACC = lambda b, db: vr(128 + 64*b + 16*db, 16)
    kvlist = [(KE, 0), (KO, 32768), (VE, 16384), (VO, 49152)]
    for c in range(4):
        for s in range(8):
            p = s & 1
            pre = ["s_waitcnt lgkmcnt(0)"]
            last = (s == 7)
            if last and c < 3:
                n = vm.cnt([f"W{c+1}", f"B{c+1}"])
                pre = [f"s_waitcnt vmcnt({n}) lgkmcnt(0)", "s_barrier"] + setbuf(c+1)
            if last and c == 3:
                pre = ["s_waitcnt lgkmcnt(0)", "s_barrier"]
            M = []
            for db in range(4):
                for b in range(2):
                    cc = "0" if (c == 0 and s == 0) else QACC(b, db)
                    M.append(f"v_mfma_f32_32x32x16_bf16 {QACC(b,db)}, {ar(128+16*p+4*db)}, {ar(64*(c&1)+32*b+4*s)}, {cc}")
            F = []
            if not last: F += [(i, t) for i, t in enumerate(wreads(c, s+1))]
            elif c < 3: F += [(i, t) for i, t in enumerate(wreads(c+1, 0))]
            ext = []
            if s > 0 and c + 2 <= 3:
                ext += [(t, f"B{c+2}") for t in bload(c+2, s-1)]
            if last and c == 0:
                for g in wdma(3): ext += [(t, "W3") for t in g]
            if last and c == 1:
                for g in kvdma(65536 + KE, f"s{S_K}"): ext += [(t, "KV2") for t in g]
            if c == 0 and s in (1, 3, 5, 6):
                b_, o_ = kvlist[(1, 3, 5, 6).index(s)]
                for g in kvdma(b_, o_): ext += [(t, "KV0") for t in g]
            for t in pre: A(t)
            if g2 and last and c == 1:
                A(k2.g2_signal()); vm.issue("SIG")
            for k, (t, tag) in enumerate(ext):
                g = min(7, k*8 // max(len(ext), 1))
                F.append((g, t))
                if t.startswith("buffer_"): vm.issue(tag)
            interleave(A, M, F)
            if last and c + 2 <= 3:
                for t in bload(c+2, 7): A(t); vm.issue(f"B{c+2}")
    st(2)
    A("v_and_b32 v11, 63, v0")
    A("v_lshlrev_b32 v2, 4, v11")
    A(f"s_lshl_b32 s{S_TMP}, s{S_W}, 13")
    A(f"s_add_u32 s{S_TMP2}, s{S_TMP}, {LDS_X}")
    A(f"v_add_u32 v{V_QLA}, s{S_TMP2}, v2")
    A(f"s_add_u32 s{S_TMP2}, s{S_TMP}, 98304")
    A(f"v_add_u32 v4, s{S_TMP2}, v2")
    A(f"v_xor_b32 v5, 0x2000, v4")
    A(f"s_lshl_b32 s{S_TMP2}, {wgid}, 15"); A(f"s_add_u32 s{S_TMP2}, s{S_TMP2}, s{S_TMP}")
    A(f"s_mov_b32 s{S_A}, s{S_TMP2}")
    for r in range(4): A(f"v_mov_b32 v{S0+r}, 0")
    A("s_nop 1")
    Z = [f"v_mfma_f32_32x32x16_bf16 {ar(16*i,16)}, {vr(S0)}, {vr(S0)}, 0" for i in range(16)]
    F = []
    def cv(dst, b, f):
        db, t = f >> 1, f & 1
        return [f"v_cvt_pk_bf16_f32 v{dst + 4*f + r}, v{128 + 64*b + 16*db + 8*t + 2*r}, v{128 + 64*b + 16*db + 8*t + 2*r + 1}" for r in range(4)]
    g = 2
    for f in range(8):
        for t in cv(Q0, 0, f): F.append((g, t))
        F.append((g, f"ds_write_b128 v4, {vr(Q0+4*f)} offset:{f*1024}"))
        g += (f & 1) ^ 1 if False else 0
        if f & 1: g += 1
    for f in range(8):
        for t in cv(Q1, 1, f): F.append((g, t))
        F.append((g, f"ds_write_b128 v{V_QLA}, {vr(Q1+4*f)} offset:{f*1024}"))
        if f & 1: g += 1
    for f in range(8):
        F.append((g + f//2, f"buffer_store_dwordx4 {vr(Q0+4*f)}, v2, s[{SRD_QS}:{SRD_QS+3}], s{S_A} offen offset:{(f&3)*1024}" if f < 4 else
                  f"buffer_store_dwordx4 {vr(Q0+4*f)}, v3, s[{SRD_QS}:{SRD_QS+3}], s{S_B} offen offset:{(f&3)*1024}"))
    F = [(a_, t.replace("v3, s[56:59], s34", "v2, s[56:59], s34")) for a_, t in F]
    A(f"s_add_u32 s{S_B}, s{S_A}, 4096")
    interleave(A, Z, F)
    A(f"s_and_b32 s{S_TMP}, s{S_W}, 1"); A(f"s_lshl_b32 s{S_TMP}, s{S_TMP}, 13")
    A(f"v_add_u32 v{V_Y}, s{S_TMP}, v2")
    A(f"v_add_u32 v{V_X}, 0x10000, v{V_Y}")
    A(f"s_add_u32 s{S_MX}, s{S_W4K}, 0x10000")
    A(f"s_add_u32 s{S_KB}, s{S_K}, 0x8000"); A(f"s_add_u32 s{S_VA}, s{S_K}, 0x4000")
    A(f"s_add_u32 s{S_VP}, s{S_K}, 0xc000")
    A("s_waitcnt lgkmcnt(0)")
    A("s_barrier")
    for f in range(8): A(f"ds_read_b128 {vr(Q1+4*f)}, v5 offset:{f*1024}")
    for s in range(8): A(f"ds_read_b128 {vr(KF+4*s)}, v{V_Y} offset:{KE+s*1024}")
    A("v_and_b32 v11, 31, v11"); A("v_bfe_u32 v12, v2, 9, 1")
    A("v_lshlrev_b32 v12, 2, v12"); A("v_sub_u32 v11, v11, v12")
    A(f"v_mov_b32 v12, {NEG}")
    A(f"s_cmp_lt_u32 s{S_W}, 2"); A(f"s_cselect_b32 s{S_A}, -1, 0"); A(f"s_cselect_b32 s{S_B}, {NEG}, 0"); A(f"s_cselect_b32 s{S_D}, 0, -1")
    A(f"s_cmp_eq_u32 s{S_W}, 1"); A(f"s_cselect_b32 s{S_TMP}, {NEG}, 0")
    A(f"s_cmp_eq_u32 s{S_W}, 2"); A(f"s_cselect_b32 s{S_TMP2}, 0, {NEG}")
    for r in range(16):
        key = 16*((r >> 2) & 1) + 8*(r >> 3) + (r & 3)
        A(f"v_cmp_gt_i32 vcc, {key}, v11")
        A(f"v_mov_b32 v{BA1+r}, s{S_TMP}")
        A(f"v_mov_b32 v{BB1+r}, s{S_TMP2}")
        A(f"v_cndmask_b32 v13, 0, v12, vcc")
        A(f"v_and_b32 v{BA0+r}, s{S_A}, v13")
        A(f"v_and_b32 v13, s{S_D}, v13")
        A(f"v_or_b32 v{BB0+r}, s{S_B}, v13")
    A(f"s_cmp_eq_u32 s{S_J}, 0"); A(f"s_cselect_b32 s{S_A}, -1, 0")
    for r in range(16):
        A(f"v_and_b32 v{S0+r}, s{S_A}, v{BA0+r}")
        A(f"v_and_b32 v{S1+r}, s{S_A}, v{BA1+r}")
    for r in range(8, 16): A(f"v_mov_b32 v{r}, 0")
    A("s_waitcnt lgkmcnt(0)")
    A("s_barrier")
    st(3)
    step(A, 1, vr(S0,16), vr(S1,16), None, None, None, L0S, None, rdV1=False, entry=[], nprev=0,
         salu={31: toggle()}, nops={15: ["s_nop 7", "s_nop 7"]})
    lSP, lSL, lSR = A.newlabel("SP"), A.newlabel("SL"), A.newlabel("SR")
    A(f"s_cmp_eq_u32 s{S_J}, 0"); A(f"s_cbranch_scc1 {lSL}")
    A(f"s_sub_u32 s{S_CNT}, s{S_J}, 1")
    A(f"s_cmp_eq_u32 s{S_CNT}, 0"); A(f"s_cbranch_scc1 {lSP}")
    A.label(lSR)
    pair(A, "SR")
    A(f"s_sub_u32 s{S_CNT}, s{S_CNT}, 1"); A(f"s_cmp_lg_u32 s{S_CNT}, 0"); A(f"s_cbranch_scc1 {lSR}")
    A.label(lSP)
    pair(A, "SP")
    A.label(lSL)
    pair(A, "SL")
    st(4)
    if g3 == 2:
        g3v2.scalars(A, wgid, S_W)
        g3v2.wd_voffset(A, S_W, V_DMA, E[0], E[0]+1)
        A(f"v_add_f32 v{L0S}, v{L0S}, v{L0S+1}"); A(f"v_add_f32 v{L1S}, v{L1S}, v{L1S+1}")
        for t_ in g3v2.poll_loads(L0S+1, L1S+1): A(t_)
    A(f"s_sub_u32 s{S_CNT}, 14, s{S_J}")
    lLR = A.newlabel("LR")
    A.label(lLR)
    pair(A, "LR")
    A(f"s_sub_u32 s{S_CNT}, s{S_CNT}, 1"); A(f"s_cmp_lg_u32 s{S_CNT}, 0"); A(f"s_cbranch_scc1 {lLR}")
    vm = VM()
    if g3 == 2:
        def put(h, c, gaps):
            for g_, grp in zip(gaps, g3v2.wdma(c, S_W4K)):
                h.setdefault(g_, []).extend(grp); vm.issue(f"W{c}")
        h0, h1, h2 = {16: g3v2.check_hook(A, ool, L0S+1, L1S+1)}, {}, {}
        TOUCH = "notouch" not in X
        if TOUCH:
            for g_, L_ in g3v2.xtouch(wgid, S_W, V_DMA, L1S+1).items(): h0.setdefault(g_, []).extend(L_)
            vm.issue("TOUCH")
        put(h0, 0, (17, 19, 21, 23) if not TOUCH else (23, 24, 25, 26)); put(h0, 1, (25, 27, 29, 31) if not TOUCH else (27, 28, 29, 31))
        put(h1, 2, (1, 3, 5, 7)); put(h1, 3, (9, 11, 13, 17))
        put(h2, 4, (1, 3, 5, 7))
        pair(A, "LP", hook0=h0, hook=h1, nprev1=4+8+7+TOUCH)
        pair(A, "LL", hook0=h2, extra_prev=8+8+4+TOUCH)
    else:
        pair(A, "LP", nprev1=4)
        pair(A, "LL")
    st(5)
    if g3 == 2:
        pass
    elif g3:
        A(f"s_and_b32 s{k2.T0}, {wgid}, 7"); A(f"s_lshr_b32 s{k2.T2}, {wgid}, 3"); A(f"s_and_b32 s{k2.T2}, s{k2.T2}, 3")
        A(f"s_lshl_b32 s{k2.T2}, s{k2.T2}, 3"); A(f"s_add_u32 s{k2.T0}, s{k2.T0}, s{k2.T2}"); A(f"s_lshl_b32 s{k2.T0}, s{k2.T0}, 3")
        A("v_mov_b32 v60, 0")
        A(f"buffer_load_dword v60, v60, s[{k2.SRD_DBG}:{k2.SRD_DBG+3}], s{k2.T0} offen sc1")
    A("s_barrier")
    A(f"v_and_b32 v2, 0x3ff, v{V_Y}")
    A(f"s_lshl_b32 s{S_TMP}, s{S_W}, {14 if g3 == 2 else 15}")
    A(f"v_add_u32 v3, s{S_TMP}, v2")
    A(f"v_xor_b32 v1, {hex(0x4000 if g3 == 2 else 0x8000)}, v3")
    A(f"v_lshrrev_b32 v4, 1, v2")
    A(f"s_lshl_b32 s{S_TMP}, s{S_W}, 9"); A(f"s_add_u32 s{S_TMP}, s{S_TMP}, {LDS_X}")
    A(f"v_add_u32 v4, s{S_TMP}, v4")
    A(f"v_xor_b32 v5, 0x200, v4")
    if g3 == 2:
        A(f"v_mov_b32 v6, v{L1S}"); A(f"v_add_f32 v7, v{L1L}, v{L1L+1}")
        A(f"v_add_f32 v{L0L}, v{L0L}, v{L0L+1}")
    else:
        A(f"v_add_f32 v6, v{L1S}, v{L1S+1}"); A(f"v_add_f32 v7, v{L1L}, v{L1L+1}")
        A(f"v_add_f32 v{L0S}, v{L0S}, v{L0S+1}"); A(f"v_add_f32 v{L0L}, v{L0L}, v{L0L+1}")
    A("ds_write_b64 v4, v[6:7]")
    A("s_nop 7")
    for i in range(16):
        A(f"ds_write_b128 v3, {ar(O_S+64+4*i)} offset:{i*1024}")
        for r in range(4): A(f"v_accvgpr_read_b32 v{128+4*i+r}, a{O_S+4*i+r}")
        if g3 == 2 and False:
            for r in range(4): A(f"v_accvgpr_read_b32 v{192+4*i+r}, a{O_L+4*i+r}")
    for i in range(16):
        if g3 != 2: A(f"ds_write_b128 v3, {ar(O_L+64+4*i)} offset:{16384+i*1024}")
        for r in range(4): A(f"v_accvgpr_read_b32 v{192+4*i+r}, a{O_L+4*i+r}")
    A("v_lshrrev_b32 v11, 4, v2")
    A("v_and_b32 v14, 15, v11"); A("v_lshrrev_b32 v19, 5, v11"); A("v_bfe_u32 v18, v11, 4, 1")
    A("v_lshl_add_u32 v20, v19, 4, v14"); A("v_lshlrev_b32 v20, 4, v20")
    A("v_lshl_add_u32 v21, v18, 17, v20")
    V_CS, V_CL = 16, 17
    A(f"s_lshl_b32 s{S_TMP}, s{S_QBS}, 18"); A(f"v_add_u32 v{V_CS}, s{S_TMP}, v21")
    A(f"s_lshl_b32 s{S_TMP}, s{S_QBL}, 18"); A(f"v_add_u32 v{V_CL}, s{S_TMP}, v21")
    if g3 == 2: g3v2.b_voffsets(A, 11, 18, 19)
    A("s_waitcnt lgkmcnt(0)")
    st(30)
    if g3 == 2:
        for t in g3v2.st_loads():
            A(t)
            if t.startswith("buffer_"): vm.issue("ST")
    A("s_barrier")
    A("ds_read_b64 v[6:7], v5")
    PT = 18
    def prd(which, grp, dst):
        return [f"ds_read_b128 {vr(dst+4*h)}, v1 offset:{(0 if g3 == 2 else which*16384) + (2*grp+h)*1024}" for h in range(2)]
    PB = [96, 104, 112, 120]
    for gi in range(4):
        for t in prd(0, gi, PB[gi]): A(t)
    def half_sum(x, y, op="v_add_f32"):
        A(f"v_mov_b32 v{y}, v{x}"); A("s_nop 1")
        A(f"v_permlane32_swap_b32 v{x}, v{y}"); A("s_nop 1")
        A(f"{op} v{x}, v{x}, v{y}")
    A("s_waitcnt lgkmcnt(8)")
    A(f"v_add_f32 v{L0S}, v{L0S}, v6"); A(f"v_add_f32 v{L0L}, v{L0L}, v7")
    half_sum(L0S, 9); half_sum(L0L, 13)
    lfS, lfL, lrS, lrL = A.newlabel("FS"), A.newlabel("FL"), A.newlabel("RS"), A.newlabel("RL")
    def rangechk(x, mask):
        A(f"v_mov_b32 v9, 0x2b800000")
        A(f"v_cmp_ge_f32 vcc, v{x}, v9")
        A(f"v_mov_b32 v9, 0x53800000")
        A(f"v_cmp_le_f32 s[50:51], v{x}, v9")
        A("s_nop 1")
        A("s_and_b64 vcc, vcc, s[50:51]")
        A("s_cmp_eq_u64 vcc, -1")
        A(f"s_cselect_b32 s{mask}, 0, 1")
    rangechk(L0S, S_A); rangechk(L0L, S_B)
    A(f"v_rcp_f32 v{L0S}, v{L0S}"); A(f"v_rcp_f32 v{L0L}, v{L0L}")
    A("s_nop 0")
    A(f"v_mov_b32 v9, v{L0S}"); A(f"v_mov_b32 v13, v{L0L}")
    TB = [50, 54]
    for n in range(16):
        which, grp = n >> 3, n & 7
        own = (128 if which == 0 else 192) + 8*grp
        pb = PB[n & 3]
        x = L0S if which == 0 else L0L
        outstanding = min(15 - n, 3) * 2
        if n == 0: st(31)
        if n == 8: st(32)
        if g3 == 2:
            if n < 5: A(f"s_waitcnt lgkmcnt({min(7 - n, 3) * 2})")
            elif n == 5: A("s_waitcnt lgkmcnt(0)"); A("s_barrier")
            elif n == 8:
                A("s_waitcnt lgkmcnt(0)"); A("s_barrier")
                for gi in range(4):
                    for t in prd(1, gi, PB[gi]): A(t)
            if n >= 8:
                for s_ in (2*n, 2*n+1): A(g3v2.b_load(s_)); vm.issue(f"B{s_}")
                A(f"s_waitcnt lgkmcnt({outstanding})")
            else:
                for s_ in (2*n, 2*n+1): A(g3v2.b_load(s_)); vm.issue(f"B{s_}")
        else:
            A(f"s_waitcnt lgkmcnt({outstanding})")
        for h in range(4): A(f"v_pk_add_f32 {vr(own+2*h,2)}, {vr(own+2*h,2)}, {vr(pb+2*h,2)}")
        if n + 4 < 16 and not (g3 == 2 and 4 <= n < 8):
            for t in prd((n+4) >> 3, (n+4) & 7, pb): A(t)
        if g3 == 2 and 5 <= n < 8:
            for i in {5: range(0, 6), 6: range(6, 11), 7: range(11, 16)}[n]:
                A(f"ds_write_b128 v3, {ar(O_L+64+4*i)} offset:{i*1024}")
        for h in range(4): A(f"v_pk_mul_f32 {vr(own+2*h,2)}, {vr(own+2*h,2)}, {vr(x,2)}")
        tb = TB[n & 1]
        for h in range(4): A(f"v_cvt_pk_bf16_f32 v{tb+h}, v{own+2*h}, v{own+2*h+1}")
        db, t = grp >> 1, grp & 1
        vc = V_CS if which == 0 else V_CL
        A(f"buffer_store_dwordx4 {vr(tb)}, v{vc}, s[16:19], s{S_CSO} offen offset:{db*1024+t*512}"); vm.issue("CTX")
    st(33)
    if fallback:
        A(f"s_cmp_eq_u32 s{S_B}, 0"); A(f"s_cbranch_scc0 {lfL}")
        A.label(lrL)
        A(f"s_cmp_eq_u32 s{S_A}, 0"); A(f"s_cbranch_scc0 {lfS}")
        A.label(lrS)
        def store_block(vc, rd):
            cnt = 0
            for db in range(4):
                for t in range(2):
                    b = 232 + 12*(cnt & 1); cnt += 1
                    rd(db, t, b)
                    for r in range(4): A(f"v_cvt_pk_bf16_f32 v{b+8+r}, v{b+2*r}, v{b+2*r+1}")
                    A(f"buffer_store_dwordx4 {vr(b+8)}, v{vc}, s[16:19], s{S_CSO} offen offset:{db*1024+t*512}")
        def fallback_code(vc, qb, reload_q):
            FO, FK, FV = 164, 192, 224
            FS, FP, TRI = 32, 48, 128
            m, l, al, t0, t1, ad, l16 = 228, 229, 230, 231, 10, 11, 12
            S_KB_, S_O1, S_O2 = 52, 53, 54
            A("s_waitcnt vmcnt(0)")
            A(f"v_and_b32 v{l16}, 0x3ff, v{V_Y}")
            if reload_q:
                A(f"s_lshl_b32 s{S_O1}, {wgid}, 15"); A(f"s_lshl_b32 s{S_O2}, s{S_W}, 13"); A(f"s_add_u32 s{S_O1}, s{S_O1}, s{S_O2}")
                A(f"s_add_u32 s{S_O2}, s{S_O1}, 4096")
                for f in range(8):
                    A(f"buffer_load_dwordx4 {vr(Q0+4*f)}, v{l16}, s[{SRD_QS}:{SRD_QS+3}], s{S_O1 if f < 4 else S_O2} offen offset:{(f&3)*1024} sc1")
            A(f"v_lshrrev_b32 v{t0}, 4, v{l16}"); A(f"v_lshrrev_b32 v{t1}, 5, v{t0}"); A(f"v_and_b32 v{t0}, 31, v{t0}")
            A(f"v_lshlrev_b32 v{t1}, 2, v{t1}"); A(f"v_sub_u32 v{t0}, v{t0}, v{t1}"); A(f"v_mov_b32 v{t1}, {NEG}")
            for r in range(16):
                key = 16*((r >> 2) & 1) + 8*(r >> 3) + (r & 3)
                A(f"v_cmp_gt_i32 vcc, {key}, v{t0}"); A("s_nop 1")
                A(f"v_cndmask_b32 v{TRI+r}, 0, v{t1}, vcc")
            for r in range(64): A(f"v_mov_b32 v{FO+r}, 0")
            A(f"v_mov_b32 v{m}, {NEG}"); A(f"v_mov_b32 v{l}, 0")
            A(f"v_add_u32 v{ad}, 4096, v{l16}")
            A(f"s_mov_b32 s{S_KB_}, 0")
            A("s_waitcnt vmcnt(0)")
            lp, ld_, ln_ = A.newlabel("FP"), A.newlabel("FD"), A.newlabel("FN")
            A.label(lp)
            A(f"s_lshr_b32 s{S_O1}, s{S_KB_}, 1"); A(f"s_lshl_b32 s{S_O1}, s{S_O1}, 15")
            A(f"s_and_b32 s{S_O2}, s{S_KB_}, 1"); A(f"s_lshl_b32 s{S_O2}, s{S_O2}, 13")
            A(f"s_add_u32 s{S_O1}, s{S_O1}, s{S_O2}")
            A(f"s_add_u32 s{S_O2}, s{S_O1}, 16384")
            for s_ in range(8):
                A(f"buffer_load_dwordx4 {ar(FK+4*s_)}, v{l16 if s_ < 4 else ad}, s[4:7], s{S_O1} offen offset:{(s_&3)*1024}")
            for s_ in range(8):
                A(f"buffer_load_dwordx4 {ar(FV+4*s_)}, v{l16 if s_ < 4 else ad}, s[4:7], s{S_O2} offen offset:{(s_&3)*1024}")
            A("s_waitcnt vmcnt(8)")
            A(f"s_cmp_eq_u32 s{S_KB_}, s{qb}")
            A(f"s_cbranch_scc1 {ld_}")
            A(f"v_mfma_f32_32x32x16_bf16 {vr(FS,16)}, {ar(FK)}, {vr(Q0)}, 0")
            A(f"s_branch {ln_}")
            A.label(ld_)
            A(f"v_mfma_f32_32x32x16_bf16 {vr(FS,16)}, {ar(FK)}, {vr(Q0)}, {vr(TRI,16)}")
            A.label(ln_)
            for s_ in range(1, 8):
                A(f"v_mfma_f32_32x32x16_bf16 {vr(FS,16)}, {ar(FK+4*s_)}, {vr(Q0+4*s_)}, {vr(FS,16)}")
            A("s_nop 7"); A("s_nop 7")
            A(f"v_max_f32 v{t0}, v{FS}, v{FS+1}")
            for r in range(2, 16, 2): A(f"v_max3_f32 v{t0}, v{t0}, v{FS+r}, v{FS+r+1}")
            half_sum(t0, t1, "v_max_f32")
            A(f"v_max_f32 v{t0}, v{t0}, v{m}")
            A(f"v_sub_f32 v{al}, v{m}, v{t0}")
            A(f"v_exp_f32 v{al}, v{al}")
            A(f"v_mov_b32 v{m}, v{t0}")
            for r in range(16): A(f"v_sub_f32 v{FS+r}, v{FS+r}, v{m}")
            for r in range(16): A(f"v_exp_f32 v{FS+r}, v{FS+r}")
            A(f"v_mul_f32 v{l}, v{l}, v{al}")
            for r in range(16): A(f"v_add_f32 v{l}, v{l}, v{FS+r}")
            for r in range(8): A(f"v_cvt_pk_bf16_f32 v{FP+r}, v{FS+2*r}, v{FS+2*r+1}")
            for r in range(64): A(f"v_mul_f32 v{FO+r}, v{FO+r}, v{al}")
            A("s_waitcnt vmcnt(0)")
            A("s_nop 1")
            for t in range(2):
                for db in range(4):
                    A(f"v_mfma_f32_32x32x16_bf16 {vr(FO+16*db,16)}, {ar(FV+4*(t*4+db))}, {vr(FP+4*t)}, {vr(FO+16*db,16)}")
            A("s_nop 7"); A("s_nop 7")
            A(f"s_add_u32 s{S_KB_}, s{S_KB_}, 1")
            A(f"s_cmp_le_u32 s{S_KB_}, s{qb}")
            A(f"s_cbranch_scc1 {lp}")
            half_sum(l, t1)
            A(f"v_rcp_f32 v{l}, v{l}")
            A("s_nop 0")
            def rd(db, t, b):
                for r in range(8): A(f"v_mul_f32 v{b+r}, v{FO+16*db+8*t+r}, v{l}")
            store_block(vc, rd)
        le = A.newlabel("AE")
        A(f"s_branch {le}")
        A.label(lfL); fallback_code(V_CL, S_QBL, False); A(f"s_branch {lrL}")
        A.label(lfS); fallback_code(V_CS, S_QBS, True); A(f"s_branch {lrS}")
        A.label(le)
    if g3 == 2:
        lx = A.newlabel("G3X")
        A(f"s_cmp_ge_u32 {wgid}, 224"); A(f"s_cbranch_scc1 {lx}")
        st(7)
        g3v2.main(A, vm, S_W, S_W4K, st)
        le2 = A.newlabel("G3E")
        A(f"s_branch {le2}")
        for t_ in ool:
            if t_.endswith(":"): A.label(t_[:-1])
            else: A(t_)
        A.label(le2)
        A.label(lx)
    elif g3:
        from bpath import emit_g3
        lx, lsp, lok, lp = A.newlabel("G3X"), A.newlabel("SPIN"), A.newlabel("OK"), A.newlabel("SP")
        A(f"s_cmp_ge_u32 {wgid}, 224"); A(f"s_cbranch_scc1 {lx}")
        A("s_waitcnt vmcnt(16)")
        A(f"v_readfirstlane_b32 s{k2.T2}, v60")
        A(f"s_cmp_ge_u32 s{k2.T2}, 8"); A(f"s_cbranch_scc1 {lok}")
        A(f"s_mov_b32 s{k2.T3}, 65536")
        A.label(lp)
        A("v_mov_b32 v60, 0")
        A(f"buffer_load_dword v60, v60, s[{k2.SRD_DBG}:{k2.SRD_DBG+3}], s{k2.T0} offen sc1")
        A("s_waitcnt vmcnt(0)")
        A(f"v_readfirstlane_b32 s{k2.T2}, v60")
        A(f"s_cmp_ge_u32 s{k2.T2}, 8"); A(f"s_cbranch_scc1 {lok}")
        A("s_sleep 8")
        A(f"s_sub_u32 s{k2.T3}, s{k2.T3}, 1"); A(f"s_cmp_lg_u32 s{k2.T3}, 0"); A(f"s_cbranch_scc1 {lp}")
        A.label(lok)
        A("v_mbcnt_lo_u32_b32 v0, -1, 0"); A("v_mbcnt_hi_u32_b32 v0, -1, v0")
        A(f"s_lshl_b32 s{k2.T2}, s{S_W}, 6"); A(f"v_add_u32 v0, s{k2.T2}, v0")
        A("s_barrier")
        st(7)
        emit_g3(A, wgid, sc1=True, stamp=st)
        A.label(lx)
```

```python
from common import *
from bpath import vr, ar, half_sum, gelu_block, GC0, GC1, WS_STAT
import k2
SRD_B, SRD_W3, SRD_DBG = k2.SRD_B, 80, 84
S_PTR = 100
S_BO = 45
S_POLL, S_STO, S_H3 = 88, 89, 90
S_TA, S_TB = 49, 55
LDS_X = 131072
CH = [65536, 81920, 98304, LDS_X + 2048, 114688, 0, 16384, 32768]
V_WD, V_B, V_ST, V_POLL = 0, 22, 23, 3
A_B, A_W, A_ST = 0, 128, 160
OFF_X1F, OFF_STAT, OFF_H3 = WS_X1F - WS_H, WS_STAT - WS_H, WS_H3F - WS_H

def ptr(A): load_ptr(A, S_PTR, KA_W3)

def scalars(A, wgid, S_W):
    a, b = S_TA, S_TB
    A(f"s_lshr_b32 s{a}, {wgid}, 3")
    A(f"s_lshr_b32 s{b}, s{a}, 1")
    A(f"s_lshl_b32 s{S_H3}, s{b}, 2")
    A(f"s_lshl_b32 s{b}, s{b}, 8")
    A(f"s_add_u32 s{SRD_W3}, s{S_PTR}, s{b}"); A(f"s_addc_u32 s{SRD_W3+1}, s{S_PTR+1}, 0")
    A(f"s_sub_u32 s{SRD_W3+2}, {512*3584}, s{b}"); A(f"s_mov_b32 s{SRD_W3+3}, 0x00020000")
    A(f"s_cmp_ge_u32 {wgid}, 224")
    A(f"s_cselect_b32 s{SRD_W3+2}, 0, s{SRD_W3+2}")
    A(f"s_cselect_b32 s{SRD_B+2}, 0, s{SRD_B+2}")
    A(f"s_and_b32 s{a}, s{a}, 1"); A(f"s_lshl_b32 s{a}, s{a}, 3"); A(f"s_and_b32 s{b}, {wgid}, 7"); A(f"s_add_u32 s{a}, s{a}, s{b}")
    A(f"s_lshl_b32 s{a}, s{a}, 2"); A(f"s_add_u32 s{a}, s{a}, s{S_W}")
    A(f"s_lshr_b32 s{S_POLL}, s{a}, 1"); A(f"s_lshl_b32 s{S_POLL}, s{S_POLL}, 3")
    A(f"s_lshl_b32 s{S_STO}, s{a}, 5")
    for c in range(4): A(f"s_mov_b32 s{S_BO+c}, {hex(OFF_X1F + 4096*c)}")

def wd_voffset(A, S_W, lanesrc, t0, t1):
    A(f"v_bfe_u32 v{t0}, v{lanesrc}, 8, 2")
    A(f"v_bfe_u32 v{t1}, v{lanesrc}, 4, 4")
    A(f"v_lshlrev_b32 v{V_WD}, 2, v{t0}")
    A(f"v_xor_b32 v{V_WD}, v{t1}, v{V_WD}")
    A(f"v_lshlrev_b32 v{V_WD}, 4, v{V_WD}")
    A(f"v_mul_u32_u24 v{t0}, 3584, v{t0}")
    A(f"v_add_u32 v{V_WD}, v{V_WD}, v{t0}")
    A(f"s_mul_i32 s{S_TA}, s{S_W}, {16*3584}")
    A(f"v_add_u32 v{V_WD}, s{S_TA}, v{V_WD}")

def wdma(c, S_W4K):
    return [[f"s_add_u32 m0, s{S_W4K}, {CH[c] + i*1024}", f"s_mov_b32 s{S_TA}, {(64*c + 4*i)*3584}",
             f"buffer_load_dwordx4 v{V_WD}, s[{SRD_W3}:{SRD_W3+3}], s{S_TA} offen lds"] for i in range(4)]
def poll_load(): return f"buffer_load_dword v{V_POLL}, off, s[{SRD_DBG}:{SRD_DBG+3}], s{S_POLL} sc1"
def poll_check(A, ool):
    lsp, lok, lp = A.newlabel("G3SPIN"), A.newlabel("G3OK"), A.newlabel("G3SP")
    A(f"v_readfirstlane_b32 s{S_TA}, v{V_POLL}")
    A(f"s_cmp_ge_u32 s{S_TA}, 8"); A(f"s_cbranch_scc0 {lsp}")
    A.label(lok)
    ool += [f"{lsp}:", f"s_mov_b32 s{S_TB}, 65536", f"{lp}:",
            f"buffer_load_dword v60, off, s[{SRD_DBG}:{SRD_DBG+3}], s{S_POLL} sc1", "s_waitcnt vmcnt(0)",
            f"v_readfirstlane_b32 s{S_TA}, v60", f"s_cmp_ge_u32 s{S_TA}, 8", f"s_cbranch_scc1 {lok}", "s_sleep 8",
            f"s_sub_u32 s{S_TB}, s{S_TB}, 1", f"s_cmp_lg_u32 s{S_TB}, 0", f"s_cbranch_scc1 {lp}", f"s_branch {lok}"]
def poll_loads(p0, p1):
    return [f"s_and_b32 s{S_TA}, s{S_POLL}, 0xfffffff0",
            f"buffer_load_dword v{p0}, off, s[{SRD_DBG}:{SRD_DBG+3}], s{S_TA} sc1",
            f"buffer_load_dword v{p1}, off, s[{SRD_DBG}:{SRD_DBG+3}], s{S_TA} offset:8 sc1"]
DUMMY = LDS_X + 20480
def touch_hooks(A, ool, wgid, S_W, lanesrc, p0, p1):
    lsp, lok, lp = A.newlabel("G3SPIN"), A.newlabel("G3OK"), A.newlabel("G3SP")
    a, b = S_TA, S_TB
    H = {}
    H[17] = [f"v_readfirstlane_b32 s{a}, v{p0}", f"v_readfirstlane_b32 s{b}, v{p1}", f"s_min_u32 s{a}, s{a}, s{b}",
             f"s_cmp_ge_u32 s{a}, 8", f"s_cbranch_scc0 {lsp}", f"{lok}:"]
    ool += [f"{lsp}:", f"s_mov_b32 s{S_H3+9}, 65536" if False else f"s_mov_b32 s50, 65536", f"{lp}:",
            f"s_and_b32 s{a}, s{S_POLL}, 0xfffffff0",
            f"buffer_load_dword v{p0}, off, s[{SRD_DBG}:{SRD_DBG+3}], s{a} sc1",
            f"buffer_load_dword v{p1}, off, s[{SRD_DBG}:{SRD_DBG+3}], s{a} offset:8 sc1", "s_waitcnt vmcnt(0)",
            f"v_readfirstlane_b32 s{a}, v{p0}", f"v_readfirstlane_b32 s{b}, v{p1}", f"s_min_u32 s{a}, s{a}, s{b}",
            f"s_cmp_ge_u32 s{a}, 8", f"s_cbranch_scc1 {lok}", "s_sleep 8",
            "s_sub_u32 s50, s50, 1", "s_cmp_lg_u32 s50, 0", f"s_cbranch_scc1 {lp}", f"s_branch {lok}"]
    H[18] = [f"v_bfe_u32 v{p0}, v{lanesrc}, 5, 5", f"v_bfe_u32 v{p1}, v{lanesrc}, 4, 1"]
    H[19] = [f"v_mul_u32_u24 v{p0}, 3584, v{p0}", f"v_lshl_add_u32 v{p0}, v{p1}, 7, v{p0}",
             f"s_lshr_b32 s{a}, {wgid}, 3", f"s_and_b32 s{a}, s{a}, 1", f"s_lshl_b32 s{a}, s{a}, 2", f"s_add_u32 s{a}, s{a}, s{S_W}", f"s_mul_i32 s{a}, s{a}, {64*3584}"]
    H[20] = [f"v_add_u32 v{p0}, s{a}, v{p0}", f"v_and_b32 v{p1}, 0x3f0, v{lanesrc}",
             f"s_and_b32 s{b}, s{S_W}, 1", f"s_lshl_b32 s{b}, s{b}, 13"]
    H[21] = [f"v_lshlrev_b32 v{p1}, 3, v{p1}"]
    H[22] = [f"v_add_u32 v{p1}, s{b}, v{p1}",
             f"s_lshr_b32 s{a}, s{S_STO}, 7", f"s_lshl_b32 s{b}, s{a}, 14", f"s_add_u32 s{b}, s{b}, {hex(OFF_STAT)}",
             f"s_lshl_b32 s{a}, s{a}, 3", f"s_bfe_u32 s50, {wgid}, 0x30004", f"s_add_u32 s{a}, s{a}, s50", f"s_lshl_b32 s{a}, s{a}, 14", f"s_add_u32 s{a}, s{a}, {hex(OFF_X1F)}",
             f"s_cmp_lt_u32 s{S_W}, 2", f"s_cselect_b32 s{b}, s{a}, s{b}"]
    H[23] = [f"s_mov_b32 m0, {DUMMY}", f"s_mov_b32 s{a}, {32*3584}", f"buffer_load_dword v{p0}, s[{SRD_W3}:{SRD_W3+3}], 0 offen lds"]
    H[25] = [f"buffer_load_dword v{p0}, s[{SRD_W3}:{SRD_W3+3}], s{a} offen lds"]
    H[27] = [f"buffer_load_dword v{p1}, s[{SRD_B}:{SRD_B+3}], s{b} offen lds"]
    return H
def b_voffsets(A, lane, t0, t1):
    A(f"v_and_b32 v{t0}, 31, v{lane}"); A(f"v_add_u32 v{t0}, s{S_STO}, v{t0}")
    A(f"v_lshrrev_b32 v{t1}, 5, v{lane}")
    A(f"v_lshlrev_b32 v{V_ST}, 7, v{t0}"); A(f"v_lshl_add_u32 v{V_ST}, v{t1}, 6, v{V_ST}")
    A(f"v_lshrrev_b32 v{V_B}, 4, v{t0}"); A(f"v_lshlrev_b32 v{V_B}, 14, v{V_B}")
    A(f"v_and_b32 v{t0}, 15, v{t0}"); A(f"v_lshl_add_u32 v{V_B}, v{t0}, 4, v{V_B}")
    A(f"v_lshl_add_u32 v{V_B}, v{t1}, 8, v{V_B}")
def st_loads():
    return [f"s_mov_b32 s{S_TB}, {hex(OFF_STAT)}"] + [f"buffer_load_dwordx4 {ar(A_ST+4*i)}, v{V_ST}, s[{SRD_B}:{SRD_B+3}], s{S_TB} offen offset:{16*i} sc1" for i in range(4)]
def b_load(s):
    return f"buffer_load_dwordx4 {ar(A_B+4*s)}, v{V_B}, s[{SRD_B}:{SRD_B+3}], s{S_BO+(s>>3)} offen offset:{512*(s&7)} sc1"

def check_hook(A, ool, p0, p1):
    lsp, lok, lp = A.newlabel("G3SPIN"), A.newlabel("G3OK"), A.newlabel("G3SP")
    a, b = S_TA, S_TB
    ool += [f"{lsp}:", f"s_mov_b32 s50, 65536", f"{lp}:",
            f"s_and_b32 s{a}, s{S_POLL}, 0xfffffff0",
            f"buffer_load_dword v{p0}, off, s[{SRD_DBG}:{SRD_DBG+3}], s{a} sc1",
            f"buffer_load_dword v{p1}, off, s[{SRD_DBG}:{SRD_DBG+3}], s{a} offset:8 sc1", "s_waitcnt vmcnt(0)",
            f"v_readfirstlane_b32 s{a}, v{p0}", f"v_readfirstlane_b32 s{b}, v{p1}", f"s_min_u32 s{a}, s{a}, s{b}",
            f"s_cmp_ge_u32 s{a}, 8", f"s_cbranch_scc1 {lok}", "s_sleep 8",
            "s_sub_u32 s50, s50, 1", "s_cmp_lg_u32 s50, 0", f"s_cbranch_scc1 {lp}", f"s_branch {lok}"]
    return [f"v_readfirstlane_b32 s{a}, v{p0}", f"v_readfirstlane_b32 s{b}, v{p1}", f"s_min_u32 s{a}, s{a}, s{b}",
            f"s_cmp_ge_u32 s{a}, 8", f"s_cbranch_scc0 {lsp}", f"{lok}:"]
def xtouch(wgid, S_W, lanesrc, p1):
    a, b = S_TA, S_TB
    H = {}
    H[18] = [f"v_and_b32 v{p1}, 0x3f0, v{lanesrc}", f"s_and_b32 s{b}, s{S_W}, 1", f"s_lshl_b32 s{b}, s{b}, 13"]
    H[20] = [f"v_lshlrev_b32 v{p1}, 3, v{p1}"]
    H[22] = [f"v_add_u32 v{p1}, s{b}, v{p1}",
             f"s_lshr_b32 s{a}, s{S_STO}, 7", f"s_lshl_b32 s{b}, s{a}, 14", f"s_add_u32 s{b}, s{b}, {hex(OFF_STAT)}",
             f"s_lshl_b32 s{a}, s{a}, 3", f"s_bfe_u32 s50, {wgid}, 0x30004", f"s_add_u32 s{a}, s{a}, s50", f"s_lshl_b32 s{a}, s{a}, 14", f"s_add_u32 s{a}, s{a}, {hex(OFF_X1F)}",
             f"s_cmp_lt_u32 s{S_W}, 2", f"s_cselect_b32 s{b}, s{a}, s{b}",
             f"s_mov_b32 m0, {DUMMY}", "s_nop 0", f"buffer_load_dword v{p1}, s[{SRD_B}:{SRD_B+3}], s{b} offen lds"]
    return H
RB0 = 65536
def main(A, vm, S_W, S_W4K, stamp):
    st = stamp
    TR, ONES, ACC, CS = 24, 28, 128, 192
    L, J, G_, T0, T1, HALF = 11, 12, 13, 14, 15, 9
    A(f"v_mbcnt_lo_u32_b32 v{L}, -1, 0"); A(f"v_mbcnt_hi_u32_b32 v{L}, -1, v{L}")
    A(f"v_and_b32 v{J}, 15, v{L}"); A(f"v_lshrrev_b32 v{G_}, 4, v{L}"); A(f"v_lshrrev_b32 v{HALF}, 5, v{L}")
    A(f"v_lshrrev_b32 v{T0}, 2, v{J}")
    A(f"v_lshl_add_u32 v{T1}, v{HALF}, 3, v{T0}")
    A(f"v_lshlrev_b32 v{T1}, 8, v{T1}")
    A(f"v_and_b32 v16, 1, v{G_}"); A(f"v_lshl_add_u32 v{T1}, v16, 5, v{T1}")
    A(f"v_and_b32 v16, 3, v{J}"); A(f"v_lshl_add_u32 v{T1}, v16, 3, v{T1}")
    A(f"v_add_u32 v{T1}, {RB0}, v{T1}")
    SD = [31, 32, 33, 34]
    for i in range(4):
        A(f"s_add_u32 s{SD[i]}, s{S_W}, {i}"); A(f"s_and_b32 s{SD[i]}, s{SD[i]}, 3")
        A(f"v_xor_b32 v16, s{SD[i]}, v{T0}")
        A(f"v_lshl_add_u32 v{TR+i}, v16, 6, v{T1}")
    for r in range(4): A(f"v_mov_b32 v{ONES+r}, 0x3f803f80")
    A(f"v_and_b32 v16, 31, v{L}"); A(f"v_add_u32 v16, s{S_STO}, v16")
    A("v_lshrrev_b32 v17, 4, v16"); A("v_mul_u32_u24 v17, 57344, v17")
    A("v_and_b32 v16, 15, v16"); A("v_lshl_add_u32 v17, v16, 4, v17")
    A(f"v_lshl_add_u32 v2, v{HALF}, 8, v17")
    A(f"s_waitcnt vmcnt({min(63, vm.cnt(['ST']))})")
    for r in range(16): A(f"v_accvgpr_read_b32 v{32+r}, a{A_ST+r}")
    A("v_add_f32 v48, v32, v34")
    for i in range(2, 8): A(f"v_add_f32 v48, v48, v{32+2*i}")
    half_sum(A, 48, 50)
    A("v_mul_f32 v48, 0x3d800000, v48")
    for i in range(8): A(f"v_sub_f32 v{32+2*i}, v{32+2*i}, v48")
    A("v_mul_f32 v49, v32, v32")
    for i in range(1, 8): A(f"v_fma_f32 v49, v{32+2*i}, v{32+2*i}, v49")
    A("v_add_f32 v51, v33, v35")
    for i in range(2, 8): A(f"v_add_f32 v51, v51, v{33+2*i}")
    A("v_mov_b32 v52, 0x42000000")
    A("v_fma_f32 v49, v49, v52, v51")
    half_sum(A, 49, 50)
    A("v_mov_b32 v50, 0x3727c5ac")
    A("v_fmac_f32 v50, 0x3b000000, v49")
    A("v_rsq_f32 v50, v50")
    A("s_nop 0")
    A("v_mov_b32 v51, v50")
    A("v_sub_f32 v52, 0, v48")
    A("v_mov_b32 v53, v52")
    RB = [65536, 65536, 65536, 131072, 65536, 0, 0, 0]
    def wreads(s):
        c, ks, p = s >> 2, s & 3, s & 1
        R = []
        for i in range(4):
            for rd in range(2):
                b = A_W + 16*p + 4*i + 2*rd
                R.append(f"ds_read_b64_tr_b16 a[{b}:{b+1}], v{TR+i} offset:{CH[c] - RB[c] + ks*4096 + rd*1024}")
        return R
    def rebase(c):
        d = RB[c+1] - RB[c]
        if d == 0: return []
        return [(f"v_add_u32 v{TR+i}, {d}, v{TR+i}" if d > 0 else f"v_subrev_u32 v{TR+i}, {-d}, v{TR+i}") for i in range(4)]
    A(f"s_waitcnt vmcnt({min(63, vm.cnt(['W0', 'B0', 'B1', 'B2', 'B3']))})")
    A("s_barrier")
    st(22)
    for t in wreads(0): A(t)
    for s in range(32):
        c, p = s >> 2, s & 1
        last = (s & 3) == 3
        pre = ["s_waitcnt lgkmcnt(0)"]
        if last and c < 7:
            n = min(63, vm.cnt([f"W{c+1}"] + [f"B{4*c+4+k}" for k in range(4)]))
            pre = [f"s_waitcnt vmcnt({n}) lgkmcnt(0)", "s_barrier"] + rebase(c)
        for t in pre: A(t)
        M = [f"v_mfma_f32_32x32x16_bf16 {vr(ACC+16*i,16)}, {ar(A_W+16*p+4*i)}, {ar(A_B+4*s)}, " + ("0" if s == 0 else vr(ACC+16*i,16)) for i in range(4)]
        M.append(f"v_mfma_f32_32x32x16_bf16 {vr(CS,16)}, {ar(A_W+16*p)}, {vr(ONES)}, " + ("0" if s == 0 else vr(CS,16)))
        F = []
        if s + 1 < 32:
            for k, t in enumerate(wreads(s+1)): F.append((k >> 1, t))
        if s < 6:
            for k, g in enumerate(wdma(5 + (s >> 1), S_W4K)[2*(s & 1):2*(s & 1)+2]):
                for t in g: F.append((1 + 2*k, t))
                vm.issue(f"W{5 + (s >> 1)}")
        interleave(A, M, F)
    st(23)
    A(f"s_lshl_b32 s{S_TA}, s{S_W}, 7"); A(f"s_add_u32 s{S_TA}, s{S_TA}, {LDS_X}")
    A(f"v_lshlrev_b32 v16, 6, v{HALF}")
    A(f"v_add_u32 v17, s{S_TA}, v16")
    A(f"v_mov_b32 v54, {GC0}"); A(f"v_mov_b32 v55, {GC0}"); A(f"v_mov_b32 v56, {GC1}"); A(f"v_mov_b32 v57, {GC1}")
    for i in range(1, 4):
        A(f"s_lshl_b32 s{S_TA}, s{SD[i]}, 7"); A(f"s_add_u32 s{S_TA}, s{S_TA}, {LDS_X}"); A(f"v_add_u32 v{17+i}, s{S_TA}, v16")
    for i in range(4):
        A(f"s_add_u32 s{SD[i]}, s{SD[i]}, s{S_H3}"); A(f"s_lshl_b32 s{SD[i]}, s{SD[i]}, 10"); A(f"s_add_u32 s{SD[i]}, s{SD[i]}, {hex(OFF_H3)}")
    A("s_nop 7")
    A("s_mov_b32 exec_lo, 1"); A("s_mov_b32 exec_hi, 1")
    for k in range(4): A(f"ds_write_b128 v17, {vr(CS+4*k)} offset:{16*k}")
    A("s_mov_b64 exec, -1")
    A("s_waitcnt lgkmcnt(0)")
    A("s_barrier")
    for i in range(1, 4):
        for k in range(4): A(f"ds_read_b128 {vr(CS+16*i+4*k)}, v{17+i} offset:{16*k}")
    for i in range(4):
        X = ACC + 16*i; cs = CS + 16*i
        if i: A(f"s_waitcnt lgkmcnt({12 - 4*i})")
        for r in range(0, 16, 2): A(f"v_pk_fma_f32 {vr(X+r,2)}, {vr(cs+r,2)}, {vr(52,2)}, {vr(X+r,2)}")
        for r in range(0, 16, 2): A(f"v_pk_mul_f32 {vr(X+r,2)}, {vr(X+r,2)}, {vr(50,2)}")
        gelu_block(A, X, 16, 64, 54, 56)
        o = 32 + 8*(i & 1)
        for r in range(8): A(f"v_cvt_pk_bf16_f32 v{o+r}, v{X+2*r}, v{X+2*r+1}")
        A(f"buffer_store_dwordx4 {vr(o)}, v2, s[{SRD_B}:{SRD_B+3}], s{SD[i]} offen")
        A(f"buffer_store_dwordx4 {vr(o+4)}, v2, s[{SRD_B}:{SRD_B+3}], s{SD[i]} offen offset:512")
```

```python
import os
from common import *

V_QLA, V_X, V_Y, V_DMA = 0, 1, 2, 3
E = (4, 6)
L0S, L1S, L0L, L1L = 8, 10, 12, 14
S0, S1, P0, P1 = 16, 32, 48, 56
Q0, Q1 = 64, 96
KF, VF = 128, 160
BA0, BA1, BB0, BB1 = 192, 208, 224, 240
O_S, O_L = 0, 128
S_W, S_HEAD, S_J = 20, 21, 22
S_MX, S_K, S_KB, S_VA, S_VP, S_CNT = 23, 24, 25, 26, 27, 28
S_QBS, S_QBL, S_A, S_B, S_D = 31, 32, 33, 34, 35
S_CSO, S_TMP, S_TMP2 = 36, 37, 38
S_WS, S_WM, S_W4K = 39, 44, 30
SRD_KV, SRD_WQ, SRD_XN, SRD_CTX, SRD_QS = 4, 8, 12, 16, 56
LDS_X = 131072
KE, KO, VE, VO = 0, 16384, 32768, 49152
NEG = "0xff800000"
WS_QS = 0x5000000

def ar(b, n=4): return f"a[{b}:{b+n-1}]"
def vr(b, n=4): return f"v[{b}:{b+n-1}]"

class VM:
    def __init__(s): s.q = []
    def issue(s, tag): s.q.append(tag)
    def cnt(s, tags):
        last = max(i for i, t in enumerate(s.q) if t in tags)
        return len(s.q) - 1 - last

def qk(S, q, c):
    M = []
    for s in range(8):
        cc = c if s == 0 else vr(S, 16)
        M.append(f"v_mfma_f32_32x32x16_bf16 {vr(S,16)}, {vr(KF+4*s)}, {vr(q+4*s)}, {cc}")
    return M
def pv(P, o):
    M = []
    for t in range(2):
        for db in range(4):
            M.append(f"v_mfma_f32_32x32x16_bf16 {ar(o+16*db,16)}, {vr(VF+4*(t*4+db))}, {vr(P+4*t)}, {ar(o+16*db,16)}")
    return M

import os
X = os.environ.get("X", "").split(",")
STD_Q = ["K6", "V2", "K7", "V3"]

def step(A, par, qk0, qk1, o, sm1, tr0, sm0, tr1, dmaV=True, dmaK=True, rdK=True, rdV2=True, rdV1=True,
         nprev=8, salu=None, extra=None, entry=STD_Q, barrier=True, nops=None, std_exit=True):
    salu = salu or {}; extra = extra or {}; nops = nops or {}
    M = [None]*32
    if qk0 is not None: M[0:8] = qk(S0, Q0, qk0)
    if qk1 is not None: M[16:24] = qk(S1, Q1, qk1)
    if o is not None:
        M[8:16] = pv(P0, o); M[24:32] = pv(P1, o + 64)
    G = {g: [] for g in range(32)}
    def add2(l, e): return [f"v_add_f32 v{l}, v{l}, v{e}", f"v_add_f32 v{l+1}, v{l+1}, v{e+1}"]
    def sm(base, S, P, L, tr):
        if tr is not None and L is None:
            G[base] += add2(tr, E[1])
        if L is None: return
        for k in range(8):
            e = E[k & 1]; g = base + 2*k
            G[g].append(f"v_exp_f32 v{e}, v{S+2*k}")
            G[g].append(f"v_exp_f32 v{e+1}, v{S+2*k+1}")
            if k == 0:
                if tr is not None: G[g] += add2(tr, E[1])
                else: G[g].append("s_nop 0")
            else:
                G[g] += add2(L, E[(k-1)&1])
            G[g+1].append(f"v_cvt_pk_bf16_f32 v{P+k}, v{e}, v{e+1}")
    sm(0, S1, P1, sm1, tr0)
    sm(16, S0, P0, sm0, tr1)
    q = list(entry)
    if par == 0: aV1, oV1, aK, oK, aV2, oV2 = V_X, VE, V_Y, KE, V_X, VO
    else:        aV1, oV1, aK, oK, aV2, oV2 = V_X, VO, V_Y, KO, V_Y, VE
    R = {g: [] for g in range(32)}
    if rdV1:
        for i in range(4): R[1+2*i].append((f"V{4+i}", f"ds_read_b128 {vr(VF+4*(4+i))}, v{aV1} offset:{oV1+(4+i)*1024}"))
    if rdK:
        for s in range(8): R[17+2*s].append((f"K{s}", f"ds_read_b128 {vr(KF+4*s)}, v{aK} offset:{oK+s*1024}"))
    if rdV2:
        for i in range(4): R[25+2*i].append((f"V{i}", f"ds_read_b128 {vr(VF+4*i)}, v{aV2} offset:{oV2+i*1024}"))
    for g, l in extra.items(): R[g] += l
    if par == 0: mV, sV, mK, sK = f"s_xor_b32 m0, s{S_MX}, 0x1c000", S_VP, f"s_mov_b32 m0, s{S_MX}", S_K
    else:        mV, sV, mK, sK = f"s_or_b32 m0, s{S_MX}, 0x8000", S_VA, f"s_or_b32 m0, s{S_MX}, 0x4000", S_KB
    D = {g: [] for g in range(32)}
    nb = 0
    if dmaV:
        for i, g in enumerate((1, 3, 7, 9)):
            D[g].append(f"buffer_load_dwordx4 v{V_DMA}, s[{SRD_KV}:{SRD_KV+3}], s{sV} offen offset:{i*1024} lds"); nb += 1
    if dmaK:
        for i, g in enumerate((13, 17, 19, 21)):
            D[g].append(f"buffer_load_dwordx4 v{V_DMA}, s[{SRD_KV}:{SRD_KV+3}], s{sK} offen offset:{i*1024} lds")
            if g < 15: nb += 1
    def wait(tags):
        idx = [i for i, t in enumerate(q) if t in tags]
        if not idx: return None
        n = len(q) - 1 - max(idx)
        del q[:max(idx)+1]
        return f"s_waitcnt lgkmcnt({min(n,15)})"
    waits = {5: ["K6", "K7", "V2", "V3"], 11: ["V4","V5","V6","V7"], 31: ["K0","K1","K2","K3","K4","K5","V0","V1"],
             15: ["QB%d" % i for i in range(8)]}
    waits[31] += ["QA%d" % i for i in range(8)]
    for g in range(32):
        if M[g]: A(M[g])
        if g == 1 and dmaV:
            A(mV)
            if not G[1]: A("s_nop 0")
        if g == 11 and dmaK: pass
        for t in G[g]:
            if "nosm" in X and sm1 is not None and sm0 is not None: continue
            if "noexp" in X and t.startswith("v_exp"): t = t.replace("v_exp_f32", "v_mov_b32")
            A(t)
        for tag, t in R[g]:
            if not ("nord" in X and sm1 is not None and sm0 is not None): A(t)
            q.append(tag)
        if g in waits:
            w = wait(waits[g])
            if w: A(w)
        for t in salu.get(g, []):
            if t.endswith(":"): A.label(t[:-1])
            else: A(t)
        if g == 11 and dmaK: A(mK)
        for t in D[g]:
            if "nodma" not in X: A(t)
        if g == 15 and barrier:
            if "novm" not in X: A(f"s_waitcnt vmcnt({nprev + nb})")
            if "nobar" not in X: A("s_barrier")
        for t in nops.get(g, []): A(t)
    if std_exit: assert q == STD_Q, q
    return q

def toggle():
    return [f"v_xor_b32 v{V_X}, 0x10000, v{V_X}", f"v_xor_b32 v{V_Y}, 0x10000, v{V_Y}", f"s_xor_b32 s{S_MX}, s{S_MX}, 0x10000"]

def pair(A, kind, nprev=8, hook=None, extra_prev=0, hook0=None, nprev0=8, nprev1=8):
    o = O_S if kind[0] == "S" else O_L
    l0, l1 = (L0S, L1S) if kind[0] == "S" else (L0L, L1L)
    kupd = [f"s_add_u32 s{S_K}, s{S_K}, 0x10000"] if kind != "SP" else [f"s_mov_b32 s{S_K}, 0"]
    sal_even = {5: kupd, 23: [f"s_add_u32 s{S_KB}, s{S_K}, 0x8000", f"s_add_u32 s{S_VA}, s{S_K}, 0x4000"]}
    tg = toggle()
    sal_odd = {23: [f"s_add_u32 s{S_VP}, s{S_K}, 0xc000"], 31: tg}
    if kind[1] == "R":
        for g_, L_ in (hook0 or {}).items(): sal_even[g_] = sal_even.get(g_, []) + L_
        step(A, 0, "0", "0", o, l1, l0, l0, l1, salu=sal_even, nprev=nprev0)
        step(A, 1, "0", "0", o, l1, l0, l0, l1, salu=sal_odd, nprev=nprev1)
    elif kind == "SP":
        step(A, 0, "0", "0", o, l1, l0, l0, l1, salu=sal_even)
        step(A, 1, vr(BA0,16), vr(BA1,16), o, l1, l0, l0, l1, salu=sal_odd)
    elif kind == "SL":
        def qr(tag, dst, f): return (f"{tag}{f}", f"ds_read_b128 {vr(dst+4*f)}, v{V_QLA} offset:{f*1024}")
        ex = {}
        for f, g in enumerate((5, 9, 11, 11, 13, 15, 15, 23)): ex.setdefault(g, []).append(qr("QA", Q0, f))
        se = dict(sal_even); se[23] = se[23] + [f"v_xor_b32 v{V_QLA}, 0x2000, v{V_QLA}"]
        for f, g in enumerate((25, 27, 29)): ex.setdefault(g, []).append(qr("QB", Q1, f))
        x = step(A, 0, vr(BB0,16), vr(BB1,16), o, l1, l0, l0, l1, salu=se, extra=ex, std_exit=False)
        ex = {}
        for f, g in zip(range(3, 8), (5, 9, 11, 11, 13)): ex.setdefault(g, []).append(qr("QB", Q1, f))
        step(A, 1, "0", "0", o, L1S, L0S, L0L, L1S, salu=sal_odd, extra=ex, entry=x)
    elif kind == "LP":
        step(A, 0, "0", "0", o, l1, l0, l0, l1, salu=dict(hook0 or {}), dmaK=False, nprev=nprev0)
        sal = dict(hook or {}); sal[31] = sal.get(31, []) + tg
        step(A, 1, vr(BA0,16), vr(BA1,16), o, l1, l0, l0, l1, salu=sal, dmaK=False, dmaV=False, nprev=nprev1)
    elif kind == "LL":
        x = step(A, 0, vr(BB0,16), vr(BB1,16), o, l1, l0, l0, l1, dmaK=False, dmaV=False, nprev=extra_prev, rdK=False, std_exit=False, salu=dict(hook0 or {}))
        step(A, 1, None, None, o, l1, l0, None, l1, dmaK=False, dmaV=False, rdK=False, rdV2=False, barrier=False,
             entry=x, std_exit=False, nops={16: ["s_nop 1"]})

def emit_attn2(A, wgid="s2", stamp=None, fallback=True, g2=False, g3=False):
    import k2
    st_ = stamp if stamp else (lambda k: None)
    SM = dict(x.split(":") for x in os.environ.get("SM", "0:0,1:1,2:2,3:3,4:4,5:5,6:6").split(","))
    def st(k):
        if str(k) in SM: st_(int(SM[str(k)]))
    ool = []
    load_ptr(A, 40, KA_WQ); load_ptr(A, 42, KA_WS)
    if g2: k2.g2_ptrs(A)
    if g3 == 2:
        import g3v2
        g3v2.ptr(A)
    A("v_lshrrev_b32 v10, 6, v0")
    A("v_and_b32 v11, 63, v0")
    A(f"v_readfirstlane_b32 s{S_W}, v10")
    A(f"s_and_b32 s{S_HEAD}, {wgid}, 7")
    A(f"s_lshr_b32 s{S_TMP}, {wgid}, 3")
    A(f"s_and_b32 s{S_TMP}, s{S_TMP}, 3")
    A(f"s_lshl_b32 s{S_TMP}, s{S_TMP}, 3")
    A(f"s_add_u32 s{S_HEAD}, s{S_HEAD}, s{S_TMP}")
    A(f"s_lshr_b32 s{S_J}, {wgid}, 5")
    A(f"s_lshl_b32 s{S_QBS}, s{S_J}, 2"); A(f"s_add_u32 s{S_QBS}, s{S_QBS}, s{S_W}")
    A(f"s_sub_u32 s{S_QBL}, 15, s{S_J}"); A(f"s_lshl_b32 s{S_QBL}, s{S_QBL}, 2"); A(f"s_add_u32 s{S_QBL}, s{S_QBL}, s{S_W}")
    A(f"s_lshl_b32 s{S_W4K}, s{S_W}, 12")
    A(f"s_lshl_b32 s{S_CSO}, s{S_HEAD}, 12")
    A(f"v_lshlrev_b32 v2, 4, v11")
    A(f"v_add_u32 v{V_DMA}, s{S_W4K}, v2")
    A(f"s_cmp_eq_u32 s{S_J}, 0")
    A(f"s_cselect_b32 s{S_K}, 0, 0x10000")
    A("s_waitcnt lgkmcnt(0)")
    A(f"s_lshl_b32 s{S_TMP}, s{S_HEAD}, 20")
    A(f"s_add_u32 s4, s42, s{S_TMP}"); A("s_addc_u32 s5, s43, 0")
    if WS_KV: A(f"s_add_u32 s4, s4, {hex(WS_KV)}"); A("s_addc_u32 s5, s5, 0")
    A("s_mov_b32 s6, 0x100000"); A("s_mov_b32 s7, 0x00020000")
    A(f"s_lshl_b32 s{S_TMP}, s{S_HEAD}, 8")
    A(f"s_add_u32 s8, s40, s{S_TMP}"); A("s_addc_u32 s9, s41, 0")
    A(f"s_sub_u32 s10, 0x400000, s{S_TMP}"); A("s_mov_b32 s11, 0x00020000")
    srd_off(A, SRD_XN, 42, WS_XNF, 0x200000)
    srd_off(A, SRD_CTX, 42, WS_CTX, 0x1000000)
    srd_off(A, SRD_QS, 42, WS_QS, 0x800000)
    VW, VB0, VB1, VT = 12, 16, 17, 22
    A("v_lshrrev_b32 v13, 4, v11")
    A("v_and_b32 v14, 15, v11")
    A("v_lshlrev_b32 v15, 2, v13")
    A("v_xor_b32 v15, v14, v15")
    A("v_lshlrev_b32 v15, 4, v15")
    A(f"v_lshl_add_u32 v{VW}, v13, 13, v15")
    A(f"s_lshl_b32 s{S_TMP}, s{S_W}, 18")
    A(f"v_add_u32 v{VW}, s{S_TMP}, v{VW}")
    A("v_and_b32 v18, 1, v13")
    A("v_lshrrev_b32 v19, 5, v11")
    A("v_lshl_add_u32 v20, v19, 4, v14")
    A("v_lshlrev_b32 v20, 4, v20")
    A("v_lshl_add_u32 v21, v18, 14, v20")
    A(f"s_lshl_b32 s{S_TMP}, s{S_QBS}, 15"); A(f"v_add_u32 v{VB0}, s{S_TMP}, v21")
    A(f"s_lshl_b32 s{S_TMP}, s{S_QBL}, 15"); A(f"v_add_u32 v{VB1}, s{S_TMP}, v21")
    A("v_lshrrev_b32 v26, 2, v14")
    A("v_lshrrev_b32 v27, 1, v13")
    A("v_lshl_add_u32 v27, v27, 3, v26")
    A("v_lshlrev_b32 v27, 8, v27")
    A("v_bfe_u32 v28, v14, 1, 1")
    A("v_lshl_add_u32 v28, v18, 1, v28")
    A("v_lshl_add_u32 v27, v28, 4, v27")
    A("v_and_b32 v28, 1, v14")
    A("v_lshl_add_u32 v27, v28, 3, v27")
    for db in range(4):
        A(f"v_xor_b32 v28, {db}, v26")
        A(f"v_lshl_add_u32 v{VT+db}, v28, 6, v27")
    vm = VM()
    WBUF = [LDS_X, 65536, 98304, LDS_X]
    A(f"s_lshl_b32 s{S_WM}, s{S_W}, 13")
    def wdma(c):
        R = []
        for i in range(8):
            R.append([f"s_add_u32 m0, s{S_WM}, {WBUF[c] + i*1024}",
                      f"s_mov_b32 s{S_WS}, {(128*c + 4*i)*8192}",
                      f"buffer_load_dwordx4 v{VW}, s[8:11], s{S_WS} offen lds"])
        return R
    def bload(c, s):
        p = c & 1
        return [f"buffer_load_dwordx4 {ar(64*p + 32*b + 4*s)}, v{vx}, s[12:15], s{45+c} offen offset:{512*s}" for b, vx in ((0, VB0), (1, VB1))]
    for c in range(4): A(f"s_mov_b32 s{45+c}, {4096*c}")
    def kvdma(ldsbase, soff):
        R = [[f"s_add_u32 m0, s{S_W4K}, {ldsbase}"] + ([f"s_mov_b32 s{S_WS}, {soff}"] if isinstance(soff, int) else [])]
        so = f"s{S_WS}" if isinstance(soff, int) else soff
        for i in range(4):
            R.append([f"buffer_load_dwordx4 v{V_DMA}, s[4:7], {so} offen offset:{i*1024} lds"])
        return R
    def emit_list(R, tag):
        for g in R:
            if isinstance(g, str): g = [g]
            for t in g:
                A(t)
                if t.startswith("buffer_"): vm.issue(tag)
    st(0)
    if not g2:
        emit_list(wdma(0), "W0")
        for s in range(8): emit_list(bload(0, s), "B0")
        emit_list(wdma(1), "W1")
        for s in range(8): emit_list(bload(1, s), "B1")
        emit_list(wdma(2), "W2")
    else:
        k2.g2_setup(A, wgid, S_W, 11, 42)
        for c in range(4): emit_list(k2.g2_loads(c), f"G{c}")
        emit_list(k2.g2_xloads(SRD_XN), "GX")
        emit_list(wdma(0), "W0")
        later = [([t for s in range(8) for t in bload(0, s)], "B0"), (wdma(1), "W1"), ([t for s in range(8) for t in bload(1, s)], "B1"), (wdma(2), "W2")]
        flat = [(g, tag) for (L, tag) in later for g in L]
        per = (len(flat) + 3) // 4
        for c in range(4):
            A(f"s_waitcnt vmcnt({vm.cnt([f'G{c}'])})")
            st(10 + c)
            A("s_barrier")
            for t in k2.g2_wreads(c): A(t)
            for g, tag in flat[c*per:(c+1)*per]: emit_list([g], tag)
            for s in range(8):
                A(f"s_waitcnt lgkmcnt({min(14 - 2*s, 15)})")
                A(k2.g2_mfma(c, s))
        A(f"s_waitcnt vmcnt({vm.cnt(['GX'])})")
        st(6)
        k2.g2_epilogue(A, vm)
        A("s_barrier")
    def wreads(c, s):
        p = s & 1
        R = []
        for db in range(4):
            for rd in range(2):
                b = 128 + 16*p + 4*db + 2*rd
                R.append(f"ds_read_b64_tr_b16 a[{b}:{b+1}], v{VT+db} offset:{4096*s + 1024*rd}")
        return R
    def setbuf(c):
        d = WBUF[c] - (WBUF[c-1] if c else 0)
        return [(f"v_add_u32 v{VT+db}, {d}, v{VT+db}" if d >= 0 else f"v_subrev_u32 v{VT+db}, {-d}, v{VT+db}") for db in range(4)]
    for t in setbuf(0): A(t)
    A(f"s_waitcnt vmcnt({vm.cnt(['W0','B0'])})")
    A("s_barrier")
    st(1)
    for t in wreads(0, 0): A(t)
    QACC = lambda b, db: vr(128 + 64*b + 16*db, 16)
    kvlist = [(KE, 0), (KO, 32768), (VE, 16384), (VO, 49152)]
    for c in range(4):
        for s in range(8):
            p = s & 1
            pre = ["s_waitcnt lgkmcnt(0)"]
            last = (s == 7)
            if last and c < 3:
                n = vm.cnt([f"W{c+1}", f"B{c+1}"])
                pre = [f"s_waitcnt vmcnt({n}) lgkmcnt(0)", "s_barrier"] + setbuf(c+1)
            if last and c == 3:
                pre = ["s_waitcnt lgkmcnt(0)", "s_barrier"]
            M = []
            for db in range(4):
                for b in range(2):
                    cc = "0" if (c == 0 and s == 0) else QACC(b, db)
                    M.append(f"v_mfma_f32_32x32x16_bf16 {QACC(b,db)}, {ar(128+16*p+4*db)}, {ar(64*(c&1)+32*b+4*s)}, {cc}")
            F = []
            if not last: F += [(i, t) for i, t in enumerate(wreads(c, s+1))]
            elif c < 3: F += [(i, t) for i, t in enumerate(wreads(c+1, 0))]
            ext = []
            if s > 0 and c + 2 <= 3:
                ext += [(t, f"B{c+2}") for t in bload(c+2, s-1)]
            if last and c == 0:
                for g in wdma(3): ext += [(t, "W3") for t in g]
            if last and c == 1:
                for g in kvdma(65536 + KE, f"s{S_K}"): ext += [(t, "KV2") for t in g]
            if c == 0 and s in (1, 3, 5, 6):
                b_, o_ = kvlist[(1, 3, 5, 6).index(s)]
                for g in kvdma(b_, o_): ext += [(t, "KV0") for t in g]
            for t in pre: A(t)
            if g2 and last and c == 1:
                A(k2.g2_signal()); vm.issue("SIG")
            for k, (t, tag) in enumerate(ext):
                g = min(7, k*8 // max(len(ext), 1))
                F.append((g, t))
                if t.startswith("buffer_"): vm.issue(tag)
            interleave(A, M, F)
            if last and c + 2 <= 3:
                for t in bload(c+2, 7): A(t); vm.issue(f"B{c+2}")
    st(2)
    A("v_and_b32 v11, 63, v0")
    A("v_lshlrev_b32 v2, 4, v11")
    A(f"s_lshl_b32 s{S_TMP}, s{S_W}, 13")
    A(f"s_add_u32 s{S_TMP2}, s{S_TMP}, {LDS_X}")
    A(f"v_add_u32 v{V_QLA}, s{S_TMP2}, v2")
    A(f"s_add_u32 s{S_TMP2}, s{S_TMP}, 98304")
    A(f"v_add_u32 v4, s{S_TMP2}, v2")
    A(f"v_xor_b32 v5, 0x2000, v4")
    A(f"s_lshl_b32 s{S_TMP2}, {wgid}, 15"); A(f"s_add_u32 s{S_TMP2}, s{S_TMP2}, s{S_TMP}")
    A(f"s_mov_b32 s{S_A}, s{S_TMP2}")
    for r in range(4): A(f"v_mov_b32 v{S0+r}, 0")
    A("s_nop 1")
    Z = [f"v_mfma_f32_32x32x16_bf16 {ar(16*i,16)}, {vr(S0)}, {vr(S0)}, 0" for i in range(16)]
    F = []
    def cv(dst, b, f):
        db, t = f >> 1, f & 1
        return [f"v_cvt_pk_bf16_f32 v{dst + 4*f + r}, v{128 + 64*b + 16*db + 8*t + 2*r}, v{128 + 64*b + 16*db + 8*t + 2*r + 1}" for r in range(4)]
    g = 2
    for f in range(8):
        for t in cv(Q0, 0, f): F.append((g, t))
        F.append((g, f"ds_write_b128 v4, {vr(Q0+4*f)} offset:{f*1024}"))
        g += (f & 1) ^ 1 if False else 0
        if f & 1: g += 1
    for f in range(8):
        for t in cv(Q1, 1, f): F.append((g, t))
        F.append((g, f"ds_write_b128 v{V_QLA}, {vr(Q1+4*f)} offset:{f*1024}"))
        if f & 1: g += 1
    for f in range(8):
        F.append((g + f//2, f"buffer_store_dwordx4 {vr(Q0+4*f)}, v2, s[{SRD_QS}:{SRD_QS+3}], s{S_A} offen offset:{(f&3)*1024}" if f < 4 else
                  f"buffer_store_dwordx4 {vr(Q0+4*f)}, v3, s[{SRD_QS}:{SRD_QS+3}], s{S_B} offen offset:{(f&3)*1024}"))
    F = [(a_, t.replace("v3, s[56:59], s34", "v2, s[56:59], s34")) for a_, t in F]
    A(f"s_add_u32 s{S_B}, s{S_A}, 4096")
    interleave(A, Z, F)
    A(f"s_and_b32 s{S_TMP}, s{S_W}, 1"); A(f"s_lshl_b32 s{S_TMP}, s{S_TMP}, 13")
    A(f"v_add_u32 v{V_Y}, s{S_TMP}, v2")
    A(f"v_add_u32 v{V_X}, 0x10000, v{V_Y}")
    A(f"s_add_u32 s{S_MX}, s{S_W4K}, 0x10000")
    A(f"s_add_u32 s{S_KB}, s{S_K}, 0x8000"); A(f"s_add_u32 s{S_VA}, s{S_K}, 0x4000")
    A(f"s_add_u32 s{S_VP}, s{S_K}, 0xc000")
    A("s_waitcnt lgkmcnt(0)")
    A("s_barrier")
    for f in range(8): A(f"ds_read_b128 {vr(Q1+4*f)}, v5 offset:{f*1024}")
    for s in range(8): A(f"ds_read_b128 {vr(KF+4*s)}, v{V_Y} offset:{KE+s*1024}")
    A("v_and_b32 v11, 31, v11"); A("v_bfe_u32 v12, v2, 9, 1")
    A("v_lshlrev_b32 v12, 2, v12"); A("v_sub_u32 v11, v11, v12")
    A(f"v_mov_b32 v12, {NEG}")
    A(f"s_cmp_lt_u32 s{S_W}, 2"); A(f"s_cselect_b32 s{S_A}, -1, 0"); A(f"s_cselect_b32 s{S_B}, {NEG}, 0"); A(f"s_cselect_b32 s{S_D}, 0, -1")
    A(f"s_cmp_eq_u32 s{S_W}, 1"); A(f"s_cselect_b32 s{S_TMP}, {NEG}, 0")
    A(f"s_cmp_eq_u32 s{S_W}, 2"); A(f"s_cselect_b32 s{S_TMP2}, 0, {NEG}")
    for r in range(16):
        key = 16*((r >> 2) & 1) + 8*(r >> 3) + (r & 3)
        A(f"v_cmp_gt_i32 vcc, {key}, v11")
        A(f"v_mov_b32 v{BA1+r}, s{S_TMP}")
        A(f"v_mov_b32 v{BB1+r}, s{S_TMP2}")
        A(f"v_cndmask_b32 v13, 0, v12, vcc")
        A(f"v_and_b32 v{BA0+r}, s{S_A}, v13")
        A(f"v_and_b32 v13, s{S_D}, v13")
        A(f"v_or_b32 v{BB0+r}, s{S_B}, v13")
    A(f"s_cmp_eq_u32 s{S_J}, 0"); A(f"s_cselect_b32 s{S_A}, -1, 0")
    for r in range(16):
        A(f"v_and_b32 v{S0+r}, s{S_A}, v{BA0+r}")
        A(f"v_and_b32 v{S1+r}, s{S_A}, v{BA1+r}")
    for r in range(8, 16): A(f"v_mov_b32 v{r}, 0")
    A("s_waitcnt lgkmcnt(0)")
    A("s_barrier")
    st(3)
    step(A, 1, vr(S0,16), vr(S1,16), None, None, None, L0S, None, rdV1=False, entry=[], nprev=0,
         salu={31: toggle()}, nops={15: ["s_nop 7", "s_nop 7"]})
    lSP, lSL, lSR = A.newlabel("SP"), A.newlabel("SL"), A.newlabel("SR")
    A(f"s_cmp_eq_u32 s{S_J}, 0"); A(f"s_cbranch_scc1 {lSL}")
    A(f"s_sub_u32 s{S_CNT}, s{S_J}, 1")
    A(f"s_cmp_eq_u32 s{S_CNT}, 0"); A(f"s_cbranch_scc1 {lSP}")
    A.label(lSR)
    pair(A, "SR")
    A(f"s_sub_u32 s{S_CNT}, s{S_CNT}, 1"); A(f"s_cmp_lg_u32 s{S_CNT}, 0"); A(f"s_cbranch_scc1 {lSR}")
    A.label(lSP)
    pair(A, "SP")
    A.label(lSL)
    pair(A, "SL")
    st(4)
    if g3 == 2:
        g3v2.scalars(A, wgid, S_W)
        g3v2.wd_voffset(A, S_W, V_DMA, E[0], E[0]+1)
        A(f"v_add_f32 v{L0S}, v{L0S}, v{L0S+1}"); A(f"v_add_f32 v{L1S}, v{L1S}, v{L1S+1}")
        for t_ in g3v2.poll_loads(L0S+1, L1S+1): A(t_)
    A(f"s_sub_u32 s{S_CNT}, 14, s{S_J}")
    lLR = A.newlabel("LR")
    A.label(lLR)
    pair(A, "LR")
    A(f"s_sub_u32 s{S_CNT}, s{S_CNT}, 1"); A(f"s_cmp_lg_u32 s{S_CNT}, 0"); A(f"s_cbranch_scc1 {lLR}")
    vm = VM()
    if g3 == 2:
        def put(h, c, gaps):
            for g_, grp in zip(gaps, g3v2.wdma(c, S_W4K)):
                h.setdefault(g_, []).extend(grp); vm.issue(f"W{c}")
        h0, h1, h2 = {16: g3v2.check_hook(A, ool, L0S+1, L1S+1)}, {}, {}
        TOUCH = "notouch" not in X
        if TOUCH:
            for g_, L_ in g3v2.xtouch(wgid, S_W, V_DMA, L1S+1).items(): h0.setdefault(g_, []).extend(L_)
            vm.issue("TOUCH")
        put(h0, 0, (17, 19, 21, 23) if not TOUCH else (23, 24, 25, 26)); put(h0, 1, (25, 27, 29, 31) if not TOUCH else (27, 28, 29, 31))
        put(h1, 2, (1, 3, 5, 7)); put(h1, 3, (9, 11, 13, 17))
        put(h2, 4, (1, 3, 5, 7))
        pair(A, "LP", hook0=h0, hook=h1, nprev1=4+8+7+TOUCH)
        pair(A, "LL", hook0=h2, extra_prev=8+8+4+TOUCH)
    else:
        pair(A, "LP", nprev1=4)
        pair(A, "LL")
    st(5)
    if g3 == 2:
        pass
    elif g3:
        A(f"s_and_b32 s{k2.T0}, {wgid}, 7"); A(f"s_lshr_b32 s{k2.T2}, {wgid}, 3"); A(f"s_and_b32 s{k2.T2}, s{k2.T2}, 3")
        A(f"s_lshl_b32 s{k2.T2}, s{k2.T2}, 3"); A(f"s_add_u32 s{k2.T0}, s{k2.T0}, s{k2.T2}"); A(f"s_lshl_b32 s{k2.T0}, s{k2.T0}, 3")
        A("v_mov_b32 v60, 0")
        A(f"buffer_load_dword v60, v60, s[{k2.SRD_DBG}:{k2.SRD_DBG+3}], s{k2.T0} offen sc1")
    A("s_barrier")
    A(f"v_and_b32 v2, 0x3ff, v{V_Y}")
    A(f"s_lshl_b32 s{S_TMP}, s{S_W}, {14 if g3 == 2 else 15}")
    A(f"v_add_u32 v3, s{S_TMP}, v2")
    A(f"v_xor_b32 v1, {hex(0x4000 if g3 == 2 else 0x8000)}, v3")
    A(f"v_lshrrev_b32 v4, 1, v2")
    A(f"s_lshl_b32 s{S_TMP}, s{S_W}, 9"); A(f"s_add_u32 s{S_TMP}, s{S_TMP}, {LDS_X}")
    A(f"v_add_u32 v4, s{S_TMP}, v4")
    A(f"v_xor_b32 v5, 0x200, v4")
    if g3 == 2:
        A(f"v_mov_b32 v6, v{L1S}"); A(f"v_add_f32 v7, v{L1L}, v{L1L+1}")
        A(f"v_add_f32 v{L0L}, v{L0L}, v{L0L+1}")
    else:
        A(f"v_add_f32 v6, v{L1S}, v{L1S+1}"); A(f"v_add_f32 v7, v{L1L}, v{L1L+1}")
        A(f"v_add_f32 v{L0S}, v{L0S}, v{L0S+1}"); A(f"v_add_f32 v{L0L}, v{L0L}, v{L0L+1}")
    A("ds_write_b64 v4, v[6:7]")
    A("s_nop 7")
    for i in range(16):
        A(f"ds_write_b128 v3, {ar(O_S+64+4*i)} offset:{i*1024}")
        for r in range(4): A(f"v_accvgpr_read_b32 v{128+4*i+r}, a{O_S+4*i+r}")
        if g3 == 2 and False:
            for r in range(4): A(f"v_accvgpr_read_b32 v{192+4*i+r}, a{O_L+4*i+r}")
    for i in range(16):
        if g3 != 2: A(f"ds_write_b128 v3, {ar(O_L+64+4*i)} offset:{16384+i*1024}")
        for r in range(4): A(f"v_accvgpr_read_b32 v{192+4*i+r}, a{O_L+4*i+r}")
    A("v_lshrrev_b32 v11, 4, v2")
    A("v_and_b32 v14, 15, v11"); A("v_lshrrev_b32 v19, 5, v11"); A("v_bfe_u32 v18, v11, 4, 1")
    A("v_lshl_add_u32 v20, v19, 4, v14"); A("v_lshlrev_b32 v20, 4, v20")
    A("v_lshl_add_u32 v21, v18, 17, v20")
    V_CS, V_CL = 16, 17
    A(f"s_lshl_b32 s{S_TMP}, s{S_QBS}, 18"); A(f"v_add_u32 v{V_CS}, s{S_TMP}, v21")
    A(f"s_lshl_b32 s{S_TMP}, s{S_QBL}, 18"); A(f"v_add_u32 v{V_CL}, s{S_TMP}, v21")
    if g3 == 2: g3v2.b_voffsets(A, 11, 18, 19)
    A("s_waitcnt lgkmcnt(0)")
    st(30)
    if g3 == 2:
        for t in g3v2.st_loads():
            A(t)
            if t.startswith("buffer_"): vm.issue("ST")
    A("s_barrier")
    A("ds_read_b64 v[6:7], v5")
    PT = 18
    def prd(which, grp, dst):
        return [f"ds_read_b128 {vr(dst+4*h)}, v1 offset:{(0 if g3 == 2 else which*16384) + (2*grp+h)*1024}" for h in range(2)]
    PB = [96, 104, 112, 120]
    for gi in range(4):
        for t in prd(0, gi, PB[gi]): A(t)
    def half_sum(x, y, op="v_add_f32"):
        A(f"v_mov_b32 v{y}, v{x}"); A("s_nop 1")
        A(f"v_permlane32_swap_b32 v{x}, v{y}"); A("s_nop 1")
        A(f"{op} v{x}, v{x}, v{y}")
    A("s_waitcnt lgkmcnt(8)")
    A(f"v_add_f32 v{L0S}, v{L0S}, v6"); A(f"v_add_f32 v{L0L}, v{L0L}, v7")
    half_sum(L0S, 9); half_sum(L0L, 13)
    lfS, lfL, lrS, lrL = A.newlabel("FS"), A.newlabel("FL"), A.newlabel("RS"), A.newlabel("RL")
    def rangechk(x, mask):
        A(f"v_mov_b32 v9, 0x2b800000")
        A(f"v_cmp_ge_f32 vcc, v{x}, v9")
        A(f"v_mov_b32 v9, 0x53800000")
        A(f"v_cmp_le_f32 s[50:51], v{x}, v9")
        A("s_nop 1")
        A("s_and_b64 vcc, vcc, s[50:51]")
        A("s_cmp_eq_u64 vcc, -1")
        A(f"s_cselect_b32 s{mask}, 0, 1")
    rangechk(L0S, S_A); rangechk(L0L, S_B)
    A(f"v_rcp_f32 v{L0S}, v{L0S}"); A(f"v_rcp_f32 v{L0L}, v{L0L}")
    A("s_nop 0")
    A(f"v_mov_b32 v9, v{L0S}"); A(f"v_mov_b32 v13, v{L0L}")
    TB = [50, 54]
    for n in range(16):
        which, grp = n >> 3, n & 7
        own = (128 if which == 0 else 192) + 8*grp
        pb = PB[n & 3]
        x = L0S if which == 0 else L0L
        outstanding = min(15 - n, 3) * 2
        if n == 0: st(31)
        if n == 8: st(32)
        if g3 == 2:
            if n < 5: A(f"s_waitcnt lgkmcnt({min(7 - n, 3) * 2})")
            elif n == 5: A("s_waitcnt lgkmcnt(0)"); A("s_barrier")
            elif n == 8:
                A("s_waitcnt lgkmcnt(0)"); A("s_barrier")
                for gi in range(4):
                    for t in prd(1, gi, PB[gi]): A(t)
            if n >= 8:
                for s_ in (2*n, 2*n+1): A(g3v2.b_load(s_)); vm.issue(f"B{s_}")
                A(f"s_waitcnt lgkmcnt({outstanding})")
            else:
                for s_ in (2*n, 2*n+1): A(g3v2.b_load(s_)); vm.issue(f"B{s_}")
        else:
            A(f"s_waitcnt lgkmcnt({outstanding})")
        for h in range(4): A(f"v_pk_add_f32 {vr(own+2*h,2)}, {vr(own+2*h,2)}, {vr(pb+2*h,2)}")
        if n + 4 < 16 and not (g3 == 2 and 4 <= n < 8):
            for t in prd((n+4) >> 3, (n+4) & 7, pb): A(t)
        if g3 == 2 and 5 <= n < 8:
            for i in {5: range(0, 6), 6: range(6, 11), 7: range(11, 16)}[n]:
                A(f"ds_write_b128 v3, {ar(O_L+64+4*i)} offset:{i*1024}")
        for h in range(4): A(f"v_pk_mul_f32 {vr(own+2*h,2)}, {vr(own+2*h,2)}, {vr(x,2)}")
        tb = TB[n & 1]
        for h in range(4): A(f"v_cvt_pk_bf16_f32 v{tb+h}, v{own+2*h}, v{own+2*h+1}")
        db, t = grp >> 1, grp & 1
        vc = V_CS if which == 0 else V_CL
        A(f"buffer_store_dwordx4 {vr(tb)}, v{vc}, s[16:19], s{S_CSO} offen offset:{db*1024+t*512}"); vm.issue("CTX")
    st(33)
    if fallback:
        A(f"s_cmp_eq_u32 s{S_B}, 0"); A(f"s_cbranch_scc0 {lfL}")
        A.label(lrL)
        A(f"s_cmp_eq_u32 s{S_A}, 0"); A(f"s_cbranch_scc0 {lfS}")
        A.label(lrS)
        def store_block(vc, rd):
            cnt = 0
            for db in range(4):
                for t in range(2):
                    b = 232 + 12*(cnt & 1); cnt += 1
                    rd(db, t, b)
                    for r in range(4): A(f"v_cvt_pk_bf16_f32 v{b+8+r}, v{b+2*r}, v{b+2*r+1}")
                    A(f"buffer_store_dwordx4 {vr(b+8)}, v{vc}, s[16:19], s{S_CSO} offen offset:{db*1024+t*512}")
        def fallback_code(vc, qb, reload_q):
            FO, FK, FV = 164, 192, 224
            FS, FP, TRI = 32, 48, 128
            m, l, al, t0, t1, ad, l16 = 228, 229, 230, 231, 10, 11, 12
            S_KB_, S_O1, S_O2 = 52, 53, 54
            A("s_waitcnt vmcnt(0)")
            A(f"v_and_b32 v{l16}, 0x3ff, v{V_Y}")
            if reload_q:
                A(f"s_lshl_b32 s{S_O1}, {wgid}, 15"); A(f"s_lshl_b32 s{S_O2}, s{S_W}, 13"); A(f"s_add_u32 s{S_O1}, s{S_O1}, s{S_O2}")
                A(f"s_add_u32 s{S_O2}, s{S_O1}, 4096")
                for f in range(8):
                    A(f"buffer_load_dwordx4 {vr(Q0+4*f)}, v{l16}, s[{SRD_QS}:{SRD_QS+3}], s{S_O1 if f < 4 else S_O2} offen offset:{(f&3)*1024} sc1")
            A(f"v_lshrrev_b32 v{t0}, 4, v{l16}"); A(f"v_lshrrev_b32 v{t1}, 5, v{t0}"); A(f"v_and_b32 v{t0}, 31, v{t0}")
            A(f"v_lshlrev_b32 v{t1}, 2, v{t1}"); A(f"v_sub_u32 v{t0}, v{t0}, v{t1}"); A(f"v_mov_b32 v{t1}, {NEG}")
            for r in range(16):
                key = 16*((r >> 2) & 1) + 8*(r >> 3) + (r & 3)
                A(f"v_cmp_gt_i32 vcc, {key}, v{t0}"); A("s_nop 1")
                A(f"v_cndmask_b32 v{TRI+r}, 0, v{t1}, vcc")
            for r in range(64): A(f"v_mov_b32 v{FO+r}, 0")
            A(f"v_mov_b32 v{m}, {NEG}"); A(f"v_mov_b32 v{l}, 0")
            A(f"v_add_u32 v{ad}, 4096, v{l16}")
            A(f"s_mov_b32 s{S_KB_}, 0")
            A("s_waitcnt vmcnt(0)")
            lp, ld_, ln_ = A.newlabel("FP"), A.newlabel("FD"), A.newlabel("FN")
            A.label(lp)
            A(f"s_lshr_b32 s{S_O1}, s{S_KB_}, 1"); A(f"s_lshl_b32 s{S_O1}, s{S_O1}, 15")
            A(f"s_and_b32 s{S_O2}, s{S_KB_}, 1"); A(f"s_lshl_b32 s{S_O2}, s{S_O2}, 13")
            A(f"s_add_u32 s{S_O1}, s{S_O1}, s{S_O2}")
            A(f"s_add_u32 s{S_O2}, s{S_O1}, 16384")
            for s_ in range(8):
                A(f"buffer_load_dwordx4 {ar(FK+4*s_)}, v{l16 if s_ < 4 else ad}, s[4:7], s{S_O1} offen offset:{(s_&3)*1024}")
            for s_ in range(8):
                A(f"buffer_load_dwordx4 {ar(FV+4*s_)}, v{l16 if s_ < 4 else ad}, s[4:7], s{S_O2} offen offset:{(s_&3)*1024}")
            A("s_waitcnt vmcnt(8)")
            A(f"s_cmp_eq_u32 s{S_KB_}, s{qb}")
            A(f"s_cbranch_scc1 {ld_}")
            A(f"v_mfma_f32_32x32x16_bf16 {vr(FS,16)}, {ar(FK)}, {vr(Q0)}, 0")
            A(f"s_branch {ln_}")
            A.label(ld_)
            A(f"v_mfma_f32_32x32x16_bf16 {vr(FS,16)}, {ar(FK)}, {vr(Q0)}, {vr(TRI,16)}")
            A.label(ln_)
            for s_ in range(1, 8):
                A(f"v_mfma_f32_32x32x16_bf16 {vr(FS,16)}, {ar(FK+4*s_)}, {vr(Q0+4*s_)}, {vr(FS,16)}")
            A("s_nop 7"); A("s_nop 7")
            A(f"v_max_f32 v{t0}, v{FS}, v{FS+1}")
            for r in range(2, 16, 2): A(f"v_max3_f32 v{t0}, v{t0}, v{FS+r}, v{FS+r+1}")
            half_sum(t0, t1, "v_max_f32")
            A(f"v_max_f32 v{t0}, v{t0}, v{m}")
            A(f"v_sub_f32 v{al}, v{m}, v{t0}")
            A(f"v_exp_f32 v{al}, v{al}")
            A(f"v_mov_b32 v{m}, v{t0}")
            for r in range(16): A(f"v_sub_f32 v{FS+r}, v{FS+r}, v{m}")
            for r in range(16): A(f"v_exp_f32 v{FS+r}, v{FS+r}")
            A(f"v_mul_f32 v{l}, v{l}, v{al}")
            for r in range(16): A(f"v_add_f32 v{l}, v{l}, v{FS+r}")
            for r in range(8): A(f"v_cvt_pk_bf16_f32 v{FP+r}, v{FS+2*r}, v{FS+2*r+1}")
            for r in range(64): A(f"v_mul_f32 v{FO+r}, v{FO+r}, v{al}")
            A("s_waitcnt vmcnt(0)")
            A("s_nop 1")
            for t in range(2):
                for db in range(4):
                    A(f"v_mfma_f32_32x32x16_bf16 {vr(FO+16*db,16)}, {ar(FV+4*(t*4+db))}, {vr(FP+4*t)}, {vr(FO+16*db,16)}")
            A("s_nop 7"); A("s_nop 7")
            A(f"s_add_u32 s{S_KB_}, s{S_KB_}, 1")
            A(f"s_cmp_le_u32 s{S_KB_}, s{qb}")
            A(f"s_cbranch_scc1 {lp}")
            half_sum(l, t1)
            A(f"v_rcp_f32 v{l}, v{l}")
            A("s_nop 0")
            def rd(db, t, b):
                for r in range(8): A(f"v_mul_f32 v{b+r}, v{FO+16*db+8*t+r}, v{l}")
            store_block(vc, rd)
        le = A.newlabel("AE")
        A(f"s_branch {le}")
        A.label(lfL); fallback_code(V_CL, S_QBL, False); A(f"s_branch {lrL}")
        A.label(lfS); fallback_code(V_CS, S_QBS, True); A(f"s_branch {lrS}")
        A.label(le)
    if g3 == 2:
        lx = A.newlabel("G3X")
        A(f"s_cmp_ge_u32 {wgid}, 224"); A(f"s_cbranch_scc1 {lx}")
        st(7)
        g3v2.main(A, vm, S_W, S_W4K, st)
        le2 = A.newlabel("G3E")
        A(f"s_branch {le2}")
        for t_ in ool:
            if t_.endswith(":"): A.label(t_[:-1])
            else: A(t_)
        A.label(le2)
        if os.environ.get("FILL", "1") == "1":
            import fin2
            lf = A.newlabel("FILLX")
            A(f"s_branch {lf}")
            A.label(lx)
            fin2.emit_fill(A, wgid, S_W)
            A.label(lf)
        else:
            A.label(lx)
    elif g3:
        from bpath import emit_g3
        lx, lsp, lok, lp = A.newlabel("G3X"), A.newlabel("SPIN"), A.newlabel("OK"), A.newlabel("SP")
        A(f"s_cmp_ge_u32 {wgid}, 224"); A(f"s_cbranch_scc1 {lx}")
        A("s_waitcnt vmcnt(16)")
        A(f"v_readfirstlane_b32 s{k2.T2}, v60")
        A(f"s_cmp_ge_u32 s{k2.T2}, 8"); A(f"s_cbranch_scc1 {lok}")
        A(f"s_mov_b32 s{k2.T3}, 65536")
        A.label(lp)
        A("v_mov_b32 v60, 0")
        A(f"buffer_load_dword v60, v60, s[{k2.SRD_DBG}:{k2.SRD_DBG+3}], s{k2.T0} offen sc1")
        A("s_waitcnt vmcnt(0)")
        A(f"v_readfirstlane_b32 s{k2.T2}, v60")
        A(f"s_cmp_ge_u32 s{k2.T2}, 8"); A(f"s_cbranch_scc1 {lok}")
        A("s_sleep 8")
        A(f"s_sub_u32 s{k2.T3}, s{k2.T3}, 1"); A(f"s_cmp_lg_u32 s{k2.T3}, 0"); A(f"s_cbranch_scc1 {lp}")
        A.label(lok)
        A("v_mbcnt_lo_u32_b32 v0, -1, 0"); A("v_mbcnt_hi_u32_b32 v0, -1, v0")
        A(f"s_lshl_b32 s{k2.T2}, s{S_W}, 6"); A(f"v_add_u32 v0, s{k2.T2}, v0")
        A("s_barrier")
        st(7)
        emit_g3(A, wgid, sc1=True, stamp=st)
        A.label(lx)
```

```python
from common import *
from bpath import vr, ar, f2h
import math, os

WS_P2 = 0x8000000
NU = 23
D = int(os.environ.get("FD", "7"))

def emit_fill(A, wgid, S_W):
    lp = A.newlabel("FILL")
    A(f"s_load_dwordx2 s[8:9], s[0:1], {KA_WS}")
    A("v_mbcnt_lo_u32_b32 v1, -1, 0"); A("v_mbcnt_hi_u32_b32 v1, -1, v1"); A("v_lshlrev_b32 v1, 4, v1")
    A(f"s_sub_u32 s10, {wgid}, 224"); A("s_lshl_b32 s10, s10, 2"); A(f"s_add_u32 s10, s10, s{S_W}"); A("s_mul_i32 s12, s10, 81920")
    for r in range(4): A(f"v_mov_b32 v{4+r}, -1")
    A("s_mov_b32 s13, 20")
    A("s_waitcnt lgkmcnt(0)")
    srd_off(A, 4, 8, WS_P2, 64*163840)
    A.label(lp)
    for q in range(4): A(f"buffer_store_dwordx4 v[4:7], v1, s[4:7], s12 offen offset:{q*1024} sc1")
    A("s_add_u32 s12, s12, 4096"); A("s_sub_u32 s13, s13, 1"); A("s_cmp_lg_u32 s13, 0"); A(f"s_cbranch_scc1 {lp}")

def emit_final2(A, wgid="s2", sc1=False, stamp=None, npoll=1 << 14):
    st = stamp if stamp else (lambda k: None)
    C = " sc1" if sc1 else ""
    load_ptr(A, 40, KA_WO); load_ptr(A, 42, KA_WS); load_ptr(A, 44, KA_W4); load_ptr(A, 46, KA_X); load_ptr(A, 48, KA_OUT)
    S_W, S_TB, S_NB, S_T, S_SW, S_SB, S_M0, S_KQ = 24, 25, 26, 27, 28, 29, 30, 31
    S_PT, S_CNT = 35, 36
    SRD_X1, SRD_P, SRD_DBG, SRD_X = 20, 52, 56, 76
    BRING, AF = 0, 128
    ACC, SAVE, RX = 64, 128, 144
    V_R = 24
    A("v_lshrrev_b32 v10, 6, v0")
    A("v_and_b32 v11, 63, v0")
    A(f"v_readfirstlane_b32 s{S_W}, v10")
    MAP = int(os.environ.get("FMAP", "1"))
    if MAP == 0:
        A(f"s_and_b32 s{S_KQ}, {wgid}, 3")
        A(f"s_lshr_b32 s{S_TB}, {wgid}, 2"); A(f"s_and_b32 s{S_TB}, s{S_TB}, 1"); A(f"s_lshl_b32 s{S_TB}, s{S_TB}, 3")
        A(f"s_lshr_b32 s{S_T}, {wgid}, 5"); A(f"s_add_u32 s{S_TB}, s{S_TB}, s{S_T}")
        A(f"s_lshr_b32 s{S_NB}, {wgid}, 3"); A(f"s_and_b32 s{S_NB}, s{S_NB}, 3")
    else:
        A(f"s_lshr_b32 s{S_KQ}, {wgid}, 3"); A(f"s_and_b32 s{S_KQ}, s{S_KQ}, 3")
        if MAP == 1:
            A(f"s_and_b32 s{S_TB}, {wgid}, 7"); A(f"s_lshl_b32 s{S_TB}, s{S_TB}, 1")
            A(f"s_lshr_b32 s{S_T}, {wgid}, 5"); A(f"s_and_b32 s{S_T}, s{S_T}, 1"); A(f"s_add_u32 s{S_TB}, s{S_TB}, s{S_T}")
            A(f"s_lshr_b32 s{S_NB}, {wgid}, 6")
        else:
            A(f"s_lshr_b32 s{S_TB}, {wgid}, 1"); A(f"s_and_b32 s{S_TB}, s{S_TB}, 3"); A(f"s_lshl_b32 s{S_TB}, s{S_TB}, 2")
            A(f"s_lshr_b32 s{S_T}, {wgid}, 5"); A(f"s_and_b32 s{S_T}, s{S_T}, 3"); A(f"s_add_u32 s{S_TB}, s{S_TB}, s{S_T}")
            A(f"s_and_b32 s{S_NB}, {wgid}, 1"); A(f"s_lshl_b32 s{S_NB}, s{S_NB}, 1")
            A(f"s_lshr_b32 s{S_T}, {wgid}, 7"); A(f"s_add_u32 s{S_NB}, s{S_NB}, s{S_T}")
    A("v_and_b32 v12, 15, v11")
    A("v_lshrrev_b32 v13, 5, v11")
    A("v_lshlrev_b32 v14, 8, v13")
    A("v_lshl_add_u32 v14, v12, 4, v14")
    A("v_bfe_u32 v15, v11, 4, 1")
    A(f"s_lshl_b32 s{S_T}, s{S_TB}, 3"); A(f"s_lshl_b32 s32, s{S_W}, 1"); A(f"s_add_u32 s{S_T}, s{S_T}, s32")
    A(f"v_add_u32 v15, s{S_T}, v15")
    A("v_lshl_add_u32 v2, v15, 17, v14")
    A("s_mov_b32 s32, 57344")
    A("v_mul_lo_u32 v4, v15, s32")
    A("v_add_u32 v4, v4, v14")
    A("v_lshl_add_u32 v5, v15, 14, v14")
    A(f"s_cmp_eq_u32 s{S_KQ}, 3")
    A("s_cselect_b64 vcc, -1, 0")
    A("v_cndmask_b32 v6, v2, v4, vcc")
    A("v_lshrrev_b32 v14, 3, v11")
    A("v_lshlrev_b32 v14, 10, v14")
    A("v_bfe_u32 v15, v11, 4, 1")
    A("v_lshlrev_b32 v15, 2, v15")
    A("v_and_b32 v16, 7, v11")
    A("v_xor_b32 v15, v15, v16")
    A("v_lshl_add_u32 v16, v15, 4, v14")
    A(f"s_and_b32 s32, s{S_W}, 1"); A(f"s_lshr_b32 s33, s{S_W}, 1")
    A("s_lshl_b32 s34, s32, 7"); A(f"s_lshl_b32 s{S_T}, s33, 14"); A(f"s_add_u32 s{S_T}, s{S_T}, s34")
    A(f"v_add_u32 v16, s{S_T}, v16")
    A("v_add_u32 v17, 7168, v16")
    A(f"s_lshl_b32 s{S_M0}, s32, 12"); A("s_lshl_b32 s33, s33, 11"); A(f"s_add_u32 s{S_M0}, s{S_M0}, s33")
    A("s_waitcnt lgkmcnt(0)")
    A(f"s_lshl_b32 s{S_T}, s{S_NB}, 8")
    A(f"s_add_u32 s4, s40, s{S_T}"); A("s_addc_u32 s5, s41, 0"); A(f"s_sub_u32 s6, 0x400000, s{S_T}"); A("s_mov_b32 s7, 0x00020000")
    A(f"s_add_u32 s12, s44, s{S_T}"); A("s_addc_u32 s13, s45, 0"); A(f"s_sub_u32 s14, {1792*1024}, s{S_T}"); A("s_mov_b32 s15, 0x00020000")
    srd_off(A, 8, 42, WS_CTX, 0x1000000)
    srd_off(A, 16, 42, WS_H3F, 128*57344)
    A(f"s_mul_i32 s{S_T}, s{S_KQ}, 46")
    A(f"s_cmp_eq_u32 s{S_KQ}, 3")
    A(f"s_cselect_b32 s{S_T}, 10, s{S_T}")
    for k in range(4):
        A(f"s_cselect_b32 s{4+k}, s{12+k}, s{4+k}")
        A(f"s_cselect_b32 s{8+k}, s{16+k}, s{8+k}")
    A(f"s_lshl_b32 s{S_SW}, s{S_T}, 15")
    A(f"s_lshl_b32 s{S_SB}, s{S_T}, 10")
    def loads(u):
        sl = u & 7
        R = []
        if u == 18:
            R.append(f"s_cmp_eq_u32 s{S_KQ}, 2")
            for k in range(4):
                R.append(f"s_cselect_b32 s{4+k}, s{12+k}, s{4+k}")
                R.append(f"s_cselect_b32 s{8+k}, s{16+k}, s{8+k}")
            R.append(f"s_cselect_b32 s{S_SW}, 0, s{S_SW}")
            R.append(f"s_cselect_b32 s{S_SB}, 0, s{S_SB}")
            R.append("s_cselect_b64 vcc, -1, 0")
            R.append("v_cndmask_b32 v6, v6, v4, vcc")
            R.append("s_nop 4")
        for k2 in range(2):
            R.append(f"s_add_u32 m0, s{S_M0}, {sl*16384 + k2*8192}")
            R.append(f"buffer_load_dwordx4 {ar(BRING + 16*sl + 8*k2)}, v6, s[8:11], s{S_SB} offen offset:{1024*k2}" + C)
            R.append(f"buffer_load_dwordx4 v16, s[4:7], s{S_SW} offen lds")
            R.append(f"buffer_load_dwordx4 {ar(BRING + 16*sl + 8*k2 + 4)}, v6, s[8:11], s{S_SB} offen offset:{1024*k2 + 512}" + C)
            R.append(f"buffer_load_dwordx4 v17, s[4:7], s{S_SW} offen offset:1024 lds")
            R.append(f"s_add_u32 s{S_SW}, s{S_SW}, 32768")
        R.append(f"s_add_u32 s{S_SB}, s{S_SB}, 2048")
        return R
    def afr(p, k2, t, i): return AF + 64*p + 32*k2 + 16*t + 4*i
    def reads(u):
        sl = u & 7; p = u & 1
        R = []
        for k2 in range(2):
            for t in range(2):
                for i in range(4):
                    for rd in range(2):
                        b = afr(p, k2, t, i) + 2*rd
                        off = (sl & 3)*16384 + k2*8192 + t*2048 + rd*1024
                        R.append(f"ds_read_b64_tr_b16 a[{b}:{b+1}], v{V_R + i + (4 if sl >= 4 else 0)} offset:{off}")
        return R
    st(0)
    for u in range(D):
        for t in loads(u): A(t)
    A("v_lshrrev_b32 v15, 4, v11")
    A("v_lshrrev_b32 v20, 1, v15")
    A("v_lshlrev_b32 v20, 2, v20")
    A("v_lshrrev_b32 v21, 2, v12")
    A("v_add_u32 v20, v20, v21")
    A("v_and_b32 v15, 1, v15")
    A("v_lshlrev_b32 v15, 1, v15")
    A("v_and_b32 v21, 1, v12")
    A("v_add_u32 v15, v15, v21")
    A("v_bfe_u32 v21, v12, 3, 1")
    A("v_lshlrev_b32 v21, 2, v21")
    A("v_xor_b32 v15, v15, v21")
    A("v_lshlrev_b32 v15, 4, v15")
    A("v_lshl_add_u32 v8, v20, 7, v15")
    A("v_bfe_u32 v21, v12, 1, 1")
    A("v_lshl_add_u32 v8, v21, 3, v8")
    for i in range(4):
        A(f"s_add_u32 s32, s{S_KQ}, {i}")
        A("s_and_b32 s33, s32, 1"); A("s_lshl_b32 s33, s33, 6")
        A("s_lshr_b32 s32, s32, 1"); A("s_and_b32 s32, s32, 1"); A("s_lshl_b32 s32, s32, 12")
        A(f"v_xor_b32 v{V_R+i}, s33, v8")
        A(f"v_add_u32 v{V_R+i}, s32, v{V_R+i}")
        A(f"v_add_u32 v{V_R+4+i}, 0x10000, v{V_R+i}")
    srd_off(A, SRD_X1, 42, WS_X1F, 0x200000)
    srd_off(A, SRD_P, 42, WS_P2, 0x1400000)
    A(f"s_mov_b32 s{SRD_X}, s46"); A(f"s_mov_b32 s{SRD_X+1}, s47"); A(f"s_mov_b32 s{SRD_X+2}, 0x200000"); A(f"s_mov_b32 s{SRD_X+3}, 0x00020000")
    A(f"s_lshl_b32 s60, s{S_NB}, 2"); A(f"s_add_u32 s60, s60, s{S_KQ}")
    A("s_lshl_b32 s61, s60, 6")
    A("s_lshl_b32 s60, s60, 10")
    A(f"s_lshl_b32 s32, s{S_TB}, 7"); A(f"s_lshl_b32 s33, s{S_W}, 5"); A("s_add_u32 s32, s32, s33")
    A("v_and_b32 v20, 31, v11")
    A("v_add_u32 v20, s32, v20")
    A("v_lshlrev_b32 v23, 10, v20")
    A("v_lshl_add_u32 v23, v13, 4, v23")
    A(f"s_lshl_b32 s32, s{S_TB}, 2"); A(f"s_add_u32 s32, s32, s{S_NB}")
    A(f"s_mul_i32 s{S_PT}, s32, 163840")
    A(f"s_lshl_b32 s33, s{S_W}, 11")
    A("v_lshlrev_b32 v22, 4, v11"); A("v_add_u32 v22, s33, v22")
    PK, PK2 = 208, 232
    def pack(P0):
        return [f"v_cvt_pk_bf16_f32 v{P0+8*(i-1)+j}, v{ACC+16*i+2*j}, v{ACC+16*i+2*j+1}" for i in range(1, 4) for j in range(8)]
    def send(slot_expr_sgpr, P0, packed):
        R = []
        for i in range(1, 4):
            P = P0 + 8*(i-1)
            if not packed: R += [f"v_cvt_pk_bf16_f32 v{P+j}, v{ACC+16*i+2*j}, v{ACC+16*i+2*j+1}" for j in range(8)]
            R += [f"s_add_u32 s32, s{S_KQ}, {i}", "s_and_b32 s32, s32, 3", "s_mul_i32 s32, s32, 5",
                  f"s_add_u32 s32, s32, s{slot_expr_sgpr}", "s_lshl_b32 s32, s32, 13", f"s_add_u32 s32, s32, s{S_PT}"]
            for q in range(2):
                R.append(f"buffer_store_dwordx4 {vr(P+4*q)}, v22, s[{SRD_P}:{SRD_P+3}], s32 offen offset:{q*1024} sc1")
        return R
    for r in range(16): A(f"v_mov_b32 v{SAVE+r}, 0")
    A(f"s_cmp_eq_u32 s{S_KQ}, 3"); A(f"s_cselect_b32 s37, 4, s{S_KQ}")
    A(f"s_waitcnt vmcnt({8*(D-1)})")
    A("s_barrier")
    st(1)
    for t in reads(0): A(t)
    for u in range(NU):
        if u == 12: st(2)
        p = u & 1; sl = u & 7
        rem = min(u + D - 1, NU - 1) - (u + 1)
        if u + 1 < NU:
            A(f"s_waitcnt vmcnt({8*rem}) lgkmcnt(0)")
            A("s_barrier")
        else: A("s_waitcnt lgkmcnt(0)")
        if u == 18:
            lsr = A.newlabel("SR")
            A(f"s_cmp_eq_u32 s{S_KQ}, 2"); A(f"s_cbranch_scc0 {lsr}")
            A("s_nop 7"); A("s_nop 7")
            for t in pack(PK2): A(t)
            for r in range(16): A(f"v_mov_b32 v{SAVE+r}, v{ACC+r}")
            for r in range(64): A(f"v_mov_b32 v{ACC+r}, 0")
            A("s_nop 1")
            A.label(lsr)
        if u == NU - 2:
            lsr = A.newlabel("SR")
            A(f"s_cmp_eq_u32 s{S_KQ}, 2"); A(f"s_cbranch_scc0 {lsr}")
            for t in send(37, PK2, True): A(t)
            A("s_mov_b32 s37, 3")
            A.label(lsr)
        M = []
        for k2 in range(2):
            for t in range(2):
                for i in range(4):
                    cc = "0" if (u == 0 and k2 == 0 and t == 0) else vr(ACC+16*i, 16)
                    M.append(f"v_mfma_f32_32x32x16_bf16 {vr(ACC+16*i,16)}, {ar(afr(p,k2,t,i))}, {ar(BRING+16*sl+8*k2+4*t)}, {cc}")
        F = []
        if u + 1 < NU:
            for k, t in enumerate(reads(u+1)): F.append((k >> 1, t))
        if u + D < NU:
            L = loads(u + D)
            for k, t in enumerate(L): F.append((min(15, (k*16)//len(L)), t))
        if u == 8:
            F.append((0, f"buffer_load_dwordx4 {vr(32)}, v5, s[{SRD_X1}:{SRD_X1+3}], s60 offen" + C))
            F.append((0, f"buffer_load_dwordx4 {vr(36)}, v5, s[{SRD_X1}:{SRD_X1+3}], s60 offen offset:512" + C))
            F.append((0, f"buffer_load_dwordx4 {vr(40)}, v23, s[{SRD_X}:{SRD_X+3}], s61 offen"))
            F.append((0, f"buffer_load_dwordx4 {vr(44)}, v23, s[{SRD_X}:{SRD_X+3}], s61 offen offset:32"))
            F = F[-4:] + F[:-4]
        interleave(A, M, F)
    st(3)
    A("s_nop 7"); A("s_nop 7")
    for t in send(37, PK, False): A(t)
    A("s_mov_b32 s12, s48"); A("s_mov_b32 s13, s49"); A("s_mov_b32 s14, 0x200000"); A("s_mov_b32 s15, 0x00020000")
    A(f"s_mul_i32 s32, s{S_KQ}, 5"); A("s_lshl_b32 s32, s32, 13"); A(f"s_add_u32 s32, s32, s{S_PT}")
    A(f"s_cmp_eq_u32 s{S_KQ}, 0"); A("s_cselect_b32 s4, 1, 0")
    A(f"s_cmp_lt_u32 s{S_KQ}, 2"); A("s_cselect_b32 s5, 2, 1")
    A(f"s_cmp_eq_u32 s{S_KQ}, 3"); A("s_cselect_b32 s6, 2, 3"); A("s_cselect_b32 s7, 3, 4")
    A(f"s_cmp_eq_u32 s{S_KQ}, 2"); A("s_cselect_b32 s6, 4, s6")
    for k in range(4):
        A(f"s_lshl_b32 s{4+k}, s{4+k}, 13"); A(f"s_add_u32 s{4+k}, s{4+k}, s32")
    X1, XX = 176, 192
    S, H, T = SAVE, X1, 80
    for r in range(8):
        A(f"v_lshlrev_b32 v{X1+2*r}, 16, v{32+r}")
        A(f"v_and_b32 v{X1+2*r+1}, 0xffff0000, v{32+r}")
    for r in range(8):
        A(f"v_lshlrev_b32 v{XX+2*r}, 16, v{40+r}")
        A(f"v_and_b32 v{XX+2*r+1}, 0xffff0000, v{40+r}")
    l2, lj = A.newlabel("K2"), A.newlabel("KJ")
    A(f"s_cmp_ge_u32 s{S_KQ}, 2"); A(f"s_cbranch_scc1 {l2}")
    for r in range(16): A(f"v_mov_b32 v{S+r}, v{ACC+r}")
    A(f"s_branch {lj}")
    A.label(l2)
    for r in range(16): A(f"v_add_f32 v{H+r}, v{H+r}, v{ACC+r}")
    A.label(lj)
    A("v_mov_b32 v28, 0x3f80"); A("v_mov_b32 v29, 0x3f800000")
    st(4)
    lp, lok = A.newlabel("FP"), A.newlabel("FOK")
    A(f"s_mov_b32 s34, {npoll}")
    A.label(lp)
    for k in range(4):
        for q in range(2):
            A(f"buffer_load_dwordx4 {vr(RX+8*k+4*q)}, v22, s[{SRD_P}:{SRD_P+3}], s{4+k} offen offset:{q*1024} sc1")
    A("s_waitcnt vmcnt(0)")
    M0 = 80
    for j in range(10): A(f"v_max3_u32 v{M0+j}, v{RX+3*j}, v{RX+3*j+1}, v{RX+3*j+2}")
    A(f"v_max3_u32 v{M0}, v{M0}, v{RX+30}, v{RX+31}")
    for j in range(3): A(f"v_max3_u32 v{M0+3*j+1}, v{M0+3*j+1}, v{M0+3*j+2}, v{M0+3*j+3}")
    A(f"v_max3_u32 v{M0}, v{M0}, v{M0+1}, v{M0+4}")
    A(f"v_max_u32 v{M0}, v{M0}, v{M0+7}")
    A(f"v_cmp_eq_u32 vcc, -1, v{M0}")
    A("s_nop 1")
    A(f"s_cbranch_vccz {lok}")
    A("s_sub_u32 s34, s34, 1"); A("s_cmp_lg_u32 s34, 0"); A(f"s_cbranch_scc1 {lp}")
    A.label(lok)
    st(5)
    def acc(Dst, k):
        for j in range(8):
            A(f"v_dot2c_f32_bf16 v{Dst+2*j}, v{RX+8*k+j}, v28")
            A(f"v_dot2c_f32_bf16 v{Dst+2*j+1}, v{RX+8*k+j}, v29")
    acc(S, 0); acc(S, 1); acc(H, 3)
    l3, lk = A.newlabel("K3"), A.newlabel("KK")
    A(f"s_cmp_ge_u32 s{S_KQ}, 2"); A(f"s_cbranch_scc1 {l3}")
    acc(H, 2)
    A(f"s_branch {lk}")
    A.label(l3)
    A(f"s_cmp_eq_u32 s{S_KQ}, 3"); A(f"s_cbranch_scc0 {lk}")
    acc(S, 2)
    A.label(lk)
    st(6)
    A("s_nop 1")
    A(f"v_mov_b32 v30, {f2h(-math.log2(math.e))}")
    for r in range(16): A(f"v_mul_f32 v{T+r}, v30, v{H+r}")
    for r in range(16): A(f"v_exp_f32 v{T+r}, v{T+r}")
    A("s_nop 0")
    for r in range(16): A(f"v_add_f32 v{T+r}, 1.0, v{T+r}")
    for r in range(16): A(f"v_rcp_f32 v{T+r}, v{T+r}")
    A("s_nop 0")
    for r in range(16): A(f"v_mul_f32 v{H+r}, v{H+r}, v{T+r}")
    for r in range(16): A(f"v_fma_f32 v{S+r}, v{S+r}, v{H+r}, v{XX+r}")
    for r in range(8): A(f"v_cvt_pk_bf16_f32 v{48+r}, v{S+2*r}, v{S+2*r+1}")
    A(f"buffer_store_dwordx4 {vr(48)}, v23, s[12:15], s61 offen")
    A(f"buffer_store_dwordx4 {vr(52)}, v23, s[12:15], s61 offen offset:32")
```

```python
from common import *
from kv import acc, accr, tfr, wfr, wfr_half, LDS_T, LDS_W
from ln import unpack, ln16
from bpath import GC0, GC1, gelu_block, vr, ar

PF1, PF2 = 36, 48
SRD_W1, SRD_H, SRD_XN2, SRD_DBG, SRD_XNF = 52, 56, 80, 84, 76
S_M0G, S_GT, S_POLL, S_GOUT, S_GX = 60, 61, 88, 90, 89
NP = 11
V_B, V_ONE, V_SIG, V_PF, V_TR0, V_TR1, V_WD, V_POLL = 1, 21, 22, 23, 28, 29, 30, 31
PFD = 'a[252:255]'
V_LP, V_LT, V_LO = 12, 24, 20
A_X = 160
S_MASK, S_8K = 92, 93
G1BASE = [131072, 147456, 0, 16384]
def gB(f): return 160 + 4*f if f < 24 else 32 + 4*(f - 24)

def emit_k1(A, wgid="s2", stamp=None, npoll=1 << 16):
    st = stamp if stamp else (lambda k: None)
    ool = []
    load_ptr(A, 40, KA_CKV); load_ptr(A, 42, KA_WUK); load_ptr(A, 44, KA_WUV); load_ptr(A, 46, KA_WS)
    load_ptr(A, PF1, KA_X); load_ptr(A, SRD_W1, KA_W1); load_ptr(A, SRD_DBG, KA_DBG)
    A("v_lshrrev_b32 v1, 6, v0")
    A("v_and_b32 v2, 63, v0")
    A("v_readfirstlane_b32 s16, v1")
    R = 32
    A(f"v_lshrrev_b32 v{R+1}, 5, v0")
    A(f"v_and_b32 v{R+2}, 31, v0")
    A(f"s_lshl_b32 s19, {wgid}, 3")
    A(f"v_add_u32 v{R+1}, s19, v{R+1}")
    A(f"v_lshlrev_b32 v{R+3}, 10, v{R+1}")
    A(f"v_lshl_add_u32 v{R+3}, v{R+2}, 4, v{R+3}")
    A(f"v_lshrrev_b32 v{R+4}, 4, v{R+1}")
    A(f"v_lshlrev_b32 v{R+4}, 14, v{R+4}")
    A(f"v_lshrrev_b32 v{R+5}, 2, v{R+2}")
    A(f"v_lshl_add_u32 v{R+4}, v{R+5}, 10, v{R+4}")
    A(f"v_and_b32 v{R+5}, 3, v{R+2}")
    A(f"v_and_b32 v{R+6}, 15, v{R+1}")
    A(f"v_lshl_add_u32 v{R+5}, v{R+5}, 4, v{R+6}")
    A(f"v_lshl_add_u32 v{R+4}, v{R+5}, 4, v{R+4}")
    A(f"v_add_u32 v{R+5}, 8192, v{R+4}")
    A(f"s_and_b32 s17, {wgid}, 7")
    A(f"s_lshr_b32 s18, {wgid}, 3")
    A("s_and_b32 s18, s18, 3")
    A("s_lshl_b32 s18, s18, 3")
    A("s_add_u32 s17, s17, s18")
    A(f"s_lshr_b32 s18, {wgid}, 5")
    A("s_waitcnt lgkmcnt(0)")
    A(f"s_mov_b32 s{PF1+2}, 0x200000"); A(f"s_mov_b32 s{PF1+3}, 0x00020000")
    A(f"buffer_load_dwordx4 a[{A_X}:{A_X+3}], v{R+3}, s[{PF1}:{PF1+3}], 0 offen")
    A(f"buffer_load_dwordx4 a[{A_X+4}:{A_X+7}], v{R+3}, s[{PF1}:{PF1+3}], 0 offen offset:512")
    A(f"v_mov_b32 v{V_LO}, v{R+4}")
    A(f"s_mov_b32 s{S_MASK}, 0xffff0000"); A(f"s_mov_b32 s{S_8K}, 8192")
    A("s_lshl_b32 s19, s18, 18")
    A("s_add_u32 s4, s40, s19"); A("s_addc_u32 s5, s41, 0")
    A("s_mov_b32 s6, 0x40000"); A("s_mov_b32 s7, 0x00020000")
    A("s_cmp_lt_u32 s16, 2")
    A("s_cselect_b32 s8, s42, s44"); A("s_cselect_b32 s9, s43, s45")
    A("s_mov_b32 s10, 0x400000"); A("s_mov_b32 s11, 0x00020000")
    A("s_lshl_b32 s19, s17, 20")
    A("s_lshl_b32 s20, s18, 17")
    A("s_add_u32 s19, s19, s20")
    A("s_and_b32 s20, s16, 1")
    A("s_lshl_b32 s20, s20, 16")
    A("s_add_u32 s19, s19, s20")
    A("s_add_u32 s12, s46, s19"); A("s_addc_u32 s13, s47, 0")
    A("s_mov_b32 s14, 0x10000"); A("s_mov_b32 s15, 0x00020000")
    for q in range(4): A(f"s_mov_b32 s{20+q}, {q*16384}")
    for x in range(8):
        ks, PI = x >> 2, x & 3
        A(f"s_mov_b32 s{24+x}, {(ks*32 + 16*(PI>>1) + 4*(PI&1))*8192}")
    A("s_lshl_b32 s32, s16, 13")
    A(f"s_add_u32 s33, s32, {LDS_W}")
    A("v_lshrrev_b32 v5, 3, v2")
    A("v_and_b32 v6, 7, v2")
    A("v_lshrrev_b32 v7, 4, v2")
    A("s_lshl_b32 s34, s16, 16")
    A("v_lshlrev_b32 v3, 10, v5")
    A("v_add_u32 v3, s34, v3")
    A("v_xor_b32 v8, v6, v7")
    A("v_lshl_add_u32 v4, v8, 4, v3")
    A("v_xor_b32 v8, 4, v8")
    A("v_lshl_add_u32 v8, v8, 4, v3")
    A("v_add_u32 v8, 8192, v8")
    A("v_mov_b32 v3, v4")
    A("v_mov_b32 v4, v8")
    A("v_and_b32 v8, 3, v5")
    A("v_lshrrev_b32 v9, 2, v5")
    A("v_lshl_add_u32 v8, v9, 3, v8")
    A("v_lshlrev_b32 v8, 13, v8")
    A("v_lshrrev_b32 v9, 1, v5")
    A("v_and_b32 v10, 1, v9")
    A("v_lshrrev_b32 v11, 1, v9")
    A("v_lshl_add_u32 v10, v11, 2, v10")
    A("v_lshlrev_b32 v11, 1, v9")
    A("s_cmp_lt_u32 s16, 2")
    A("s_cselect_b64 vcc, -1, 0")
    A("v_cndmask_b32 v10, v11, v10, vcc")
    A("v_xor_b32 v10, v6, v10")
    A("v_lshl_add_u32 v9, v10, 4, v8")
    A("s_lshl_b32 s34, s17, 8")
    A("s_and_b32 s35, s16, 1")
    A("s_lshl_b32 s35, s35, 7")
    A("s_add_u32 s34, s34, s35")
    A("v_add_u32 v9, s34, v9")

    def dma_stage(stg):
        buf = stg & 1
        G = []
        for p in range(8):
            G.append((f"s_add_u32 m0, s32, {buf*32768 + p*1024}",
                      f"buffer_load_dwordx4 v{3+(p&1)}, s[4:7], s{20+(p>>1)} offen lds"))
        for x in range(8):
            G.append((f"s_add_u32 m0, s33, {buf*32768 + x*1024}",
                      f"buffer_load_dwordx4 v9, s[8:11], s{24+x} offen lds"))
        G2 = []
        for p in range(8):
            G2.append(G[p]); G2.append(G[8+p])
        return G2
    def bump():
        return ["s_add_u32 s4, s4, 128", "s_addc_u32 s5, s5, 0", "s_add_u32 s8, s8, 524288", "s_addc_u32 s9, s9, 0"]
    for stg in range(2):
        for (m, d) in dma_stage(stg):
            A(m); A("s_nop 0"); A(d)
        for t in bump(): A(t)
    A(f"v_lshlrev_b32 v{V_PF}, 4, v0")
    def pf(srd, share_sh, n, tmp="s34"):
        L = []
        for i in range(n):
            L.append([f"s_lshl_b32 {tmp}, {wgid}, {share_sh}"] + ([f"s_add_u32 {tmp}, {tmp}, {i*4096}"] if i else []) +
                     [f"buffer_load_dwordx4 {PFD}, v{V_PF}, s[{srd}:{srd+3}], {tmp} offen"])
        return L
    for (p, sz, sh, n) in ((40, 0x200000, 13, 2), (42, 0x400000, 14, 4), (44, 0x400000, 14, 4)):
        A(f"s_mov_b32 s{PF2}, s{p}"); A(f"s_mov_b32 s{PF2+1}, s{p+1}"); A(f"s_mov_b32 s{PF2+2}, {hex(sz)}"); A(f"s_mov_b32 s{PF2+3}, 0x00020000")
        for g in pf(PF2, sh, n):
            for t in g: A(t)
    NPF0 = 10
    A("v_and_b32 v12, 15, v2")
    A("v_lshrrev_b32 v13, 1, v12")
    A("v_xor_b32 v13, v7, v13")
    A("v_lshlrev_b32 v10, 7, v12")
    A("v_lshl_add_u32 v10, v13, 4, v10")
    A("s_and_b32 s34, s16, 1")
    A("s_lshl_b32 s34, s34, 14")
    A("v_add_u32 v10, s34, v10")
    A("v_xor_b32 v11, 64, v10")
    A("v_lshrrev_b32 v13, 2, v12")
    A("v_and_b32 v14, 1, v7")
    A("v_lshl_add_u32 v13, v14, 2, v13")
    A("v_lshrrev_b32 v14, 1, v7")
    A("v_lshlrev_b32 v14, 11, v14")
    A("v_lshl_add_u32 v14, v13, 7, v14")
    A("v_and_b32 v15, 1, v12")
    A("v_lshl_add_u32 v14, v15, 3, v14")
    A("s_lshr_b32 s34, s16, 1")
    A("s_lshl_b32 s34, s34, 14")
    A(f"s_add_u32 s34, s34, {LDS_W}")
    A("v_add_u32 v14, s34, v14")
    A("v_lshrrev_b32 v13, 1, v13")
    A("v_and_b32 v15, 1, v13")
    A("v_lshrrev_b32 v16, 1, v13")
    A("v_lshl_add_u32 v15, v16, 2, v15")
    A("v_lshlrev_b32 v16, 1, v13")
    A("v_bfe_u32 v17, v12, 1, 1")
    A("v_lshlrev_b32 v18, 1, v17")
    A("v_xor_b32 v15, v15, v18")
    A("v_xor_b32 v16, v16, v17")
    A("s_cmp_lt_u32 s16, 2")
    A("s_cselect_b64 vcc, -1, 0")
    A("v_cndmask_b32 v15, v16, v15, vcc")
    A("s_cselect_b32 s34, 1, 2")
    A("s_cselect_b32 s35, 5, 6")
    A("v_lshl_add_u32 v5, v15, 4, v14")
    A("v_xor_b32 v16, s34, v15"); A("v_lshl_add_u32 v6, v16, 4, v14")
    A("v_xor_b32 v16, 4, v15");   A("v_lshl_add_u32 v7, v16, 4, v14")
    A("v_xor_b32 v16, s35, v15"); A("v_lshl_add_u32 v8, v16, 4, v14")
    T0, T1, T2 = 34, 35, 19
    A(f"s_and_b32 s{T0}, {wgid}, 7"); A(f"s_lshr_b32 s{T2}, {wgid}, 6"); A(f"s_and_b32 s{T2}, s{T2}, 3")
    A(f"s_lshl_b32 s{T2}, s{T2}, 3"); A(f"s_add_u32 s{T0}, s{T0}, s{T2}")
    A(f"s_lshr_b32 s{T1}, {wgid}, 3"); A(f"s_and_b32 s{T1}, s{T1}, 7")
    A(f"s_lshl_b32 s{S_POLL}, s{T0}, 3")
    A(f"s_lshl_b32 s{T2}, s{T0}, 6")
    A(f"s_lshr_b32 s{S_GT}, s16, 1"); A(f"s_lshl_b32 s{S_GT}, s{S_GT}, 5"); A(f"s_add_u32 s{T2}, s{T2}, s{S_GT}")
    A("v_and_b32 v12, 31, v2")
    A(f"v_add_u32 v12, s{T2}, v12")
    A("v_lshrrev_b32 v13, 5, v2")
    A("v_lshlrev_b32 v13, 8, v13")
    A("v_lshrrev_b32 v14, 4, v12"); A("v_lshlrev_b32 v14, 14, v14")
    A("v_and_b32 v15, 15, v12"); A("v_lshl_add_u32 v14, v15, 4, v14")
    A(f"v_add_u32 v{V_B}, v14, v13")
    A("v_lshrrev_b32 v14, 3, v2"); A("v_lshlrev_b32 v14, 10, v14")
    A("v_bfe_u32 v15, v2, 4, 1"); A("v_lshlrev_b32 v15, 2, v15")
    A("v_and_b32 v16, 7, v2"); A("v_xor_b32 v15, v15, v16")
    A(f"v_lshl_add_u32 v{V_WD}, v15, 4, v14")
    A(f"s_lshl_b32 s{T2}, s16, 15"); A(f"v_add_u32 v{V_WD}, s{T2}, v{V_WD}")
    A("v_and_b32 v14, 15, v2"); A("v_lshrrev_b32 v15, 4, v2")
    A("v_lshrrev_b32 v16, 1, v15"); A("v_lshlrev_b32 v16, 3, v16")
    A("v_lshrrev_b32 v17, 2, v14"); A("v_add_u32 v16, v16, v17")
    A("v_and_b32 v15, 1, v15"); A("v_lshlrev_b32 v15, 1, v15")
    A("v_and_b32 v17, 1, v14"); A("v_add_u32 v15, v15, v17")
    A(f"s_and_b32 s{T2}, s16, 1"); A(f"s_lshl_b32 s{T2}, s{T2}, 2"); A(f"v_add_u32 v15, s{T2}, v15")
    A("v_bfe_u32 v17, v14, 3, 1"); A("v_lshlrev_b32 v17, 2, v17"); A("v_xor_b32 v15, v15, v17")
    A("v_lshlrev_b32 v15, 4, v15")
    A(f"v_lshl_add_u32 v{V_TR0}, v16, 7, v15")
    A("v_bfe_u32 v17, v14, 1, 1")
    A(f"v_lshl_add_u32 v{V_TR0}, v17, 3, v{V_TR0}")
    A(f"v_add_u32 v{V_TR1}, 0x20000, v{V_TR0}")
    A(f"s_lshl_b32 s{T2}, s{T1}, 7")
    A(f"s_add_u32 s{SRD_W1}, s{SRD_W1}, s{T2}"); A(f"s_addc_u32 s{SRD_W1+1}, s{SRD_W1+1}, 0")
    A(f"s_sub_u32 s{SRD_W1+2}, 0x80000, s{T2}"); A(f"s_mov_b32 s{SRD_W1+3}, 0x00020000")
    srd_off(A, SRD_H, 46, WS_H, 0x200000)
    srd_off(A, SRD_XN2, 46, WS_XN2F, 0x200000)
    srd_off(A, SRD_XNF, 46, WS_XNF, 0x200000)
    A(f"s_mov_b32 s{SRD_DBG+2}, 256"); A(f"s_mov_b32 s{SRD_DBG+3}, 0x00020000")
    A(f"s_lshl_b32 s{S_M0G}, s16, 12")
    A(f"s_lshl_b32 s{S_GOUT}, s{T1}, 1"); A(f"s_and_b32 s{T2}, s16, 1"); A(f"s_add_u32 s{S_GOUT}, s{S_GOUT}, s{T2}")
    A(f"s_lshl_b32 s{S_GOUT}, s{S_GOUT}, 10")
    A(f"s_lshr_b32 s{T2}, {wgid}, 3"); A(f"s_lshl_b32 s{T2}, s{T2}, 3")
    A(f"v_mov_b32 v{V_SIG}, s{T2}"); A("v_bfrev_b32 v12, 1")
    A("v_cmp_eq_u32 vcc, 0, v0"); A("s_nop 1")
    A(f"v_cndmask_b32 v{V_SIG}, v12, v{V_SIG}, vcc")
    A(f"v_mov_b32 v{V_ONE}, 1")
    XNF = 94
    def ln_stream():
        L = []
        P = V_LP; t0, t1, t2, t3 = V_LT, V_LT+1, V_LT+2, V_LT+3; m = 0
        def red(x, t):
            return ["s_nop 1", f"v_add_f32_dpp v{x}, v{x}, v{x} quad_perm:[1,0,3,2] row_mask:0xf bank_mask:0xf",
                    "s_nop 1", f"v_add_f32_dpp v{x}, v{x}, v{x} quad_perm:[2,3,0,1] row_mask:0xf bank_mask:0xf",
                    "s_nop 1", f"v_add_f32_dpp v{x}, v{x}, v{x} row_half_mirror row_mask:0xf bank_mask:0xf",
                    "s_nop 1", f"v_add_f32_dpp v{x}, v{x}, v{x} row_mirror row_mask:0xf bank_mask:0xf",
                    f"v_mov_b32 v{t}, v{x}", "s_nop 1", f"v_permlane16_swap_b32 v{x}, v{t}", "s_nop 1", f"v_add_f32 v{x}, v{x}, v{t}"]
        def ln():
            R_ = []
            for r in range(8):
                R_ += [f"v_lshlrev_b32 v{t0}, 16, v{P+r}", f"v_and_b32 v{t1}, s{S_MASK}, v{P+r}"]
                if r == 0: R_ += [f"v_add_f32 v{m}, v{t0}, v{t1}"]
                else: R_ += [f"v_add_f32 v{t0}, v{t0}, v{t1}", f"v_add_f32 v{m}, v{m}, v{t0}"]
            R_ += red(m, t0) + [f"v_mul_f32 v{m}, 0x3b000000, v{m}"]
            for r in range(8):
                R_ += [f"v_lshlrev_b32 v{t0}, 16, v{P+r}", f"v_and_b32 v{t1}, s{S_MASK}, v{P+r}",
                       f"v_sub_f32 v{t0}, v{t0}, v{m}", f"v_sub_f32 v{t1}, v{t1}, v{m}"]
                if r == 0: R_ += [f"v_mul_f32 v{t3}, v{t0}, v{t0}"]
                else: R_ += [f"v_fma_f32 v{t3}, v{t0}, v{t0}, v{t3}"]
                R_ += [f"v_fma_f32 v{t3}, v{t1}, v{t1}, v{t3}"]
            R_ += red(t3, t0)
            R_ += [f"v_mov_b32 v{t1}, 0x3727c5ac", f"v_fmac_f32 v{t1}, 0x3b000000, v{t3}", f"v_rsq_f32 v{t3}, v{t1}", "s_nop 0"]
            for r in range(8):
                R_ += [f"v_lshlrev_b32 v{t0}, 16, v{P+r}", f"v_and_b32 v{t1}, s{S_MASK}, v{P+r}",
                       f"v_sub_f32 v{t0}, v{t0}, v{m}", f"v_sub_f32 v{t1}, v{t1}, v{m}",
                       f"v_mul_f32 v{t0}, v{t0}, v{t3}", f"v_mul_f32 v{t1}, v{t1}, v{t3}",
                       f"v_cvt_pk_bf16_f32 v{P+r}, v{t0}, v{t1}"]
            return R_
        for r in range(8): L.append(f"v_accvgpr_read_b32 v{P+r}, a{A_X+r}")
        L += ln()
        L += [("ln", f"buffer_store_dwordx4 v[{P}:{P+3}], v{V_LO}, s[{SRD_XNF}:{SRD_XNF+3}], 0 offen sc1"),
              ("ln", f"buffer_store_dwordx4 v[{P+4}:{P+7}], v{V_LO}, s[{SRD_XNF}:{SRD_XNF+3}], s{S_8K} offen sc1")]
        L += ln()
        L += [("ln", f"buffer_store_dwordx4 v[{P}:{P+3}], v{V_LO}, s[{SRD_XN2}:{SRD_XN2+3}], 0 offen sc1"),
              ("ln", f"buffer_store_dwordx4 v[{P+4}:{P+7}], v{V_LO}, s[{SRD_XN2}:{SRD_XN2+3}], s{S_8K} offen sc1")]
        return L

    def reads(n, isK):
        p = n & 1; stg = n >> 1; ks = n & 1; buf = stg & 1
        Rr = []
        for i in range(8):
            if isK:
                ip, u = i >> 1, i & 1
                ng = ip >> 1; var = 2*(ip & 1) + u
            else:
                ng = i >> 2; var = i & 3
            for rd in range(2):
                off = buf*32768 + (ng*8 + ks*4 + rd)*1024
                Rr.append(f"ds_read_b64_tr_b16 {wfr_half(p,i,rd)}, v{5+var} offset:{off}")
            Rr.append(f"ds_read_b128 {tfr(p,i)}, v{10+ks} offset:{buf*32768 + i*2048}")
        return Rr
    PLAN = {2: [(KA_W1, 0x80000, 12, 1, 0), (KA_W2, 0x80000, 12, 1, 0)],
            4: [(KA_WQ, 0x400000, 14, 2, 0)], 6: [(KA_WQ, 0x400000, 14, 2, 2), (KA_W3, 0x1c0000, 13, 1, 0)],
            8: [(KA_W3, 0x1c0000, 13, 1, 1), (KA_W4, 0x1c0000, 13, 2, 0)],
            10: [(KA_WO, 0x400000, 14, 2, 0)], 12: [(KA_WO, 0x400000, 14, 2, 2)]}
    import os
    LNCAP = int(os.environ.get("LNCAP", "2"))
    DSP = int(os.environ.get("DSP", "4"))
    def r_tmp(k): return [5,6,7,8,9,10,11,13][k]
    def is_vm(t): return t.startswith("buffer_")

    def body(isK):
        log = ["x"]*2 + ["s0"]*16 + ["s1"]*16 + ["pf"]*NPF0
        def need(*tags):
            last = max([i for i, t in enumerate(log) if t in tags] + [-1])
            return min(63, len(log) - 1 - last)
        if "STN" not in os.environ: st(0)
        A(f"s_waitcnt vmcnt({need('x', 's0')})")
        A("s_barrier")
        if "STN" not in os.environ: st(1)
        for t in reads(0, isK): A(t)
        lns = ln_stream()
        sig_done = False; ln_end = [None]; SIGD = 2
        for n in range(16):
            p = n & 1
            M = []
            for i in range(8):
                for j in range(8):
                    if isK: a_, b_ = wfr(p, i), tfr(p, j)
                    else:   a_, b_ = tfr(p, i), wfr(p, j)
                    c = "0" if n == 0 else acc(i, j)
                    M.append(f"v_mfma_f32_16x16x32_bf16 {acc(i,j)}, {a_}, {b_}, {c}")
            F = []
            tags = []
            if n == 15: tags = []
            elif n & 1: tags = [f"s{(n+1)//2}"]
            elif n >= 4: tags = [f"w{n//2}"]
            if n == NP + 1: tags.append("poll")
            if not lns and ln_end[0] is None: ln_end[0] = n
            do_sig = (not sig_done) and (not lns) and n >= ln_end[0] + SIGD and n < 15
            if do_sig: tags.append("ln")
            w = f"vmcnt({need(*tags)}) " if tags else ""
            A(f"s_waitcnt {w}lgkmcnt(0)")
            if n < 15 and tags and not ("nobar" in os.environ.get("K1X", "") and not do_sig): A("s_barrier")
            STN = [int(x) for x in os.environ.get("STN", "-1,-1,1,9").split(",")]
            if stamp and n in STN: st(STN.index(n))
            if n == NP + 1:
                lsp, lok = A.newlabel("SPIN"), A.newlabel("OK")
                A(f"v_readfirstlane_b32 s{S_GT}, v{V_POLL}")
                A(f"s_cmp_ge_u32 s{S_GT}, 8"); A(f"s_cbranch_scc0 {lsp}")
                A.label(lok)
                ool.append((lsp, lok))
            if n < 15:
                for k, t in enumerate(reads(n+1, isK)): F.append((k, "", t))
            if n + 1 in PLAN:
                for k, x in enumerate(PLAN[n+1]):
                    F.append((30 + k, "", f"s_load_dwordx2 s[{(PF1, PF2)[k]}:{(PF1, PF2)[k]+1}], s[0:1], {x[0]}"))
            if (n & 1) and (n >> 1) + 2 <= 7:
                stg = (n >> 1) + 2
                G = dma_stage(stg)
                G = [g for k, g in enumerate(G) if not ((k & 1) and (k >> 1) >= 4)]
                for k, (m, d) in enumerate(G):
                    F.append((1 + DSP*k, "", m)); F.append((2 + DSP*k, f"s{stg}", d))
                F.append((62, "", "s_add_u32 s4, s4, 128")); F.append((62, "", "s_addc_u32 s5, s5, 0"))
            if (n & 1) == 0 and n >= 2 and (n >> 1) + 1 <= 7:
                stg = (n >> 1) + 1
                G = dma_stage(stg)
                G = [g for k, g in enumerate(G) if ((k & 1) and (k >> 1) >= 4)]
                for k, (m, d) in enumerate(G):
                    F.append((1 + 8*k, "", m)); F.append((2 + 8*k, f"w{stg}", d))
                F.append((30, "", "s_add_u32 s8, s8, 524288")); F.append((30, "", "s_addc_u32 s9, s9, 0"))
            if n in PLAN:
                g = 34
                for k, x in enumerate(PLAN[n]):
                    srd = (PF1, PF2)[k]
                    F.append((g, "", f"s_mov_b32 s{srd+2}, {hex(x[1])}")); F.append((g, "", f"s_mov_b32 s{srd+3}, 0x00020000"))
                    for i in range(x[4], x[4] + x[3]):
                        F.append((g, "", f"s_lshl_b32 s34, {wgid}, {x[2]}"))
                        if i: F.append((g, "", f"s_add_u32 s34, s34, {i*4096}"))
                        F.append((g + 1, "pf", f"buffer_load_dwordx4 {PFD}, v{V_PF}, s[{srd}:{srd+3}], s34 offen"))
                        g += 8
            if do_sig:
                F.append((63, "sig", f"buffer_atomic_add v{V_ONE}, v{V_SIG}, s[{SRD_DBG}:{SRD_DBG+3}], 0 offen sc1"))
                sig_done = True
            def g1w(cs, g0, sp):
                k = 0
                for c in cs:
                    for i in range(4):
                        F.append((g0 + sp*k, "", f"s_add_u32 m0, s{S_M0G}, {G1BASE[c] + i*1024}"))
                        F.append((g0 + sp*k, "", f"s_mov_b32 s{S_GT}, {c*131072 + i*8192}"))
                        F.append((g0 + 1 + sp*k, "g1w", f"buffer_load_dwordx4 v{V_WD}, s[{SRD_W1}:{SRD_W1+3}], s{S_GT} offen lds"))
                        k += 1
            def xn2(fs, g0, sp):
                for k, f in enumerate(fs):
                    c, s_ = f >> 3, f & 7
                    if s_ == 0 or k == 0: F.append((g0 + sp*k, "", f"s_mov_b32 s{S_GX}, {4096*c}"))
                    F.append((g0 + 1 + sp*k, "xn2", f"buffer_load_dwordx4 {ar(gB(f))}, v{V_B}, s[{SRD_XN2}:{SRD_XN2+3}], s{S_GT} offen offset:{512*s_} sc1".replace(f"s{S_GT} offen", f"s{S_GX} offen")))
            if n == 8: g1w((0,), 32, 8)
            if n == 10: g1w((1,), 32, 8)
            if n == 13: g1w((2, 3), 1, 6)
            if n == NP:
                F.append((-1, "", f"v_mov_b32 v{V_POLL}, 0"))
                F.append((0, "poll", f"buffer_load_dword v{V_POLL}, v{V_POLL}, s[{SRD_DBG}:{SRD_DBG+3}], s{S_POLL} offen sc1"))
            if n == 12: xn2(range(0, 4), 33, 7)
            if n == 13: xn2(range(4, 8), 50, 3)
            if n == 14: xn2(range(8, 24), 1, 4)
            if n == 15: xn2(range(24, 32), 1, 6)
            if lns:
                cnt = [0]*64
                for g, _, t in F:
                    if g < 64 and not t.startswith("s_"): cnt[g] += 1
                for g in range(64):
                    room = LNCAP - cnt[g]
                    while room > 0 and lns:
                        if isinstance(lns[0], tuple) and g < 58: break
                        x = lns.pop(0)
                        tg, t = x if isinstance(x, tuple) else ("", x)
                        F.append((g, tg, t))
                        if not t.startswith("s_nop"): room -= 1
            KX = os.environ.get("K1X", "")
            if "nopf" in KX: F = [f for f in F if f[1] != "pf"]
            if "nodma" in KX: F = [f for f in F if not (f[2].endswith(" lds") and f[1] != "g1w")]
            if "nord" in KX: F = [f for f in F if not f[2].startswith("ds_read")]
            F.sort(key=lambda x: x[0])
            for g, tg, t in F:
                if tg: log.append(tg)
            interleave(A, M, [(g, t) for g, _, t in F])
        assert not lns and sig_done
        st(4)
        A("s_nop 7"); A("s_nop 7")
        A("v_lshrrev_b32 v13, 4, v2")
        A("v_lshrrev_b32 v14, 1, v13")
        A("v_and_b32 v15, 1, v13")
        if isK:
            A("v_bfe_u32 v16, v2, 3, 1")
            A("v_and_b32 v17, 7, v2")
            A("v_lshl_add_u32 v17, v16, 4, v17")
            A("v_lshl_add_u32 v17, v15, 5, v17")
            A("v_lshlrev_b32 v17, 4, v17")
            A("v_lshl_add_u32 v12, v14, 10, v17")
        else:
            A("v_and_b32 v17, 15, v2")
            A("v_lshl_add_u32 v17, v15, 5, v17")
            A("v_lshlrev_b32 v17, 4, v17")
            A("v_lshl_add_u32 v12, v14, 12, v17")
            A("v_add_u32 v12, 16384, v12")
        cnt = 0
        if isK: A("s_mov_b32 s35, 0x3e0293ee")
        for x in range(32):
            if isK:
                j, ip = x >> 2, x & 3
                srcs = [accr(2*ip, j, r) for r in range(4)] + [accr(2*ip+1, j, r) for r in range(4)]
                so = (j >> 2)*32768 + ((j >> 1) & 1)*8192 + (ip >> 1)*4096
                io = (ip & 1)*2048 + (j & 1)*128
            else:
                beta, nb = x >> 3, x & 7
                srcs = [accr(2*beta, nb, r) for r in range(4)] + [accr(2*beta+1, nb, r) for r in range(4)]
                so = (beta >> 1)*32768 + (beta & 1)*8192
                io = (nb >> 1)*1024 + (nb & 1)*256
            t = 16 + 4*(cnt % 3); cnt += 1
            vs = []
            for k, (ty, r) in enumerate(srcs):
                if ty == "a":
                    A(f"v_accvgpr_read_b32 v{r_tmp(k)}, a{r}")
                    vs.append(r_tmp(k))
                else:
                    vs.append(r)
            if isK:
                for k in range(8): A(f"v_mul_f32 v{vs[k]}, s35, v{vs[k]}")
            for k in range(4):
                A(f"v_cvt_pk_bf16_f32 v{t+k}, v{vs[2*k]}, v{vs[2*k+1]}")
            A(f"s_mov_b32 s34, {so}")
            A(f"buffer_store_dwordx4 v[{t}:{t+3}], v12, s[12:15], s34 offen offset:{io}")
    lv, le = A.newlabel("KVV"), A.newlabel("KVE")
    A("s_cmp_lt_u32 s16, 2")
    A(f"s_cbranch_scc0 {lv}")
    body(True)
    A(f"s_branch {le}")
    A.label(lv)
    body(False)
    A.label(le)
    st(5)
    A("s_waitcnt vmcnt(32)")
    A("s_barrier")
    ACC = 32
    def wr(c):
        L = []
        for s_ in range(8):
            for rd in range(2):
                b = 64 + 32*(c & 1) + 4*s_ + 2*rd
                base = G1BASE[c]
                L.append(f"ds_read_b64_tr_b16 a[{b}:{b+1}], v{V_TR0 if base < 65536 else V_TR1} offset:{(base & 65535) + s_*2048 + rd*512}")
        return L
    for t in wr(0): A(t)
    for c in range(4):
        M = []
        for s_ in range(8):
            cc = "0" if (c == 0 and s_ == 0) else vr(ACC, 16)
            M.append(f"v_mfma_f32_32x32x16_bf16 {vr(ACC,16)}, {ar(64+32*(c&1)+4*s_)}, {ar(gB(8*c+s_))}, {cc}")
        A("s_waitcnt lgkmcnt(0)")
        F = [(k >> 1, t) for k, t in enumerate(wr(c+1))] if c < 3 else []
        interleave(A, M, F)
    A(f"v_mov_b32 v48, {GC0}"); A(f"v_mov_b32 v49, {GC0}"); A(f"v_mov_b32 v50, {GC1}"); A(f"v_mov_b32 v51, {GC1}")
    A("s_nop 7"); A("s_nop 7")
    st(6)
    gelu_block(A, ACC, 16, 64, 48, 50)
    for r in range(8): A(f"v_cvt_pk_bf16_f32 v{52+r}, v{ACC+2*r}, v{ACC+2*r+1}")
    A(f"buffer_store_dwordx4 {vr(52)}, v{V_B}, s[{SRD_H}:{SRD_H+3}], s{S_GOUT} offen")
    A(f"buffer_store_dwordx4 {vr(56)}, v{V_B}, s[{SRD_H}:{SRD_H+3}], s{S_GOUT} offen offset:512")
    A("s_waitcnt vmcnt(0)")
    if ool:
        lend = A.newlabel("K1E")
        A(f"s_branch {lend}")
        for lsp, lok in ool:
            lp = A.newlabel("SP")
            A.label(lsp)
            A(f"s_mov_b32 s34, {npoll}")
            A.label(lp)
            A(f"v_mov_b32 v{V_POLL}, 0")
            A(f"buffer_load_dword v{V_POLL}, v{V_POLL}, s[{SRD_DBG}:{SRD_DBG+3}], s{S_POLL} offen sc1")
            A("s_waitcnt vmcnt(0)")
            A(f"v_readfirstlane_b32 s{S_GT}, v{V_POLL}")
            A(f"s_cmp_ge_u32 s{S_GT}, 8"); A(f"s_cbranch_scc1 {lok}")
            A("s_sleep 8")
            A("s_sub_u32 s34, s34, 1"); A("s_cmp_lg_u32 s34, 0"); A(f"s_cbranch_scc1 {lp}")
            A(f"s_branch {lok}")
        A.label(lend)
```

```python
import sys, os
from common import *
from kv import emit_kv
from ln import emit_ln
from attn import emit_attn
from bpath import emit_g12, emit_g3
from fin import emit_final
from fin2 import emit_final2
from attn2 import emit_attn2
from k1 import emit_k1
HEADER = open("../cdna_kernels/recurrent_scan__compressed_kv_cla__mixer_s_mlp__prompt.s.ref").read().split("; Override")[0]
def stamp_begin(A):
    A("s_memtime s[96:97]"); A("s_memrealtime s[98:99]"); A("v_lshrrev_b32 v1, 6, v0"); A("s_nop 1"); A("v_readfirstlane_b32 s91, v1")
def mk_stamp(A):
    def st(k):
        A(f"s_memtime s[{62+2*k}:{63+2*k}]")
    return st
KIDX = [0]
def stamp_dump(A, n, wg=17):
    l = A.newlabel("ST")
    A("s_memtime s[92:93]"); A("s_memrealtime s[94:95]")
    A("s_load_dwordx2 s[8:9], s[0:1], 96")
    A("s_load_dwordx2 s[12:13], s[0:1], 104")
    A("s_waitcnt lgkmcnt(0)")
    KIDX[0] += 1
    A(f"s_add_u32 s4, s12, {hex(WS_FLAG + 0x100000 + (KIDX[0]-1)*4096)}"); A("s_addc_u32 s5, s13, 0"); A("s_mov_b32 s6, 4096"); A("s_mov_b32 s7, 0x00020000")
    A("s_lshl_b32 s10, s2, 3"); A("v_mov_b32 v1, s10"); A("v_mov_b32 v2, s98"); A("v_mov_b32 v3, s94")
    A("buffer_store_dwordx2 v[2:3], v1, s[4:7], 0 offen")
    if os.environ.get("XST"):
        k1, k2 = [int(x) for x in os.environ["XST"].split(",")]
        A(f"s_sub_u32 s10, s{62+2*k1}, s96"); A(f"s_sub_u32 s11, s{62+2*k2}, s96"); A("v_mov_b32 v2, s10"); A("v_mov_b32 v3, s11")
        A("buffer_store_dwordx2 v[2:3], v1, s[4:7], 0 offen offset:2048")
    A(f"s_cmp_lg_u32 s2, {wg}"); A(f"s_cbranch_scc1 {l}")
    A("s_add_u32 s4, s8, 256"); A("s_addc_u32 s5, s9, 0"); A("s_mov_b32 s6, 256"); A("s_mov_b32 s7, 0x00020000")
    A("s_lshl_b32 s91, s91, 6"); A("v_mov_b32 v1, s91")
    A("v_mbcnt_lo_u32_b32 v4, -1, 0"); A("v_mbcnt_hi_u32_b32 v4, -1, v4")
    A("v_cmp_eq_u32 vcc, 0, v4"); A("s_and_saveexec_b64 s[12:13], vcc")
    for k in range(n):
        A(f"s_sub_u32 s10, s{62+2*k}, s96"); A("v_mov_b32 v2, s10")
        A(f"buffer_store_dword v2, v1, s[4:7], 0 offen offset:{4*k}")
    A("s_sub_u32 s92, s92, s96"); A("s_sub_u32 s94, s94, s98")
    A("v_mov_b32 v2, s92"); A("v_mov_b32 v3, s94")
    A(f"buffer_store_dwordx2 v[2:3], v1, s[4:7], 0 offen offset:{4*n}")
    A("s_waitcnt vmcnt(0)")
    A.label(l)
def emit_lid(A, per, lds_addr=0):
    sk, tr, got = A.newlabel("SK"), A.newlabel("TR"), A.newlabel("GOT")
    A("s_load_dwordx2 s[4:5], s[0:1], 96")
    A("s_getreg_b32 s3, hwreg(HW_REG_XCC_ID, 0, 4)")
    A("v_readfirstlane_b32 s6, v0")
    A(f"v_mov_b32 v2, {lds_addr}")
    A("s_cmp_lg_u32 s6, 0"); A(f"s_cbranch_scc1 {sk}")
    A("s_mov_b64 exec, 1")
    A("s_mov_b32 s7, 0")
    A("v_mov_b32 v1, 1")
    A("s_waitcnt lgkmcnt(0)")
    A.label(tr)
    A("s_add_u32 s8, s3, s7"); A("s_and_b32 s8, s8, 7")
    A("s_lshl_b32 s9, s8, 5"); A("v_mov_b32 v3, s9")
    A("global_atomic_add v4, v3, v1, s[4:5] sc0 sc1")
    A("s_waitcnt vmcnt(0)")
    A("v_readfirstlane_b32 s9, v4")
    A(f"s_cmp_lt_u32 s9, {per}"); A(f"s_cbranch_scc1 {got}")
    A("s_add_u32 s7, s7, 1"); A("s_cmp_lt_u32 s7, 8"); A(f"s_cbranch_scc1 {tr}")
    A("s_mov_b32 s9, 0x1000")
    A.label(got)
    A("s_lshl_b32 s9, s9, 3"); A("s_add_u32 s9, s9, s8")
    A("v_mov_b32 v1, s9")
    A("ds_write_b32 v2, v1")
    A("s_mov_b64 exec, -1")
    A.label(sk)
    A("s_waitcnt lgkmcnt(0)"); A("s_barrier")
    A("ds_read_b32 v1, v2")
    A("s_waitcnt lgkmcnt(0)")
    A("v_readfirstlane_b32 s2, v1")
    A("s_barrier")
LID = [False]
UID = [0]
def simple_kernel(name, emit, grid, lds, stamp=False, nst=8, wg=17, vgpr=512, accum=256):
    A = Asm(); UID[0] += 100000; A.uid = UID[0]
    kernel_begin(A, name)
    e = A.newlabel("END")
    A(f"s_cmp_ge_u32 s2, {grid}"); A(f"s_cbranch_scc1 {e}")
    if LID[0]:
        emit_lid(A, grid // 8)
        A(f"s_cmp_ge_u32 s2, {grid}"); A(f"s_cbranch_scc1 {e}")
        lds = max(lds, 64)
    if stamp:
        stamp_begin(A)
        for k in range(nst): A(f"s_mov_b64 s[{62+2*k}:{63+2*k}], 0") if False else None
    emit(A, mk_stamp(A) if stamp else None)
    A("s_waitcnt vmcnt(0)")
    if stamp: stamp_dump(A, nst, wg)
    A.label(e); A("s_endpgm")
    return A.text(), kernel_desc(name, vgpr=vgpr, accum=accum), (name, grid, 256, lds)
def emit_prefetch(A):
    mats = [(KA_CKV, 0x200000), (KA_WUK, 0x400000), (KA_WUV, 0x400000), (KA_W1, 0x80000), (KA_W2, 0x80000), (KA_W3, 0x1c0000), (KA_WQ, 0x400000), (KA_WO, 0x400000), (KA_W4, 0x1c0000)]
    for i, (ka, sz) in enumerate(mats): A(f"s_load_dwordx2 s[{44+2*i}:{45+2*i}], s[0:1], {ka}")
    A("v_lshlrev_b32 v58, 4, v0")
    A("s_lshl_b32 s70, s2, 14")
    A("v_and_b32 v59, 63, v0"); A("v_lshlrev_b32 v59, 4, v59")
    A("v_lshrrev_b32 v57, 6, v0"); A("v_lshlrev_b32 v57, 12, v57")
    A("v_add_u32 v58, v57, v59"); A("v_add_u32 v58, s70, v58")
    A("s_waitcnt lgkmcnt(0)")
    for i, (ka, sz) in enumerate(mats):
        A(f"s_mov_b32 s72, s{44+2*i}"); A(f"s_mov_b32 s73, s{45+2*i}"); A(f"s_mov_b32 s74, {hex(sz)}"); A("s_mov_b32 s75, 0x00020000")
        for k in range(4): A(f"buffer_load_dwordx4 v[60:63], v58, s[72:75], 0 offen offset:{k*1024}")
def k_lnp(): return simple_kernel("ln_kernel", lambda A, st: (emit_ln(A), emit_prefetch(A)), 256, 0, False, vgpr=64, accum=64)
def k_pln(): return simple_kernel("ln_kernel", lambda A, st: (emit_prefetch(A), emit_ln(A)), 256, 0, False, vgpr=64, accum=64)
def k_kv(stamp=False): return simple_kernel("kv_kernel", lambda A, st: emit_kv(A, stamp=st), 256, 131072, stamp)
def k_ln(stamp=False): return simple_kernel("ln_kernel", lambda A, st: emit_ln(A), 256, 0, stamp, vgpr=64, accum=64)
def k_attn(stamp=False, wg=17, nst=7): return simple_kernel("attn_kernel", lambda A, st: emit_attn(A, stamp=st), 256, 163840, stamp, nst=nst, wg=wg)
def k_g1(): return simple_kernel("g1_kernel", lambda A, st: emit_g12(A, 1), 256, 65536)
def k_g2(): return simple_kernel("g2_kernel", lambda A, st: emit_g12(A, 2), 256, 65536)
def k_g3(): return simple_kernel("g3_kernel", lambda A, st: emit_g3(A), 224, 131072)
def k_fin(stamp=False): return simple_kernel("fin_kernel", lambda A, st: emit_final(A, stamp=st), 256, 131072, stamp, nst=5, wg=int(os.environ.get("WG", "17")))
def k_fin2(stamp=False): return simple_kernel("fin_kernel", lambda A, st: emit_final2(A, stamp=st), 256, 131072, stamp, nst=7, wg=int(os.environ.get("WG", "17")))
def k_k1(stamp=False): return simple_kernel("k1_kernel", lambda A, st: emit_k1(A, stamp=st), 256, 163840, stamp, nst=7)
def k_k2(stamp=False, g2=True, g3=True, wg=17): return simple_kernel("attn_kernel", lambda A, st: emit_attn2(A, stamp=st, g2=g2, g3=g3), 256, 163840, stamp, nst=7, wg=wg)
def k_attn_plain(): return simple_kernel("attn_kernel", lambda A, st: emit_attn(A), 256, 163840)
def k_attn2(stamp=False, wg=17, nst=6): return simple_kernel("attn_kernel", lambda A, st: emit_attn2(A, stamp=st), 256, 163840, stamp, nst=nst, wg=wg)
def write(parts, outp):
    open(outp, "w").write(file_text([p[2] for p in parts], "".join(p[0] for p in parts), [p[1] for p in parts], HEADER))
if __name__ == "__main__":
    what = sys.argv[1]; outp = sys.argv[2]
    parts = []
    if what.endswith("x"): LID[0] = True; what = what[:-1]
    if what == "kv": parts = [k_kv(True)]
    if what == "attn": parts = [k_ln(), k_kv(), k_attn(True)]
    if what == "attnf":
        import attn; attn.FINE = True
        parts = [k_ln(), k_kv(), k_attn(True, nst=14)]
    if what == "bpath": parts = [k_ln(), k_g1(), k_g2(), k_g3()]
    if what == "full": parts = [k_ln(), k_kv(), k_g1(), k_g2(), k_g3(), k_attn_plain(), k_fin()]
    if what == "attn2": parts = [k_ln(), k_kv(), k_attn2(True)]
    if what == "full2": parts = [k_ln(), k_kv(), k_g1(), k_g2(), k_g3(), k_attn2(False), k_fin()]
    if what == "full2p": parts = [k_lnp(), k_kv(), k_g1(), k_g2(), k_g3(), k_attn2(False), k_fin()]
    if what == "full2q": parts = [k_pln(), k_kv(), k_g1(), k_g2(), k_g3(), k_attn2(False), k_fin()]
    if what == "finst": parts = [k_pln(), k_kv(), k_g1(), k_g2(), k_g3(), k_attn2(False), k_fin(True)]
    if what == "f3a": parts = [k_k1(), k_g2(), k_g3(), k_attn2(False), k_fin()]
    if what == "k1st": parts = [k_k1(True), k_g2(), k_g3(), k_attn2(False), k_fin()]
    if what == "f3b": parts = [k_k1(), k_k2(), k_fin()]
    if what == "f4a": parts = [k_k1(), k_k2(g3=2), k_fin()]
    if what == "f4st": parts = [k_k1(), k_k2(True, g3=2), k_fin()]
    if what == "f3c": parts = [k_k1(), k_k2(g3=False), k_g3(), k_fin()]
    if what == "k2st": parts = [k_k1(), k_k2(True), k_fin()]
    if what == "finst2": parts = [k_k1(), k_k2(g3=2), k_fin(True)]
    if what == "k1st2": parts = [k_k1(True), k_k2(g3=2), k_fin()]
    if what == "allst": parts = [k_k1(True), k_k2(True, g3=2), k_fin(True)]
    if what == "f5a": parts = [k_k1(), k_k2(g3=2), k_fin2()]
    if what == "finst5": parts = [k_k1(), k_k2(g3=2), k_fin2(True)]
    if what == "allst5": parts = [k_k1(True), k_k2(True, g3=2), k_fin2(True)]
    write(parts, outp)
```

```python
import os
from common import *

V_QLA, V_X, V_Y, V_DMA = 0, 1, 2, 3
E = (4, 6)
L0S, L1S, L0L, L1L = 8, 10, 12, 14
S0, S1, P0, P1 = 16, 32, 48, 56
Q0, Q1 = 64, 96
KF, VF = 128, 160
BA0, BA1, BB0, BB1 = 192, 208, 224, 240
O_S, O_L = 0, 128
S_W, S_HEAD, S_J = 20, 21, 22
S_MX, S_K, S_KB, S_VA, S_VP, S_CNT = 23, 24, 25, 26, 27, 28
S_QBS, S_QBL, S_A, S_B, S_D = 31, 32, 33, 34, 35
S_CSO, S_TMP, S_TMP2 = 36, 37, 38
S_WS, S_WM, S_W4K = 39, 44, 30
SRD_KV, SRD_WQ, SRD_XN, SRD_CTX, SRD_QS = 4, 8, 12, 16, 56
LDS_X = 131072
KE, KO, VE, VO = 0, 16384, 32768, 49152
NEG = "0xff800000"
WS_QS = 0x5000000

def ar(b, n=4): return f"a[{b}:{b+n-1}]"
def vr(b, n=4): return f"v[{b}:{b+n-1}]"

class VM:
    def __init__(s): s.q = []
    def issue(s, tag): s.q.append(tag)
    def cnt(s, tags):
        last = max(i for i, t in enumerate(s.q) if t in tags)
        return len(s.q) - 1 - last

def qk(S, q, c):
    M = []
    for s in range(8):
        cc = c if s == 0 else vr(S, 16)
        M.append(f"v_mfma_f32_32x32x16_bf16 {vr(S,16)}, {vr(KF+4*s)}, {vr(q+4*s)}, {cc}")
    return M
def pv(P, o):
    M = []
    for t in range(2):
        for db in range(4):
            M.append(f"v_mfma_f32_32x32x16_bf16 {ar(o+16*db,16)}, {vr(VF+4*(t*4+db))}, {vr(P+4*t)}, {ar(o+16*db,16)}")
    return M

import os
X = os.environ.get("X", "").split(",")
STD_Q = ["K6", "V2", "K7", "V3"]

def step(A, par, qk0, qk1, o, sm1, tr0, sm0, tr1, dmaV=True, dmaK=True, rdK=True, rdV2=True, rdV1=True,
         nprev=8, salu=None, extra=None, entry=STD_Q, barrier=True, nops=None, std_exit=True):
    salu = salu or {}; extra = extra or {}; nops = nops or {}
    M = [None]*32
    if qk0 is not None: M[0:8] = qk(S0, Q0, qk0)
    if qk1 is not None: M[16:24] = qk(S1, Q1, qk1)
    if o is not None:
        M[8:16] = pv(P0, o); M[24:32] = pv(P1, o + 64)
    G = {g: [] for g in range(32)}
    def add2(l, e): return [f"v_add_f32 v{l}, v{l}, v{e}", f"v_add_f32 v{l+1}, v{l+1}, v{e+1}"]
    def sm(base, S, P, L, tr):
        if tr is not None and L is None:
            G[base] += add2(tr, E[1])
        if L is None: return
        for k in range(8):
            e = E[k & 1]; g = base + 2*k
            G[g].append(f"v_exp_f32 v{e}, v{S+2*k}")
            G[g].append(f"v_exp_f32 v{e+1}, v{S+2*k+1}")
            if k == 0:
                if tr is not None: G[g] += add2(tr, E[1])
                else: G[g].append("s_nop 0")
            else:
                G[g] += add2(L, E[(k-1)&1])
            G[g+1].append(f"v_cvt_pk_bf16_f32 v{P+k}, v{e}, v{e+1}")
    sm(0, S1, P1, sm1, tr0)
    sm(16, S0, P0, sm0, tr1)
    q = list(entry)
    if par == 0: aV1, oV1, aK, oK, aV2, oV2 = V_X, VE, V_Y, KE, V_X, VO
    else:        aV1, oV1, aK, oK, aV2, oV2 = V_X, VO, V_Y, KO, V_Y, VE
    R = {g: [] for g in range(32)}
    if rdV1:
        for i in range(4): R[1+2*i].append((f"V{4+i}", f"ds_read_b128 {vr(VF+4*(4+i))}, v{aV1} offset:{oV1+(4+i)*1024}"))
    if rdK:
        for s in range(8): R[17+2*s].append((f"K{s}", f"ds_read_b128 {vr(KF+4*s)}, v{aK} offset:{oK+s*1024}"))
    if rdV2:
        for i in range(4): R[25+2*i].append((f"V{i}", f"ds_read_b128 {vr(VF+4*i)}, v{aV2} offset:{oV2+i*1024}"))
    for g, l in extra.items(): R[g] += l
    if par == 0: mV, sV, mK, sK = f"s_xor_b32 m0, s{S_MX}, 0x1c000", S_VP, f"s_mov_b32 m0, s{S_MX}", S_K
    else:        mV, sV, mK, sK = f"s_or_b32 m0, s{S_MX}, 0x8000", S_VA, f"s_or_b32 m0, s{S_MX}, 0x4000", S_KB
    D = {g: [] for g in range(32)}
    nb = 0
    if dmaV:
        for i, g in enumerate((1, 3, 7, 9)):
            D[g].append(f"buffer_load_dwordx4 v{V_DMA}, s[{SRD_KV}:{SRD_KV+3}], s{sV} offen offset:{i*1024} lds"); nb += 1
    if dmaK:
        for i, g in enumerate((13, 17, 19, 21)):
            D[g].append(f"buffer_load_dwordx4 v{V_DMA}, s[{SRD_KV}:{SRD_KV+3}], s{sK} offen offset:{i*1024} lds")
            if g < 15: nb += 1
    def wait(tags):
        idx = [i for i, t in enumerate(q) if t in tags]
        if not idx: return None
        n = len(q) - 1 - max(idx)
        del q[:max(idx)+1]
        return f"s_waitcnt lgkmcnt({min(n,15)})"
    waits = {5: ["K6", "K7", "V2", "V3"], 11: ["V4","V5","V6","V7"], 31: ["K0","K1","K2","K3","K4","K5","V0","V1"],
             15: ["QB%d" % i for i in range(8)]}
    waits[31] += ["QA%d" % i for i in range(8)]
    for g in range(32):
        if M[g]: A(M[g])
        if g == 1 and dmaV:
            A(mV)
            if not G[1]: A("s_nop 0")
        if g == 11 and dmaK: pass
        for t in G[g]:
            if "nosm" in X and sm1 is not None and sm0 is not None: continue
            if "noexp" in X and t.startswith("v_exp"): t = t.replace("v_exp_f32", "v_mov_b32")
            A(t)
        for tag, t in R[g]:
            if not ("nord" in X and sm1 is not None and sm0 is not None): A(t)
            q.append(tag)
        if g in waits:
            w = wait(waits[g])
            if w: A(w)
        for t in salu.get(g, []):
            if t.endswith(":"): A.label(t[:-1])
            else: A(t)
        if g == 11 and dmaK: A(mK)
        for t in D[g]:
            if "nodma" not in X: A(t)
        if g == 15 and barrier:
            if "novm" not in X: A(f"s_waitcnt vmcnt({nprev + nb})")
            if "nobar" not in X: A("s_barrier")
        for t in nops.get(g, []): A(t)
    if std_exit: assert q == STD_Q, q
    return q

def toggle():
    return [f"v_xor_b32 v{V_X}, 0x10000, v{V_X}", f"v_xor_b32 v{V_Y}, 0x10000, v{V_Y}", f"s_xor_b32 s{S_MX}, s{S_MX}, 0x10000"]

def pair(A, kind, nprev=8, hook=None, extra_prev=0, hook0=None, nprev0=8, nprev1=8):
    o = O_S if kind[0] == "S" else O_L
    l0, l1 = (L0S, L1S) if kind[0] == "S" else (L0L, L1L)
    kupd = [f"s_add_u32 s{S_K}, s{S_K}, 0x10000"] if kind != "SP" else [f"s_mov_b32 s{S_K}, 0"]
    sal_even = {5: kupd, 23: [f"s_add_u32 s{S_KB}, s{S_K}, 0x8000", f"s_add_u32 s{S_VA}, s{S_K}, 0x4000"]}
    tg = toggle()
    sal_odd = {23: [f"s_add_u32 s{S_VP}, s{S_K}, 0xc000"], 31: tg}
    if kind[1] == "R":
        for g_, L_ in (hook0 or {}).items(): sal_even[g_] = sal_even.get(g_, []) + L_
        step(A, 0, "0", "0", o, l1, l0, l0, l1, salu=sal_even, nprev=nprev0)
        step(A, 1, "0", "0", o, l1, l0, l0, l1, salu=sal_odd, nprev=nprev1)
    elif kind == "SP":
        step(A, 0, "0", "0", o, l1, l0, l0, l1, salu=sal_even)
        step(A, 1, vr(BA0,16), vr(BA1,16), o, l1, l0, l0, l1, salu=sal_odd)
    elif kind == "SL":
        def qr(tag, dst, f): return (f"{tag}{f}", f"ds_read_b128 {vr(dst+4*f)}, v{V_QLA} offset:{f*1024}")
        ex = {}
        for f, g in enumerate((5, 9, 11, 11, 13, 15, 15, 23)): ex.setdefault(g, []).append(qr("QA", Q0, f))
        se = dict(sal_even); se[23] = se[23] + [f"v_xor_b32 v{V_QLA}, 0x2000, v{V_QLA}"]
        for f, g in enumerate((25, 27, 29)): ex.setdefault(g, []).append(qr("QB", Q1, f))
        x = step(A, 0, vr(BB0,16), vr(BB1,16), o, l1, l0, l0, l1, salu=se, extra=ex, std_exit=False)
        ex = {}
        for f, g in zip(range(3, 8), (5, 9, 11, 11, 13)): ex.setdefault(g, []).append(qr("QB", Q1, f))
        step(A, 1, "0", "0", o, L1S, L0S, L0L, L1S, salu=sal_odd, extra=ex, entry=x)
    elif kind == "LP":
        step(A, 0, "0", "0", o, l1, l0, l0, l1, salu=dict(hook0 or {}), dmaK=False, nprev=nprev0)
        sal = dict(hook or {}); sal[31] = sal.get(31, []) + tg
        step(A, 1, vr(BA0,16), vr(BA1,16), o, l1, l0, l0, l1, salu=sal, dmaK=False, dmaV=False, nprev=nprev1)
    elif kind == "LL":
        x = step(A, 0, vr(BB0,16), vr(BB1,16), o, l1, l0, l0, l1, dmaK=False, dmaV=False, nprev=extra_prev, rdK=False, std_exit=False, salu=dict(hook0 or {}))
        step(A, 1, None, None, o, l1, l0, None, l1, dmaK=False, dmaV=False, rdK=False, rdV2=False, barrier=False,
             entry=x, std_exit=False, nops={16: ["s_nop 1"]})

def emit_attn2(A, wgid="s2", stamp=None, fallback=True, g2=False, g3=False):
    import k2
    st_ = stamp if stamp else (lambda k: None)
    SM = dict(x.split(":") for x in os.environ.get("SM", "0:0,1:1,2:2,3:3,4:4,5:5,6:6").split(","))
    def st(k):
        if str(k) in SM: st_(int(SM[str(k)]))
    ool = []
    load_ptr(A, 40, KA_WQ); load_ptr(A, 42, KA_WS)
    if g2: k2.g2_ptrs(A)
    if g3 == 2:
        import g3v2
        g3v2.ptr(A)
    A("v_lshrrev_b32 v10, 6, v0")
    A("v_and_b32 v11, 63, v0")
    A(f"v_readfirstlane_b32 s{S_W}, v10")
    A(f"s_and_b32 s{S_HEAD}, {wgid}, 7")
    A(f"s_lshr_b32 s{S_TMP}, {wgid}, 3")
    A(f"s_and_b32 s{S_TMP}, s{S_TMP}, 3")
    A(f"s_lshl_b32 s{S_TMP}, s{S_TMP}, 3")
    A(f"s_add_u32 s{S_HEAD}, s{S_HEAD}, s{S_TMP}")
    A(f"s_lshr_b32 s{S_J}, {wgid}, 5")
    A(f"s_lshl_b32 s{S_QBS}, s{S_J}, 2"); A(f"s_add_u32 s{S_QBS}, s{S_QBS}, s{S_W}")
    A(f"s_sub_u32 s{S_QBL}, 15, s{S_J}"); A(f"s_lshl_b32 s{S_QBL}, s{S_QBL}, 2"); A(f"s_add_u32 s{S_QBL}, s{S_QBL}, s{S_W}")
    A(f"s_lshl_b32 s{S_W4K}, s{S_W}, 12")
    A(f"s_lshl_b32 s{S_CSO}, s{S_HEAD}, 12")
    A(f"v_lshlrev_b32 v2, 4, v11")
    A(f"v_add_u32 v{V_DMA}, s{S_W4K}, v2")
    A(f"s_cmp_eq_u32 s{S_J}, 0")
    A(f"s_cselect_b32 s{S_K}, 0, 0x10000")
    A("s_waitcnt lgkmcnt(0)")
    A(f"s_lshl_b32 s{S_TMP}, s{S_HEAD}, 20")
    A(f"s_add_u32 s4, s42, s{S_TMP}"); A("s_addc_u32 s5, s43, 0")
    if WS_KV: A(f"s_add_u32 s4, s4, {hex(WS_KV)}"); A("s_addc_u32 s5, s5, 0")
    A("s_mov_b32 s6, 0x100000"); A("s_mov_b32 s7, 0x00020000")
    A(f"s_lshl_b32 s{S_TMP}, s{S_HEAD}, 8")
    A(f"s_add_u32 s8, s40, s{S_TMP}"); A("s_addc_u32 s9, s41, 0")
    A(f"s_sub_u32 s10, 0x400000, s{S_TMP}"); A("s_mov_b32 s11, 0x00020000")
    srd_off(A, SRD_XN, 42, WS_XNF, 0x200000)
    srd_off(A, SRD_CTX, 42, WS_CTX, 0x1000000)
    srd_off(A, SRD_QS, 42, WS_QS, 0x800000)
    VW, VB0, VB1, VT = 12, 16, 17, 22
    A("v_lshrrev_b32 v13, 4, v11")
    A("v_and_b32 v14, 15, v11")
    A("v_lshlrev_b32 v15, 2, v13")
    A("v_xor_b32 v15, v14, v15")
    A("v_lshlrev_b32 v15, 4, v15")
    A(f"v_lshl_add_u32 v{VW}, v13, 13, v15")
    A(f"s_lshl_b32 s{S_TMP}, s{S_W}, 18")
    A(f"v_add_u32 v{VW}, s{S_TMP}, v{VW}")
    A("v_and_b32 v18, 1, v13")
    A("v_lshrrev_b32 v19, 5, v11")
    A("v_lshl_add_u32 v20, v19, 4, v14")
    A("v_lshlrev_b32 v20, 4, v20")
    A("v_lshl_add_u32 v21, v18, 14, v20")
    A(f"s_lshl_b32 s{S_TMP}, s{S_QBS}, 15"); A(f"v_add_u32 v{VB0}, s{S_TMP}, v21")
    A(f"s_lshl_b32 s{S_TMP}, s{S_QBL}, 15"); A(f"v_add_u32 v{VB1}, s{S_TMP}, v21")
    A("v_lshrrev_b32 v26, 2, v14")
    A("v_lshrrev_b32 v27, 1, v13")
    A("v_lshl_add_u32 v27, v27, 3, v26")
    A("v_lshlrev_b32 v27, 8, v27")
    A("v_bfe_u32 v28, v14, 1, 1")
    A("v_lshl_add_u32 v28, v18, 1, v28")
    A("v_lshl_add_u32 v27, v28, 4, v27")
    A("v_and_b32 v28, 1, v14")
    A("v_lshl_add_u32 v27, v28, 3, v27")
    for db in range(4):
        A(f"v_xor_b32 v28, {db}, v26")
        A(f"v_lshl_add_u32 v{VT+db}, v28, 6, v27")
    vm = VM()
    WBUF = [LDS_X, 65536, 98304, LDS_X]
    A(f"s_lshl_b32 s{S_WM}, s{S_W}, 13")
    def wdma(c):
        R = []
        for i in range(8):
            R.append([f"s_add_u32 m0, s{S_WM}, {WBUF[c] + i*1024}",
                      f"s_mov_b32 s{S_WS}, {(128*c + 4*i)*8192}",
                      f"buffer_load_dwordx4 v{VW}, s[8:11], s{S_WS} offen lds"])
        return R
    def bload(c, s):
        p = c & 1
        return [f"buffer_load_dwordx4 {ar(64*p + 32*b + 4*s)}, v{vx}, s[12:15], s{45+c} offen offset:{512*s}" for b, vx in ((0, VB0), (1, VB1))]
    for c in range(4): A(f"s_mov_b32 s{45+c}, {4096*c}")
    def kvdma(ldsbase, soff):
        R = [[f"s_add_u32 m0, s{S_W4K}, {ldsbase}"] + ([f"s_mov_b32 s{S_WS}, {soff}"] if isinstance(soff, int) else [])]
        so = f"s{S_WS}" if isinstance(soff, int) else soff
        for i in range(4):
            R.append([f"buffer_load_dwordx4 v{V_DMA}, s[4:7], {so} offen offset:{i*1024} lds"])
        return R
    def emit_list(R, tag):
        for g in R:
            if isinstance(g, str): g = [g]
            for t in g:
                A(t)
                if t.startswith("buffer_"): vm.issue(tag)
    LATE = g2 and os.environ.get("LATE", "1") == "1"
    st(0)
    if not g2:
        emit_list(wdma(0), "W0")
        for s in range(8): emit_list(bload(0, s), "B0")
        emit_list(wdma(1), "W1")
        for s in range(8): emit_list(bload(1, s), "B1")
        emit_list(wdma(2), "W2")
    elif LATE:
        k2.LATE[0] = True
        emit_list(wdma(0), "W0")
        for s in range(8): emit_list(bload(0, s), "B0")
        emit_list(wdma(1), "W1")
        k2.g2_setup(A, wgid, S_W, 11, 42)
    else:
        k2.g2_setup(A, wgid, S_W, 11, 42)
        for c in range(4): emit_list(k2.g2_loads(c), f"G{c}")
        emit_list(k2.g2_xloads(SRD_XN), "GX")
        emit_list(wdma(0), "W0")
        later = [([t for s in range(8) for t in bload(0, s)], "B0"), (wdma(1), "W1"), ([t for s in range(8) for t in bload(1, s)], "B1"), (wdma(2), "W2")]
        flat = [(g, tag) for (L, tag) in later for g in L]
        per = (len(flat) + 3) // 4
        for c in range(4):
            A(f"s_waitcnt vmcnt({vm.cnt([f'G{c}'])})")
            st(10 + c)
            A("s_barrier")
            for t in k2.g2_wreads(c): A(t)
            for g, tag in flat[c*per:(c+1)*per]: emit_list([g], tag)
            for s in range(8):
                A(f"s_waitcnt lgkmcnt({min(14 - 2*s, 15)})")
                A(k2.g2_mfma(c, s))
        A(f"s_waitcnt vmcnt({vm.cnt(['GX'])})")
        st(6)
        k2.g2_epilogue(A, vm)
        A("s_barrier")
    def wreads(c, s):
        p = s & 1
        R = []
        for db in range(4):
            for rd in range(2):
                b = 128 + 16*p + 4*db + 2*rd
                R.append(f"ds_read_b64_tr_b16 a[{b}:{b+1}], v{VT+db} offset:{4096*s + 1024*rd}")
        return R
    def setbuf(c):
        d = WBUF[c] - (WBUF[c-1] if c else 0)
        return [(f"v_add_u32 v{VT+db}, {d}, v{VT+db}" if d >= 0 else f"v_subrev_u32 v{VT+db}, {-d}, v{VT+db}") for db in range(4)]
    for t in setbuf(0): A(t)
    A(f"s_waitcnt vmcnt({vm.cnt(['W0','B0'])})")
    A("s_barrier")
    st(1)
    for t in wreads(0, 0): A(t)
    QACC = lambda b, db: vr(128 + 64*b + 16*db, 16)
    kvlist = [(KE, 0), (KO, 32768), (VE, 16384), (VO, 49152)]
    for c in range(4):
        for s in range(8):
            p = s & 1
            pre = ["s_waitcnt lgkmcnt(0)"]
            last = (s == 7)
            if last and c < 3:
                n = vm.cnt([f"W{c+1}", f"B{c+1}"])
                pre = [f"s_waitcnt vmcnt({n}) lgkmcnt(0)", "s_barrier"] + setbuf(c+1)
            if last and c == 3:
                pre = ["s_waitcnt lgkmcnt(0)", "s_barrier"]
            M = []
            for db in range(4):
                for b in range(2):
                    cc = "0" if (c == 0 and s == 0) else QACC(b, db)
                    M.append(f"v_mfma_f32_32x32x16_bf16 {QACC(b,db)}, {ar(128+16*p+4*db)}, {ar(64*(c&1)+32*b+4*s)}, {cc}")
            F = []
            if not last: F += [(i, t) for i, t in enumerate(wreads(c, s+1))]
            elif c < 3: F += [(i, t) for i, t in enumerate(wreads(c+1, 0))]
            ext = []
            if s > 0 and c + 2 <= 3:
                ext += [(t, f"B{c+2}") for t in bload(c+2, s-1)]
            if last and c == 0:
                for g in wdma(3): ext += [(t, "W3") for t in g]
            if last and c == 1:
                for g in kvdma(65536 + KE, f"s{S_K}"): ext += [(t, "KV2") for t in g]
            if c == 0 and s in (1, 3, 5, 6) and not LATE:
                b_, o_ = kvlist[(1, 3, 5, 6).index(s)]
                for g in kvdma(b_, o_): ext += [(t, "KV0") for t in g]
            if LATE:
                pre_ext = []
                if c == 0 and s < 4:
                    pre_ext += [(t, "B1") for t in bload(1, 2*s) + bload(1, 2*s+1)]
                if c == 0 and s in (4, 5):
                    for g in wdma(2)[4*(s-4):4*(s-4)+4]: pre_ext += [(t, "W2") for t in g]
                if c == 1:
                    for g in k2.g2_wloads(s >> 1)[2*(s & 1):2*(s & 1)+2]: pre_ext += [(t, "G") for t in g]
                if c == 2:
                    for g in k2.g2_bloads(s >> 1)[4*(s & 1):4*(s & 1)+4]: pre_ext += [(t, "G") for t in g]
                if c == 3 and s == 0:
                    for g in k2.g2_xloads(SRD_XN): pre_ext += [(t, "G") for t in g]
                ext = pre_ext + ext
            for t in pre: A(t)
            if g2 and last and c == 1 and not LATE:
                A(k2.g2_signal()); vm.issue("SIG")
            for k, (t, tag) in enumerate(ext):
                g = min(7, k*8 // max(len(ext), 1))
                F.append((g, t))
                if t.startswith("buffer_"): vm.issue(tag)
            interleave(A, M, F)
            if last and c + 2 <= 3:
                for t in bload(c+2, 7): A(t); vm.issue(f"B{c+2}")
    if LATE:
        A(f"s_waitcnt vmcnt({vm.cnt(['G'])})")
        A("s_barrier")
        st(6)
        for t in k2.g2_wreads(0): A(t)
        for c in range(4):
            nx = k2.g2_wreads(c+1) if c < 3 else []
            for s in range(8):
                for t in nx[2*s:2*s+2]: A(t)
                A(f"s_waitcnt lgkmcnt({15 if c < 3 else 14 - 2*s})")
                A(k2.g2_mfma(c, s))
        A("s_barrier")
        for b_, o_ in kvlist: emit_list(kvdma(b_, o_), "KV0")
        k2.g2_epilogue(A, vm)
    st(2)
    A("v_and_b32 v11, 63, v0")
    A("v_lshlrev_b32 v2, 4, v11")
    A(f"s_lshl_b32 s{S_TMP}, s{S_W}, 13")
    A(f"s_add_u32 s{S_TMP2}, s{S_TMP}, {LDS_X}")
    A(f"v_add_u32 v{V_QLA}, s{S_TMP2}, v2")
    A(f"s_add_u32 s{S_TMP2}, s{S_TMP}, 98304")
    A(f"v_add_u32 v4, s{S_TMP2}, v2")
    A(f"v_xor_b32 v5, 0x2000, v4")
    A(f"s_lshl_b32 s{S_TMP2}, {wgid}, 15"); A(f"s_add_u32 s{S_TMP2}, s{S_TMP2}, s{S_TMP}")
    A(f"s_mov_b32 s{S_A}, s{S_TMP2}")
    for r in range(4): A(f"v_mov_b32 v{S0+r}, 0")
    A("s_nop 1")
    Z = [f"v_mfma_f32_32x32x16_bf16 {ar(16*i,16)}, {vr(S0)}, {vr(S0)}, 0" for i in range(16)]
    F = []
    def cv(dst, b, f):
        db, t = f >> 1, f & 1
        return [f"v_cvt_pk_bf16_f32 v{dst + 4*f + r}, v{128 + 64*b + 16*db + 8*t + 2*r}, v{128 + 64*b + 16*db + 8*t + 2*r + 1}" for r in range(4)]
    g = 2
    for f in range(8):
        for t in cv(Q0, 0, f): F.append((g, t))
        F.append((g, f"ds_write_b128 v4, {vr(Q0+4*f)} offset:{f*1024}"))
        g += (f & 1) ^ 1 if False else 0
        if f & 1: g += 1
    for f in range(8):
        for t in cv(Q1, 1, f): F.append((g, t))
        F.append((g, f"ds_write_b128 v{V_QLA}, {vr(Q1+4*f)} offset:{f*1024}"))
        if f & 1: g += 1
    for f in range(8):
        F.append((g + f//2, f"buffer_store_dwordx4 {vr(Q0+4*f)}, v2, s[{SRD_QS}:{SRD_QS+3}], s{S_A} offen offset:{(f&3)*1024}" if f < 4 else
                  f"buffer_store_dwordx4 {vr(Q0+4*f)}, v3, s[{SRD_QS}:{SRD_QS+3}], s{S_B} offen offset:{(f&3)*1024}"))
    F = [(a_, t.replace("v3, s[56:59], s34", "v2, s[56:59], s34")) for a_, t in F]
    A(f"s_add_u32 s{S_B}, s{S_A}, 4096")
    interleave(A, Z, F)
    for _ in range(8): vm.issue("QS")
    A(f"s_and_b32 s{S_TMP}, s{S_W}, 1"); A(f"s_lshl_b32 s{S_TMP}, s{S_TMP}, 13")
    A(f"v_add_u32 v{V_Y}, s{S_TMP}, v2")
    A(f"v_add_u32 v{V_X}, 0x10000, v{V_Y}")
    A(f"s_add_u32 s{S_MX}, s{S_W4K}, 0x10000")
    A(f"s_add_u32 s{S_KB}, s{S_K}, 0x8000"); A(f"s_add_u32 s{S_VA}, s{S_K}, 0x4000")
    A(f"s_add_u32 s{S_VP}, s{S_K}, 0xc000")
    A(f"s_waitcnt vmcnt({vm.cnt(['KV0'])}) lgkmcnt(0)" if LATE else "s_waitcnt lgkmcnt(0)")
    A("s_barrier")
    for f in range(8): A(f"ds_read_b128 {vr(Q1+4*f)}, v5 offset:{f*1024}")
    for s in range(8): A(f"ds_read_b128 {vr(KF+4*s)}, v{V_Y} offset:{KE+s*1024}")
    A("v_and_b32 v11, 31, v11"); A("v_bfe_u32 v12, v2, 9, 1")
    A("v_lshlrev_b32 v12, 2, v12"); A("v_sub_u32 v11, v11, v12")
    A(f"v_mov_b32 v12, {NEG}")
    A(f"s_cmp_lt_u32 s{S_W}, 2"); A(f"s_cselect_b32 s{S_A}, -1, 0"); A(f"s_cselect_b32 s{S_B}, {NEG}, 0"); A(f"s_cselect_b32 s{S_D}, 0, -1")
    A(f"s_cmp_eq_u32 s{S_W}, 1"); A(f"s_cselect_b32 s{S_TMP}, {NEG}, 0")
    A(f"s_cmp_eq_u32 s{S_W}, 2"); A(f"s_cselect_b32 s{S_TMP2}, 0, {NEG}")
    for r in range(16):
        key = 16*((r >> 2) & 1) + 8*(r >> 3) + (r & 3)
        A(f"v_cmp_gt_i32 vcc, {key}, v11")
        A(f"v_mov_b32 v{BA1+r}, s{S_TMP}")
        A(f"v_mov_b32 v{BB1+r}, s{S_TMP2}")
        A(f"v_cndmask_b32 v13, 0, v12, vcc")
        A(f"v_and_b32 v{BA0+r}, s{S_A}, v13")
        A(f"v_and_b32 v13, s{S_D}, v13")
        A(f"v_or_b32 v{BB0+r}, s{S_B}, v13")
    A(f"s_cmp_eq_u32 s{S_J}, 0"); A(f"s_cselect_b32 s{S_A}, -1, 0")
    for r in range(16):
        A(f"v_and_b32 v{S0+r}, s{S_A}, v{BA0+r}")
        A(f"v_and_b32 v{S1+r}, s{S_A}, v{BA1+r}")
    for r in range(8, 16): A(f"v_mov_b32 v{r}, 0")
    A(f"s_waitcnt vmcnt({vm.cnt(['G2S'])}) lgkmcnt(0)" if LATE else "s_waitcnt lgkmcnt(0)")
    A("s_barrier")
    if LATE: A(k2.g2_signal())
    st(3)
    step(A, 1, vr(S0,16), vr(S1,16), None, None, None, L0S, None, rdV1=False, entry=[], nprev=0,
         salu={31: toggle()}, nops={15: ["s_nop 7", "s_nop 7"]})
    lSP, lSL, lSR = A.newlabel("SP"), A.newlabel("SL"), A.newlabel("SR")
    A(f"s_cmp_eq_u32 s{S_J}, 0"); A(f"s_cbranch_scc1 {lSL}")
    A(f"s_sub_u32 s{S_CNT}, s{S_J}, 1")
    A(f"s_cmp_eq_u32 s{S_CNT}, 0"); A(f"s_cbranch_scc1 {lSP}")
    A.label(lSR)
    pair(A, "SR")
    A(f"s_sub_u32 s{S_CNT}, s{S_CNT}, 1"); A(f"s_cmp_lg_u32 s{S_CNT}, 0"); A(f"s_cbranch_scc1 {lSR}")
    A.label(lSP)
    pair(A, "SP")
    A.label(lSL)
    pair(A, "SL")
    st(4)
    if g3 == 2:
        g3v2.scalars(A, wgid, S_W)
        g3v2.wd_voffset(A, S_W, V_DMA, E[0], E[0]+1)
        A(f"v_add_f32 v{L0S}, v{L0S}, v{L0S+1}"); A(f"v_add_f32 v{L1S}, v{L1S}, v{L1S+1}")
        for t_ in g3v2.poll_loads(L0S+1, L1S+1): A(t_)
    A(f"s_sub_u32 s{S_CNT}, 14, s{S_J}")
    lLR = A.newlabel("LR")
    A.label(lLR)
    pair(A, "LR")
    A(f"s_sub_u32 s{S_CNT}, s{S_CNT}, 1"); A(f"s_cmp_lg_u32 s{S_CNT}, 0"); A(f"s_cbranch_scc1 {lLR}")
    vm = VM()
    if g3 == 2:
        def put(h, c, gaps):
            for g_, grp in zip(gaps, g3v2.wdma(c, S_W4K)):
                h.setdefault(g_, []).extend(grp); vm.issue(f"W{c}")
        h0, h1, h2 = {16: g3v2.check_hook(A, ool, L0S+1, L1S+1)}, {}, {}
        TOUCH = "notouch" not in X
        if TOUCH:
            for g_, L_ in g3v2.xtouch(wgid, S_W, V_DMA, L1S+1).items(): h0.setdefault(g_, []).extend(L_)
            vm.issue("TOUCH")
        put(h0, 0, (17, 19, 21, 23) if not TOUCH else (23, 24, 25, 26)); put(h0, 1, (25, 27, 29, 31) if not TOUCH else (27, 28, 29, 31))
        put(h1, 2, (1, 3, 5, 7)); put(h1, 3, (9, 11, 13, 17))
        put(h2, 4, (1, 3, 5, 7))
        pair(A, "LP", hook0=h0, hook=h1, nprev1=4+8+7+TOUCH)
        pair(A, "LL", hook0=h2, extra_prev=8+8+4+TOUCH)
    else:
        pair(A, "LP", nprev1=4)
        pair(A, "LL")
    st(5)
    if g3 == 2:
        pass
    elif g3:
        A(f"s_and_b32 s{k2.T0}, {wgid}, 7"); A(f"s_lshr_b32 s{k2.T2}, {wgid}, 3"); A(f"s_and_b32 s{k2.T2}, s{k2.T2}, 3")
        A(f"s_lshl_b32 s{k2.T2}, s{k2.T2}, 3"); A(f"s_add_u32 s{k2.T0}, s{k2.T0}, s{k2.T2}"); A(f"s_lshl_b32 s{k2.T0}, s{k2.T0}, 3")
        A("v_mov_b32 v60, 0")
        A(f"buffer_load_dword v60, v60, s[{k2.SRD_DBG}:{k2.SRD_DBG+3}], s{k2.T0} offen sc1")
    A("s_barrier")
    A(f"v_and_b32 v2, 0x3ff, v{V_Y}")
    A(f"s_lshl_b32 s{S_TMP}, s{S_W}, {14 if g3 == 2 else 15}")
    A(f"v_add_u32 v3, s{S_TMP}, v2")
    A(f"v_xor_b32 v1, {hex(0x4000 if g3 == 2 else 0x8000)}, v3")
    A(f"v_lshrrev_b32 v4, 1, v2")
    A(f"s_lshl_b32 s{S_TMP}, s{S_W}, 9"); A(f"s_add_u32 s{S_TMP}, s{S_TMP}, {LDS_X}")
    A(f"v_add_u32 v4, s{S_TMP}, v4")
    A(f"v_xor_b32 v5, 0x200, v4")
    if g3 == 2:
        A(f"v_mov_b32 v6, v{L1S}"); A(f"v_add_f32 v7, v{L1L}, v{L1L+1}")
        A(f"v_add_f32 v{L0L}, v{L0L}, v{L0L+1}")
    else:
        A(f"v_add_f32 v6, v{L1S}, v{L1S+1}"); A(f"v_add_f32 v7, v{L1L}, v{L1L+1}")
        A(f"v_add_f32 v{L0S}, v{L0S}, v{L0S+1}"); A(f"v_add_f32 v{L0L}, v{L0L}, v{L0L+1}")
    A("ds_write_b64 v4, v[6:7]")
    A("s_nop 7")
    for i in range(16):
        A(f"ds_write_b128 v3, {ar(O_S+64+4*i)} offset:{i*1024}")
        for r in range(4): A(f"v_accvgpr_read_b32 v{128+4*i+r}, a{O_S+4*i+r}")
        if g3 == 2 and False:
            for r in range(4): A(f"v_accvgpr_read_b32 v{192+4*i+r}, a{O_L+4*i+r}")
    for i in range(16):
        if g3 != 2: A(f"ds_write_b128 v3, {ar(O_L+64+4*i)} offset:{16384+i*1024}")
        for r in range(4): A(f"v_accvgpr_read_b32 v{192+4*i+r}, a{O_L+4*i+r}")
    A("v_lshrrev_b32 v11, 4, v2")
    A("v_and_b32 v14, 15, v11"); A("v_lshrrev_b32 v19, 5, v11"); A("v_bfe_u32 v18, v11, 4, 1")
    A("v_lshl_add_u32 v20, v19, 4, v14"); A("v_lshlrev_b32 v20, 4, v20")
    A("v_lshl_add_u32 v21, v18, 17, v20")
    V_CS, V_CL = 16, 17
    A(f"s_lshl_b32 s{S_TMP}, s{S_QBS}, 18"); A(f"v_add_u32 v{V_CS}, s{S_TMP}, v21")
    A(f"s_lshl_b32 s{S_TMP}, s{S_QBL}, 18"); A(f"v_add_u32 v{V_CL}, s{S_TMP}, v21")
    if g3 == 2: g3v2.b_voffsets(A, 11, 18, 19)
    A("s_waitcnt lgkmcnt(0)")
    st(30)
    if g3 == 2:
        for t in g3v2.st_loads():
            A(t)
            if t.startswith("buffer_"): vm.issue("ST")
    A("s_barrier")
    A("ds_read_b64 v[6:7], v5")
    PT = 18
    def prd(which, grp, dst):
        return [f"ds_read_b128 {vr(dst+4*h)}, v1 offset:{(0 if g3 == 2 else which*16384) + (2*grp+h)*1024}" for h in range(2)]
    PB = [96, 104, 112, 120]
    for gi in range(4):
        for t in prd(0, gi, PB[gi]): A(t)
    def half_sum(x, y, op="v_add_f32"):
        A(f"v_mov_b32 v{y}, v{x}"); A("s_nop 1")
        A(f"v_permlane32_swap_b32 v{x}, v{y}"); A("s_nop 1")
        A(f"{op} v{x}, v{x}, v{y}")
    A("s_waitcnt lgkmcnt(8)")
    A(f"v_add_f32 v{L0S}, v{L0S}, v6"); A(f"v_add_f32 v{L0L}, v{L0L}, v7")
    half_sum(L0S, 9); half_sum(L0L, 13)
    lfS, lfL, lrS, lrL = A.newlabel("FS"), A.newlabel("FL"), A.newlabel("RS"), A.newlabel("RL")
    def rangechk(x, mask):
        A(f"v_mov_b32 v9, 0x2b800000")
        A(f"v_cmp_ge_f32 vcc, v{x}, v9")
        A(f"v_mov_b32 v9, 0x53800000")
        A(f"v_cmp_le_f32 s[50:51], v{x}, v9")
        A("s_nop 1")
        A("s_and_b64 vcc, vcc, s[50:51]")
        A("s_cmp_eq_u64 vcc, -1")
        A(f"s_cselect_b32 s{mask}, 0, 1")
    rangechk(L0S, S_A); rangechk(L0L, S_B)
    A(f"v_rcp_f32 v{L0S}, v{L0S}"); A(f"v_rcp_f32 v{L0L}, v{L0L}")
    A("s_nop 0")
    A(f"v_mov_b32 v9, v{L0S}"); A(f"v_mov_b32 v13, v{L0L}")
    TB = [50, 54]
    for n in range(16):
        which, grp = n >> 3, n & 7
        own = (128 if which == 0 else 192) + 8*grp
        pb = PB[n & 3]
        x = L0S if which == 0 else L0L
        outstanding = min(15 - n, 3) * 2
        if n == 0: st(31)
        if n == 8: st(32)
        if g3 == 2:
            if n < 5: A(f"s_waitcnt lgkmcnt({min(7 - n, 3) * 2})")
            elif n == 5: A("s_waitcnt lgkmcnt(0)"); A("s_barrier")
            elif n == 8:
                A("s_waitcnt lgkmcnt(0)"); A("s_barrier")
                for gi in range(4):
                    for t in prd(1, gi, PB[gi]): A(t)
            if n >= 8:
                for s_ in (2*n, 2*n+1): A(g3v2.b_load(s_)); vm.issue(f"B{s_}")
                A(f"s_waitcnt lgkmcnt({outstanding})")
            else:
                for s_ in (2*n, 2*n+1): A(g3v2.b_load(s_)); vm.issue(f"B{s_}")
        else:
            A(f"s_waitcnt lgkmcnt({outstanding})")
        for h in range(4): A(f"v_pk_add_f32 {vr(own+2*h,2)}, {vr(own+2*h,2)}, {vr(pb+2*h,2)}")
        if n + 4 < 16 and not (g3 == 2 and 4 <= n < 8):
            for t in prd((n+4) >> 3, (n+4) & 7, pb): A(t)
        if g3 == 2 and 5 <= n < 8:
            for i in {5: range(0, 6), 6: range(6, 11), 7: range(11, 16)}[n]:
                A(f"ds_write_b128 v3, {ar(O_L+64+4*i)} offset:{i*1024}")
        for h in range(4): A(f"v_pk_mul_f32 {vr(own+2*h,2)}, {vr(own+2*h,2)}, {vr(x,2)}")
        tb = TB[n & 1]
        for h in range(4): A(f"v_cvt_pk_bf16_f32 v{tb+h}, v{own+2*h}, v{own+2*h+1}")
        db, t = grp >> 1, grp & 1
        vc = V_CS if which == 0 else V_CL
        A(f"buffer_store_dwordx4 {vr(tb)}, v{vc}, s[16:19], s{S_CSO} offen offset:{db*1024+t*512}"); vm.issue("CTX")
    st(33)
    if fallback:
        A(f"s_cmp_eq_u32 s{S_B}, 0"); A(f"s_cbranch_scc0 {lfL}")
        A.label(lrL)
        A(f"s_cmp_eq_u32 s{S_A}, 0"); A(f"s_cbranch_scc0 {lfS}")
        A.label(lrS)
        def store_block(vc, rd):
            cnt = 0
            for db in range(4):
                for t in range(2):
                    b = 232 + 12*(cnt & 1); cnt += 1
                    rd(db, t, b)
                    for r in range(4): A(f"v_cvt_pk_bf16_f32 v{b+8+r}, v{b+2*r}, v{b+2*r+1}")
                    A(f"buffer_store_dwordx4 {vr(b+8)}, v{vc}, s[16:19], s{S_CSO} offen offset:{db*1024+t*512}")
        def fallback_code(vc, qb, reload_q):
            FO, FK, FV = 164, 192, 224
            FS, FP, TRI = 32, 48, 128
            m, l, al, t0, t1, ad, l16 = 228, 229, 230, 231, 10, 11, 12
            S_KB_, S_O1, S_O2 = 52, 53, 54
            A("s_waitcnt vmcnt(0)")
            A(f"v_and_b32 v{l16}, 0x3ff, v{V_Y}")
            if reload_q:
                A(f"s_lshl_b32 s{S_O1}, {wgid}, 15"); A(f"s_lshl_b32 s{S_O2}, s{S_W}, 13"); A(f"s_add_u32 s{S_O1}, s{S_O1}, s{S_O2}")
                A(f"s_add_u32 s{S_O2}, s{S_O1}, 4096")
                for f in range(8):
                    A(f"buffer_load_dwordx4 {vr(Q0+4*f)}, v{l16}, s[{SRD_QS}:{SRD_QS+3}], s{S_O1 if f < 4 else S_O2} offen offset:{(f&3)*1024} sc1")
            A(f"v_lshrrev_b32 v{t0}, 4, v{l16}"); A(f"v_lshrrev_b32 v{t1}, 5, v{t0}"); A(f"v_and_b32 v{t0}, 31, v{t0}")
            A(f"v_lshlrev_b32 v{t1}, 2, v{t1}"); A(f"v_sub_u32 v{t0}, v{t0}, v{t1}"); A(f"v_mov_b32 v{t1}, {NEG}")
            for r in range(16):
                key = 16*((r >> 2) & 1) + 8*(r >> 3) + (r & 3)
                A(f"v_cmp_gt_i32 vcc, {key}, v{t0}"); A("s_nop 1")
                A(f"v_cndmask_b32 v{TRI+r}, 0, v{t1}, vcc")
            for r in range(64): A(f"v_mov_b32 v{FO+r}, 0")
            A(f"v_mov_b32 v{m}, {NEG}"); A(f"v_mov_b32 v{l}, 0")
            A(f"v_add_u32 v{ad}, 4096, v{l16}")
            A(f"s_mov_b32 s{S_KB_}, 0")
            A("s_waitcnt vmcnt(0)")
            lp, ld_, ln_ = A.newlabel("FP"), A.newlabel("FD"), A.newlabel("FN")
            A.label(lp)
            A(f"s_lshr_b32 s{S_O1}, s{S_KB_}, 1"); A(f"s_lshl_b32 s{S_O1}, s{S_O1}, 15")
            A(f"s_and_b32 s{S_O2}, s{S_KB_}, 1"); A(f"s_lshl_b32 s{S_O2}, s{S_O2}, 13")
            A(f"s_add_u32 s{S_O1}, s{S_O1}, s{S_O2}")
            A(f"s_add_u32 s{S_O2}, s{S_O1}, 16384")
            for s_ in range(8):
                A(f"buffer_load_dwordx4 {ar(FK+4*s_)}, v{l16 if s_ < 4 else ad}, s[4:7], s{S_O1} offen offset:{(s_&3)*1024}")
            for s_ in range(8):
                A(f"buffer_load_dwordx4 {ar(FV+4*s_)}, v{l16 if s_ < 4 else ad}, s[4:7], s{S_O2} offen offset:{(s_&3)*1024}")
            A("s_waitcnt vmcnt(8)")
            A(f"s_cmp_eq_u32 s{S_KB_}, s{qb}")
            A(f"s_cbranch_scc1 {ld_}")
            A(f"v_mfma_f32_32x32x16_bf16 {vr(FS,16)}, {ar(FK)}, {vr(Q0)}, 0")
            A(f"s_branch {ln_}")
            A.label(ld_)
            A(f"v_mfma_f32_32x32x16_bf16 {vr(FS,16)}, {ar(FK)}, {vr(Q0)}, {vr(TRI,16)}")
            A.label(ln_)
            for s_ in range(1, 8):
                A(f"v_mfma_f32_32x32x16_bf16 {vr(FS,16)}, {ar(FK+4*s_)}, {vr(Q0+4*s_)}, {vr(FS,16)}")
            A("s_nop 7"); A("s_nop 7")
            A(f"v_max_f32 v{t0}, v{FS}, v{FS+1}")
            for r in range(2, 16, 2): A(f"v_max3_f32 v{t0}, v{t0}, v{FS+r}, v{FS+r+1}")
            half_sum(t0, t1, "v_max_f32")
            A(f"v_max_f32 v{t0}, v{t0}, v{m}")
            A(f"v_sub_f32 v{al}, v{m}, v{t0}")
            A(f"v_exp_f32 v{al}, v{al}")
            A(f"v_mov_b32 v{m}, v{t0}")
            for r in range(16): A(f"v_sub_f32 v{FS+r}, v{FS+r}, v{m}")
            for r in range(16): A(f"v_exp_f32 v{FS+r}, v{FS+r}")
            A(f"v_mul_f32 v{l}, v{l}, v{al}")
            for r in range(16): A(f"v_add_f32 v{l}, v{l}, v{FS+r}")
            for r in range(8): A(f"v_cvt_pk_bf16_f32 v{FP+r}, v{FS+2*r}, v{FS+2*r+1}")
            for r in range(64): A(f"v_mul_f32 v{FO+r}, v{FO+r}, v{al}")
            A("s_waitcnt vmcnt(0)")
            A("s_nop 1")
            for t in range(2):
                for db in range(4):
                    A(f"v_mfma_f32_32x32x16_bf16 {vr(FO+16*db,16)}, {ar(FV+4*(t*4+db))}, {vr(FP+4*t)}, {vr(FO+16*db,16)}")
            A("s_nop 7"); A("s_nop 7")
            A(f"s_add_u32 s{S_KB_}, s{S_KB_}, 1")
            A(f"s_cmp_le_u32 s{S_KB_}, s{qb}")
            A(f"s_cbranch_scc1 {lp}")
            half_sum(l, t1)
            A(f"v_rcp_f32 v{l}, v{l}")
            A("s_nop 0")
            def rd(db, t, b):
                for r in range(8): A(f"v_mul_f32 v{b+r}, v{FO+16*db+8*t+r}, v{l}")
            store_block(vc, rd)
        le = A.newlabel("AE")
        A(f"s_branch {le}")
        A.label(lfL); fallback_code(V_CL, S_QBL, False); A(f"s_branch {lrL}")
        A.label(lfS); fallback_code(V_CS, S_QBS, True); A(f"s_branch {lrS}")
        A.label(le)
    if g3 == 2:
        lx = A.newlabel("G3X")
        A(f"s_cmp_ge_u32 {wgid}, 224"); A(f"s_cbranch_scc1 {lx}")
        st(7)
        g3v2.main(A, vm, S_W, S_W4K, st)
        le2 = A.newlabel("G3E")
        A(f"s_branch {le2}")
        for t_ in ool:
            if t_.endswith(":"): A.label(t_[:-1])
            else: A(t_)
        A.label(le2)
        if os.environ.get("FILL", "1") == "1":
            import fin2
            lf = A.newlabel("FILLX")
            A(f"s_branch {lf}")
            A.label(lx)
            fin2.emit_fill(A, wgid, S_W)
            A.label(lf)
        else:
            A.label(lx)
    elif g3:
        from bpath import emit_g3
        lx, lsp, lok, lp = A.newlabel("G3X"), A.newlabel("SPIN"), A.newlabel("OK"), A.newlabel("SP")
        A(f"s_cmp_ge_u32 {wgid}, 224"); A(f"s_cbranch_scc1 {lx}")
        A("s_waitcnt vmcnt(16)")
        A(f"v_readfirstlane_b32 s{k2.T2}, v60")
        A(f"s_cmp_ge_u32 s{k2.T2}, 8"); A(f"s_cbranch_scc1 {lok}")
        A(f"s_mov_b32 s{k2.T3}, 65536")
        A.label(lp)
        A("v_mov_b32 v60, 0")
        A(f"buffer_load_dword v60, v60, s[{k2.SRD_DBG}:{k2.SRD_DBG+3}], s{k2.T0} offen sc1")
        A("s_waitcnt vmcnt(0)")
        A(f"v_readfirstlane_b32 s{k2.T2}, v60")
        A(f"s_cmp_ge_u32 s{k2.T2}, 8"); A(f"s_cbranch_scc1 {lok}")
        A("s_sleep 8")
        A(f"s_sub_u32 s{k2.T3}, s{k2.T3}, 1"); A(f"s_cmp_lg_u32 s{k2.T3}, 0"); A(f"s_cbranch_scc1 {lp}")
        A.label(lok)
        A("v_mbcnt_lo_u32_b32 v0, -1, 0"); A("v_mbcnt_hi_u32_b32 v0, -1, v0")
        A(f"s_lshl_b32 s{k2.T2}, s{S_W}, 6"); A(f"v_add_u32 v0, s{k2.T2}, v0")
        A("s_barrier")
        st(7)
        emit_g3(A, wgid, sc1=True, stamp=st)
        A.label(lx)
```

```python
from common import *
from bpath import vr, ar, f2h
import math, os

WS_P2 = 0x8000000
US = 5
NU = 23
D = int(os.environ.get("FD", "4"))

def emit_fill(A, wgid, S_W):
    lp = A.newlabel("FILL")
    A(f"s_load_dwordx2 s[8:9], s[0:1], {KA_WS}")
    A("v_mbcnt_lo_u32_b32 v1, -1, 0"); A("v_mbcnt_hi_u32_b32 v1, -1, v1"); A("v_lshlrev_b32 v1, 4, v1")
    A(f"s_sub_u32 s10, {wgid}, 224"); A("s_lshl_b32 s10, s10, 2"); A(f"s_add_u32 s10, s10, s{S_W}"); A("s_mul_i32 s12, s10, 81920")
    for r in range(4): A(f"v_mov_b32 v{4+r}, -1")
    A("s_mov_b32 s13, 20")
    A("s_waitcnt lgkmcnt(0)")
    srd_off(A, 4, 8, WS_P2, 64*163840)
    A.label(lp)
    for q in range(4): A(f"buffer_store_dwordx4 v[4:7], v1, s[4:7], s12 offen offset:{q*1024} sc1")
    A("s_add_u32 s12, s12, 4096"); A("s_sub_u32 s13, s13, 1"); A("s_cmp_lg_u32 s13, 0"); A(f"s_cbranch_scc1 {lp}")

def emit_final2(A, wgid="s2", sc1=False, stamp=None, npoll=1 << 14):
    st = stamp if stamp else (lambda k: None)
    C = " sc1" if sc1 else ""
    load_ptr(A, 40, KA_WO); load_ptr(A, 42, KA_WS); load_ptr(A, 44, KA_W4); load_ptr(A, 46, KA_X); load_ptr(A, 48, KA_OUT)
    S_W, S_TB, S_NB, S_T, S_SW, S_SB, S_M0, S_KQ = 24, 25, 26, 27, 28, 29, 30, 31
    S_PT, S_CNT = 35, 36
    SRD_X1, SRD_P, SRD_DBG, SRD_X = 20, 52, 56, 76
    BRING, AF = 0, 128
    ACC, SAVE, RX = 64, 128, 144
    V_R = 24
    A("v_lshrrev_b32 v10, 6, v0")
    A("v_and_b32 v11, 63, v0")
    A(f"v_readfirstlane_b32 s{S_W}, v10")
    MAP = int(os.environ.get("FMAP", "0"))
    if MAP == 0:
        A(f"s_and_b32 s{S_KQ}, {wgid}, 3")
        A(f"s_lshr_b32 s{S_TB}, {wgid}, 2"); A(f"s_and_b32 s{S_TB}, s{S_TB}, 1"); A(f"s_lshl_b32 s{S_TB}, s{S_TB}, 3")
        A(f"s_lshr_b32 s{S_T}, {wgid}, 5"); A(f"s_add_u32 s{S_TB}, s{S_TB}, s{S_T}")
        A(f"s_lshr_b32 s{S_NB}, {wgid}, 3"); A(f"s_and_b32 s{S_NB}, s{S_NB}, 3")
    else:
        A(f"s_lshr_b32 s{S_KQ}, {wgid}, 3"); A(f"s_and_b32 s{S_KQ}, s{S_KQ}, 3")
        if MAP == 1:
            A(f"s_and_b32 s{S_TB}, {wgid}, 7"); A(f"s_lshl_b32 s{S_TB}, s{S_TB}, 1")
            A(f"s_lshr_b32 s{S_T}, {wgid}, 5"); A(f"s_and_b32 s{S_T}, s{S_T}, 1"); A(f"s_add_u32 s{S_TB}, s{S_TB}, s{S_T}")
            A(f"s_lshr_b32 s{S_NB}, {wgid}, 6")
        else:
            A(f"s_lshr_b32 s{S_TB}, {wgid}, 1"); A(f"s_and_b32 s{S_TB}, s{S_TB}, 3"); A(f"s_lshl_b32 s{S_TB}, s{S_TB}, 2")
            A(f"s_lshr_b32 s{S_T}, {wgid}, 5"); A(f"s_and_b32 s{S_T}, s{S_T}, 3"); A(f"s_add_u32 s{S_TB}, s{S_TB}, s{S_T}")
            A(f"s_and_b32 s{S_NB}, {wgid}, 1"); A(f"s_lshl_b32 s{S_NB}, s{S_NB}, 1")
            A(f"s_lshr_b32 s{S_T}, {wgid}, 7"); A(f"s_add_u32 s{S_NB}, s{S_NB}, s{S_T}")
    A("v_and_b32 v12, 15, v11")
    A("v_lshrrev_b32 v13, 5, v11")
    A("v_lshlrev_b32 v14, 8, v13")
    A("v_lshl_add_u32 v14, v12, 4, v14")
    A("v_bfe_u32 v15, v11, 4, 1")
    A(f"s_lshl_b32 s{S_T}, s{S_TB}, 3"); A(f"s_lshl_b32 s32, s{S_W}, 1"); A(f"s_add_u32 s{S_T}, s{S_T}, s32")
    A(f"v_add_u32 v15, s{S_T}, v15")
    A("v_lshl_add_u32 v2, v15, 17, v14")
    A("s_mov_b32 s32, 57344")
    A("v_mul_lo_u32 v4, v15, s32")
    A("v_add_u32 v4, v4, v14")
    A("v_lshl_add_u32 v5, v15, 14, v14")
    A(f"s_cmp_ge_u32 s{S_KQ}, 2")
    A("s_cselect_b64 vcc, -1, 0")
    A("v_cndmask_b32 v6, v2, v4, vcc")
    A("v_lshrrev_b32 v14, 3, v11")
    A("v_lshlrev_b32 v14, 10, v14")
    A("v_bfe_u32 v15, v11, 4, 1")
    A("v_lshlrev_b32 v15, 2, v15")
    A("v_and_b32 v16, 7, v11")
    A("v_xor_b32 v15, v15, v16")
    A("v_lshl_add_u32 v16, v15, 4, v14")
    A(f"s_and_b32 s32, s{S_W}, 1"); A(f"s_lshr_b32 s33, s{S_W}, 1")
    A("s_lshl_b32 s34, s32, 7"); A(f"s_lshl_b32 s{S_T}, s33, 14"); A(f"s_add_u32 s{S_T}, s{S_T}, s34")
    A(f"v_add_u32 v16, s{S_T}, v16")
    A("v_add_u32 v17, 7168, v16")
    A(f"s_lshl_b32 s{S_M0}, s32, 12"); A("s_lshl_b32 s33, s33, 11"); A(f"s_add_u32 s{S_M0}, s{S_M0}, s33")
    A("s_waitcnt lgkmcnt(0)")
    A(f"s_lshl_b32 s{S_T}, s{S_NB}, 8")
    A(f"s_add_u32 s4, s40, s{S_T}"); A("s_addc_u32 s5, s41, 0"); A(f"s_sub_u32 s6, 0x400000, s{S_T}"); A("s_mov_b32 s7, 0x00020000")
    A(f"s_add_u32 s12, s44, s{S_T}"); A("s_addc_u32 s13, s45, 0"); A(f"s_sub_u32 s14, {1792*1024}, s{S_T}"); A("s_mov_b32 s15, 0x00020000")
    srd_off(A, 8, 42, WS_CTX, 0x1000000)
    srd_off(A, 16, 42, WS_H3F, 128*57344)
    A(f"s_mul_i32 s{S_T}, s{S_KQ}, 46")
    A(f"s_cmp_eq_u32 s{S_KQ}, 2"); A(f"s_cselect_b32 s{S_T}, 0, s{S_T}")
    A(f"s_cmp_eq_u32 s{S_KQ}, 3"); A(f"s_cselect_b32 s{S_T}, 10, s{S_T}")
    A(f"s_cmp_ge_u32 s{S_KQ}, 2")
    for k in range(8):
        A(f"s_mov_b32 s32, s{4+k}")
        A(f"s_cselect_b32 s{4+k}, s{12+k}, s{4+k}")
        A(f"s_cselect_b32 s{12+k}, s32, s{12+k}")
    A(f"s_lshl_b32 s{S_SW}, s{S_T}, 15")
    A(f"s_lshl_b32 s{S_SB}, s{S_T}, 10")
    def loads(u):
        sl = u & 7
        R = []
        if u == US:
            R.append(f"s_cmp_eq_u32 s{S_KQ}, 2")
            for k in range(8): R.append(f"s_cselect_b32 s{4+k}, s{12+k}, s{4+k}")
            R.append(f"s_cselect_b32 s{S_SW}, {92 << 15}, s{S_SW}")
            R.append(f"s_cselect_b32 s{S_SB}, {92 << 10}, s{S_SB}")
            R.append("s_cselect_b64 vcc, -1, 0")
            R.append("v_cndmask_b32 v6, v6, v2, vcc")
            R.append("s_nop 4")
        for k2 in range(2):
            R.append(f"s_add_u32 m0, s{S_M0}, {sl*16384 + k2*8192}")
            R.append(f"buffer_load_dwordx4 {ar(BRING + 16*sl + 8*k2)}, v6, s[8:11], s{S_SB} offen offset:{1024*k2}" + C)
            R.append(f"buffer_load_dwordx4 v16, s[4:7], s{S_SW} offen lds")
            R.append(f"buffer_load_dwordx4 {ar(BRING + 16*sl + 8*k2 + 4)}, v6, s[8:11], s{S_SB} offen offset:{1024*k2 + 512}" + C)
            R.append(f"buffer_load_dwordx4 v17, s[4:7], s{S_SW} offen offset:1024 lds")
            if os.environ.get("FHIT", "0") in ("0", "2"): R.append(f"s_add_u32 s{S_SW}, s{S_SW}, 32768")
        if os.environ.get("FHIT", "0") in ("0", "1"): R.append(f"s_add_u32 s{S_SB}, s{S_SB}, 2048")
        return R
    def afr(p, k2, t, i): return AF + 64*p + 32*k2 + 16*t + 4*i
    def reads(u):
        sl = u & 7; p = u & 1
        R = []
        for k2 in range(2):
            for t in range(2):
                for i in range(4):
                    for rd in range(2):
                        b = afr(p, k2, t, i) + 2*rd
                        off = (sl & 3)*16384 + k2*8192 + t*2048 + rd*1024
                        R.append(f"ds_read_b64_tr_b16 a[{b}:{b+1}], v{V_R + i + (4 if sl >= 4 else 0)} offset:{off}")
        return R
    P = int(os.environ.get("FP", "3"))
    issue, nxt = {}, P
    for u in range(NU):
        issue[u] = []
        while nxt < NU and nxt <= u + D and len(issue[u]) < 2:
            issue[u].append(nxt); nxt += 1
    def issued_before(u): return P + sum(len(issue[v]) for v in range(u))
    st(0)
    for u in range(P):
        for t in loads(u): A(t)
    A("v_lshrrev_b32 v15, 4, v11")
    A("v_lshrrev_b32 v20, 1, v15")
    A("v_lshlrev_b32 v20, 2, v20")
    A("v_lshrrev_b32 v21, 2, v12")
    A("v_add_u32 v20, v20, v21")
    A("v_and_b32 v15, 1, v15")
    A("v_lshlrev_b32 v15, 1, v15")
    A("v_and_b32 v21, 1, v12")
    A("v_add_u32 v15, v15, v21")
    A("v_bfe_u32 v21, v12, 3, 1")
    A("v_lshlrev_b32 v21, 2, v21")
    A("v_xor_b32 v15, v15, v21")
    A("v_lshlrev_b32 v15, 4, v15")
    A("v_lshl_add_u32 v8, v20, 7, v15")
    A("v_bfe_u32 v21, v12, 1, 1")
    A("v_lshl_add_u32 v8, v21, 3, v8")
    for i in range(4):
        A(f"s_add_u32 s32, s{S_KQ}, {i}")
        A("s_and_b32 s33, s32, 1"); A("s_lshl_b32 s33, s33, 6")
        A("s_lshr_b32 s32, s32, 1"); A("s_and_b32 s32, s32, 1"); A("s_lshl_b32 s32, s32, 12")
        A(f"v_xor_b32 v{V_R+i}, s33, v8")
        A(f"v_add_u32 v{V_R+i}, s32, v{V_R+i}")
        A(f"v_add_u32 v{V_R+4+i}, 0x10000, v{V_R+i}")
    srd_off(A, SRD_X1, 42, WS_X1F, 0x200000)
    srd_off(A, SRD_P, 42, WS_P2, 0x1400000)
    A(f"s_mov_b32 s{SRD_X}, s46"); A(f"s_mov_b32 s{SRD_X+1}, s47"); A(f"s_mov_b32 s{SRD_X+2}, 0x200000"); A(f"s_mov_b32 s{SRD_X+3}, 0x00020000")
    A(f"s_lshl_b32 s60, s{S_NB}, 2"); A(f"s_add_u32 s60, s60, s{S_KQ}")
    A("s_lshl_b32 s61, s60, 6")
    A("s_lshl_b32 s60, s60, 10")
    A(f"s_lshl_b32 s32, s{S_TB}, 7"); A(f"s_lshl_b32 s33, s{S_W}, 5"); A("s_add_u32 s32, s32, s33")
    A("v_and_b32 v20, 31, v11")
    A("v_add_u32 v20, s32, v20")
    A("v_lshlrev_b32 v23, 10, v20")
    A("v_lshl_add_u32 v23, v13, 4, v23")
    A(f"s_lshl_b32 s32, s{S_TB}, 2"); A(f"s_add_u32 s32, s32, s{S_NB}")
    A(f"s_mul_i32 s{S_PT}, s32, 163840")
    A(f"s_lshl_b32 s33, s{S_W}, 11")
    A("v_lshlrev_b32 v22, 4, v11"); A("v_add_u32 v22, s33, v22")
    PK, PK2 = 208, 232
    def pack(P0):
        return [f"v_cvt_pk_bf16_f32 v{P0+8*(i-1)+j}, v{ACC+16*i+2*j}, v{ACC+16*i+2*j+1}" for i in range(1, 4) for j in range(8)]
    def send(slot_expr_sgpr, P0, packed):
        R = []
        for i in range(1, 4):
            P = P0 + 8*(i-1)
            if not packed: R += [f"v_cvt_pk_bf16_f32 v{P+j}, v{ACC+16*i+2*j}, v{ACC+16*i+2*j+1}" for j in range(8)]
            R += [f"s_add_u32 s32, s{S_KQ}, {i}", "s_and_b32 s32, s32, 3", "s_mul_i32 s32, s32, 5",
                  f"s_add_u32 s32, s32, s{slot_expr_sgpr}", "s_lshl_b32 s32, s32, 13", f"s_add_u32 s32, s32, s{S_PT}"]
            for q in range(2):
                R.append(f"buffer_store_dwordx4 {vr(P+4*q)}, v22, s[{SRD_P}:{SRD_P+3}], s32 offen offset:{q*1024} sc1")
        return R
    for r in range(16): A(f"v_mov_b32 v{SAVE+r}, 0")
    A(f"s_cmp_ge_u32 s{S_KQ}, 2"); A(f"s_cselect_b32 s37, 1, 0"); A(f"s_add_u32 s37, s37, s{S_KQ}")
    A(f"s_waitcnt vmcnt({8*(P-1)})")
    A("s_barrier")
    st(1)
    for t in reads(0): A(t)
    for u in range(NU):
        if u == 12: st(2)
        p = u & 1; sl = u & 7
        rem = issued_before(u) - (u + 2)
        assert rem >= 0 or u + 1 >= NU
        if u + 1 < NU:
            if US < u and u + 1 < issued_before(US):
                la, lb = A.newlabel("WA"), A.newlabel("WB")
                A(f"s_cmp_eq_u32 s{S_KQ}, 2"); A(f"s_cbranch_scc1 {la}")
                A(f"s_waitcnt vmcnt({8*rem}) lgkmcnt(0)"); A(f"s_branch {lb}")
                A.label(la); A(f"s_waitcnt vmcnt({8*rem+6}) lgkmcnt(0)"); A.label(lb)
            else: A(f"s_waitcnt vmcnt({8*rem}) lgkmcnt(0)")
            A("s_barrier")
        else: A("s_waitcnt lgkmcnt(0)")
        if u == US:
            lsr = A.newlabel("SR")
            A(f"s_cmp_eq_u32 s{S_KQ}, 2"); A(f"s_cbranch_scc0 {lsr}")
            A("s_nop 7"); A("s_nop 7")
            for t in send(37, PK, False): A(t)
            A("s_mov_b32 s37, 2")
            for r in range(16): A(f"v_mov_b32 v{SAVE+r}, v{ACC+r}")
            for r in range(64): A(f"v_mov_b32 v{ACC+r}, 0")
            A("s_nop 1")
            A.label(lsr)
        M = []
        for k2 in range(2):
            for t in range(2):
                for i in range(4):
                    cc = "0" if (u == 0 and k2 == 0 and t == 0) else vr(ACC+16*i, 16)
                    M.append(f"v_mfma_f32_32x32x16_bf16 {vr(ACC+16*i,16)}, {ar(afr(p,k2,t,i))}, {ar(BRING+16*sl+8*k2+4*t)}, {cc}")
        F = []
        if u + 1 < NU:
            for k, t in enumerate(reads(u+1)): F.append((k >> 1, t))
        L = []
        for x in issue[u]: L += loads(x)
        for k, t in enumerate(L): F.append((min(15, (k*16)//len(L)), t))
        if u == 8:
            F.append((0, f"buffer_load_dwordx4 {vr(32)}, v5, s[{SRD_X1}:{SRD_X1+3}], s60 offen" + C))
            F.append((0, f"buffer_load_dwordx4 {vr(36)}, v5, s[{SRD_X1}:{SRD_X1+3}], s60 offen offset:512" + C))
            F.append((0, f"buffer_load_dwordx4 {vr(40)}, v23, s[{SRD_X}:{SRD_X+3}], s61 offen"))
            F.append((0, f"buffer_load_dwordx4 {vr(44)}, v23, s[{SRD_X}:{SRD_X+3}], s61 offen offset:32"))
            F = F[-4:] + F[:-4]
        interleave(A, M, F)
    st(3)
    A("s_nop 7"); A("s_nop 7")
    for t in send(37, PK, False): A(t)
    A("s_mov_b32 s12, s48"); A("s_mov_b32 s13, s49"); A("s_mov_b32 s14, 0x200000"); A("s_mov_b32 s15, 0x00020000")
    A(f"s_mul_i32 s32, s{S_KQ}, 5"); A("s_lshl_b32 s32, s32, 13"); A(f"s_add_u32 s32, s32, s{S_PT}")
    A(f"s_cmp_eq_u32 s{S_KQ}, 0"); A("s_cselect_b32 s4, 1, 0")
    A(f"s_cmp_lt_u32 s{S_KQ}, 2"); A("s_cselect_b32 s5, 2, 1")
    A(f"s_cmp_eq_u32 s{S_KQ}, 3"); A("s_cselect_b32 s6, 2, 3"); A("s_cselect_b32 s7, 3, 4")
    A(f"s_cmp_eq_u32 s{S_KQ}, 2"); A("s_cselect_b32 s6, 4, s6")
    for k in range(4):
        A(f"s_lshl_b32 s{4+k}, s{4+k}, 13"); A(f"s_add_u32 s{4+k}, s{4+k}, s32")
    X1, XX = 176, 192
    S, H, T = SAVE, X1, 80
    for r in range(8):
        A(f"v_lshlrev_b32 v{X1+2*r}, 16, v{32+r}")
        A(f"v_and_b32 v{X1+2*r+1}, 0xffff0000, v{32+r}")
    for r in range(8):
        A(f"v_lshlrev_b32 v{XX+2*r}, 16, v{40+r}")
        A(f"v_and_b32 v{XX+2*r+1}, 0xffff0000, v{40+r}")
    l1, l2, lj = A.newlabel("K1"), A.newlabel("K2"), A.newlabel("KJ")
    A(f"s_cmp_eq_u32 s{S_KQ}, 2"); A(f"s_cbranch_scc0 {l1}")
    for r in range(16): A(f"v_add_f32 v{H+r}, v{H+r}, v{SAVE+r}")
    A.label(l1)
    A(f"s_cmp_eq_u32 s{S_KQ}, 3"); A(f"s_cbranch_scc1 {l2}")
    for r in range(16): A(f"v_mov_b32 v{S+r}, v{ACC+r}")
    A(f"s_branch {lj}")
    A.label(l2)
    for r in range(16): A(f"v_add_f32 v{H+r}, v{H+r}, v{ACC+r}")
    A.label(lj)
    A("v_mov_b32 v28, 0x3f80"); A("v_mov_b32 v29, 0x3f800000")
    if os.environ.get("FW", "1") == "1": A("s_waitcnt vmcnt(0)")
    st(4)
    lp, lok = A.newlabel("FP"), A.newlabel("FOK")
    A(f"s_mov_b32 s34, {npoll}")
    A.label(lp)
    for k in range(4):
        for q in range(2):
            A(f"buffer_load_dwordx4 {vr(RX+8*k+4*q)}, v22, s[{SRD_P}:{SRD_P+3}], s{4+k} offen offset:{q*1024} sc1")
    A("s_waitcnt vmcnt(0)")
    M0 = 80
    for j in range(10): A(f"v_max3_u32 v{M0+j}, v{RX+3*j}, v{RX+3*j+1}, v{RX+3*j+2}")
    A(f"v_max3_u32 v{M0}, v{M0}, v{RX+30}, v{RX+31}")
    for j in range(3): A(f"v_max3_u32 v{M0+3*j+1}, v{M0+3*j+1}, v{M0+3*j+2}, v{M0+3*j+3}")
    A(f"v_max3_u32 v{M0}, v{M0}, v{M0+1}, v{M0+4}")
    A(f"v_max_u32 v{M0}, v{M0}, v{M0+7}")
    A(f"v_cmp_eq_u32 vcc, -1, v{M0}")
    A("s_nop 1")
    A(f"s_cbranch_vccz {lok}")
    A("s_sub_u32 s34, s34, 1"); A("s_cmp_lg_u32 s34, 0"); A(f"s_cbranch_scc1 {lp}")
    A.label(lok)
    st(5)
    def acc(Dst, k):
        for j in range(8):
            A(f"v_dot2c_f32_bf16 v{Dst+2*j}, v{RX+8*k+j}, v28")
            A(f"v_dot2c_f32_bf16 v{Dst+2*j+1}, v{RX+8*k+j}, v29")
    acc(S, 0); acc(S, 1); acc(H, 3)
    l3, lk = A.newlabel("K3"), A.newlabel("KK")
    A(f"s_cmp_ge_u32 s{S_KQ}, 2"); A(f"s_cbranch_scc1 {l3}")
    acc(H, 2)
    A(f"s_branch {lk}")
    A.label(l3)
    A(f"s_cmp_eq_u32 s{S_KQ}, 3"); A(f"s_cbranch_scc0 {lk}")
    acc(S, 2)
    A.label(lk)
    st(6)
    if stamp and os.environ.get("FCNT"): A(f"s_sub_u32 s74, {npoll}, s34"); A("s_add_u32 s74, s74, s96")
    A("s_nop 1")
    A(f"v_mov_b32 v30, {f2h(-math.log2(math.e))}")
    for r in range(16): A(f"v_mul_f32 v{T+r}, v30, v{H+r}")
    for r in range(16): A(f"v_exp_f32 v{T+r}, v{T+r}")
    A("s_nop 0")
    for r in range(16): A(f"v_add_f32 v{T+r}, 1.0, v{T+r}")
    for r in range(16): A(f"v_rcp_f32 v{T+r}, v{T+r}")
    A("s_nop 0")
    for r in range(16): A(f"v_mul_f32 v{H+r}, v{H+r}, v{T+r}")
    for r in range(16): A(f"v_fma_f32 v{S+r}, v{S+r}, v{H+r}, v{XX+r}")
    for r in range(8): A(f"v_cvt_pk_bf16_f32 v{48+r}, v{S+2*r}, v{S+2*r+1}")
    A(f"buffer_store_dwordx4 {vr(48)}, v23, s[12:15], s61 offen")
    A(f"buffer_store_dwordx4 {vr(52)}, v23, s[12:15], s61 offen offset:32")
```

```python
from common import *
import os
from bpath import vr, ar, half_sum, gelu_block, GC0, GC1, WS_STAT
import k2
SRD_B, SRD_W3, SRD_DBG = k2.SRD_B, 80, 84
S_PTR = 100
S_BO = 45
S_POLL, S_STO, S_H3 = 88, 89, 90
S_TA, S_TB = 49, 55
LDS_X = 131072
CH = [65536, 81920, 98304, LDS_X + 2048, 114688, 0, 16384, 32768]
V_WD, V_B, V_ST, V_POLL = 0, 22, 23, 3
A_B, A_W, A_ST = 0, 128, 160
OFF_X1F, OFF_STAT, OFF_H3 = WS_X1F - WS_H, WS_STAT - WS_H, WS_H3F - WS_H

SC = '' if os.environ.get('G3SC', '1') == '0' else ' sc1'
def ptr(A): load_ptr(A, S_PTR, KA_W3)

def scalars(A, wgid, S_W):
    a, b = S_TA, S_TB
    A(f"s_lshr_b32 s{a}, {wgid}, 3")
    A(f"s_lshr_b32 s{b}, s{a}, 1")
    A(f"s_lshl_b32 s{S_H3}, s{b}, 2")
    A(f"s_lshl_b32 s{b}, s{b}, 8")
    A(f"s_add_u32 s{SRD_W3}, s{S_PTR}, s{b}"); A(f"s_addc_u32 s{SRD_W3+1}, s{S_PTR+1}, 0")
    A(f"s_sub_u32 s{SRD_W3+2}, {512*3584}, s{b}"); A(f"s_mov_b32 s{SRD_W3+3}, 0x00020000")
    A(f"s_cmp_ge_u32 {wgid}, 224")
    A(f"s_cselect_b32 s{SRD_W3+2}, 0, s{SRD_W3+2}")
    A(f"s_cselect_b32 s{SRD_B+2}, 0, s{SRD_B+2}")
    A(f"s_and_b32 s{a}, s{a}, 1"); A(f"s_lshl_b32 s{a}, s{a}, 3"); A(f"s_and_b32 s{b}, {wgid}, 7"); A(f"s_add_u32 s{a}, s{a}, s{b}")
    A(f"s_lshl_b32 s{a}, s{a}, 2"); A(f"s_add_u32 s{a}, s{a}, s{S_W}")
    A(f"s_lshr_b32 s{S_POLL}, s{a}, 1"); A(f"s_lshl_b32 s{S_POLL}, s{S_POLL}, 3")
    A(f"s_lshl_b32 s{S_STO}, s{a}, 5")
    for c in range(4): A(f"s_mov_b32 s{S_BO+c}, {hex(OFF_X1F + 4096*c)}")

def wd_voffset(A, S_W, lanesrc, t0, t1):
    A(f"v_bfe_u32 v{t0}, v{lanesrc}, 8, 2")
    A(f"v_bfe_u32 v{t1}, v{lanesrc}, 4, 4")
    A(f"v_lshlrev_b32 v{V_WD}, 2, v{t0}")
    A(f"v_xor_b32 v{V_WD}, v{t1}, v{V_WD}")
    A(f"v_lshlrev_b32 v{V_WD}, 4, v{V_WD}")
    A(f"v_mul_u32_u24 v{t0}, 3584, v{t0}")
    A(f"v_add_u32 v{V_WD}, v{V_WD}, v{t0}")
    A(f"s_mul_i32 s{S_TA}, s{S_W}, {16*3584}")
    A(f"v_add_u32 v{V_WD}, s{S_TA}, v{V_WD}")

def wdma(c, S_W4K):
    return [[f"s_add_u32 m0, s{S_W4K}, {CH[c] + i*1024}", f"s_mov_b32 s{S_TA}, {(64*c + 4*i)*3584}",
             f"buffer_load_dwordx4 v{V_WD}, s[{SRD_W3}:{SRD_W3+3}], s{S_TA} offen lds"] for i in range(4)]
def poll_load(): return f"buffer_load_dword v{V_POLL}, off, s[{SRD_DBG}:{SRD_DBG+3}], s{S_POLL} sc1"
def poll_check(A, ool):
    lsp, lok, lp = A.newlabel("G3SPIN"), A.newlabel("G3OK"), A.newlabel("G3SP")
    A(f"v_readfirstlane_b32 s{S_TA}, v{V_POLL}")
    A(f"s_cmp_ge_u32 s{S_TA}, 8"); A(f"s_cbranch_scc0 {lsp}")
    A.label(lok)
    ool += [f"{lsp}:", f"s_mov_b32 s{S_TB}, 65536", f"{lp}:",
            f"buffer_load_dword v60, off, s[{SRD_DBG}:{SRD_DBG+3}], s{S_POLL} sc1", "s_waitcnt vmcnt(0)",
            f"v_readfirstlane_b32 s{S_TA}, v60", f"s_cmp_ge_u32 s{S_TA}, 8", f"s_cbranch_scc1 {lok}", "s_sleep 8",
            f"s_sub_u32 s{S_TB}, s{S_TB}, 1", f"s_cmp_lg_u32 s{S_TB}, 0", f"s_cbranch_scc1 {lp}", f"s_branch {lok}"]
def poll_loads(p0, p1):
    return [f"s_and_b32 s{S_TA}, s{S_POLL}, 0xfffffff0",
            f"buffer_load_dword v{p0}, off, s[{SRD_DBG}:{SRD_DBG+3}], s{S_TA} sc1",
            f"buffer_load_dword v{p1}, off, s[{SRD_DBG}:{SRD_DBG+3}], s{S_TA} offset:8 sc1"]
DUMMY = LDS_X + 20480
def touch_hooks(A, ool, wgid, S_W, lanesrc, p0, p1):
    lsp, lok, lp = A.newlabel("G3SPIN"), A.newlabel("G3OK"), A.newlabel("G3SP")
    a, b = S_TA, S_TB
    H = {}
    H[17] = [f"v_readfirstlane_b32 s{a}, v{p0}", f"v_readfirstlane_b32 s{b}, v{p1}", f"s_min_u32 s{a}, s{a}, s{b}",
             f"s_cmp_ge_u32 s{a}, 8", f"s_cbranch_scc0 {lsp}", f"{lok}:"]
    ool += [f"{lsp}:", f"s_mov_b32 s{S_H3+9}, 65536" if False else f"s_mov_b32 s50, 65536", f"{lp}:",
            f"s_and_b32 s{a}, s{S_POLL}, 0xfffffff0",
            f"buffer_load_dword v{p0}, off, s[{SRD_DBG}:{SRD_DBG+3}], s{a} sc1",
            f"buffer_load_dword v{p1}, off, s[{SRD_DBG}:{SRD_DBG+3}], s{a} offset:8 sc1", "s_waitcnt vmcnt(0)",
            f"v_readfirstlane_b32 s{a}, v{p0}", f"v_readfirstlane_b32 s{b}, v{p1}", f"s_min_u32 s{a}, s{a}, s{b}",
            f"s_cmp_ge_u32 s{a}, 8", f"s_cbranch_scc1 {lok}", "s_sleep 8",
            "s_sub_u32 s50, s50, 1", "s_cmp_lg_u32 s50, 0", f"s_cbranch_scc1 {lp}", f"s_branch {lok}"]
    H[18] = [f"v_bfe_u32 v{p0}, v{lanesrc}, 5, 5", f"v_bfe_u32 v{p1}, v{lanesrc}, 4, 1"]
    H[19] = [f"v_mul_u32_u24 v{p0}, 3584, v{p0}", f"v_lshl_add_u32 v{p0}, v{p1}, 7, v{p0}",
             f"s_lshr_b32 s{a}, {wgid}, 3", f"s_and_b32 s{a}, s{a}, 1", f"s_lshl_b32 s{a}, s{a}, 2", f"s_add_u32 s{a}, s{a}, s{S_W}", f"s_mul_i32 s{a}, s{a}, {64*3584}"]
    H[20] = [f"v_add_u32 v{p0}, s{a}, v{p0}", f"v_and_b32 v{p1}, 0x3f0, v{lanesrc}",
             f"s_and_b32 s{b}, s{S_W}, 1", f"s_lshl_b32 s{b}, s{b}, 13"]
    H[21] = [f"v_lshlrev_b32 v{p1}, 3, v{p1}"]
    H[22] = [f"v_add_u32 v{p1}, s{b}, v{p1}",
             f"s_lshr_b32 s{a}, s{S_STO}, 7", f"s_lshl_b32 s{b}, s{a}, 14", f"s_add_u32 s{b}, s{b}, {hex(OFF_STAT)}",
             f"s_lshl_b32 s{a}, s{a}, 3", f"s_bfe_u32 s50, {wgid}, 0x30004", f"s_add_u32 s{a}, s{a}, s50", f"s_lshl_b32 s{a}, s{a}, 14", f"s_add_u32 s{a}, s{a}, {hex(OFF_X1F)}",
             f"s_cmp_lt_u32 s{S_W}, 2", f"s_cselect_b32 s{b}, s{a}, s{b}"]
    H[23] = [f"s_mov_b32 m0, {DUMMY}", f"s_mov_b32 s{a}, {32*3584}", f"buffer_load_dword v{p0}, s[{SRD_W3}:{SRD_W3+3}], 0 offen lds"]
    H[25] = [f"buffer_load_dword v{p0}, s[{SRD_W3}:{SRD_W3+3}], s{a} offen lds"]
    H[27] = [f"buffer_load_dword v{p1}, s[{SRD_B}:{SRD_B+3}], s{b} offen lds"]
    return H
def b_voffsets(A, lane, t0, t1):
    A(f"v_and_b32 v{t0}, 31, v{lane}"); A(f"v_add_u32 v{t0}, s{S_STO}, v{t0}")
    A(f"v_lshrrev_b32 v{t1}, 5, v{lane}")
    A(f"v_lshlrev_b32 v{V_ST}, 7, v{t0}"); A(f"v_lshl_add_u32 v{V_ST}, v{t1}, 6, v{V_ST}")
    A(f"v_lshrrev_b32 v{V_B}, 4, v{t0}"); A(f"v_lshlrev_b32 v{V_B}, 14, v{V_B}")
    A(f"v_and_b32 v{t0}, 15, v{t0}"); A(f"v_lshl_add_u32 v{V_B}, v{t0}, 4, v{V_B}")
    A(f"v_lshl_add_u32 v{V_B}, v{t1}, 8, v{V_B}")
def st_loads():
    return [f"s_mov_b32 s{S_TB}, {hex(OFF_STAT)}"] + [f"buffer_load_dwordx4 {ar(A_ST+4*i)}, v{V_ST}, s[{SRD_B}:{SRD_B+3}], s{S_TB} offen offset:{16*i}" + SC for i in range(4)]
def b_load(s):
    return f"buffer_load_dwordx4 {ar(A_B+4*s)}, v{V_B}, s[{SRD_B}:{SRD_B+3}], s{S_BO+(s>>3)} offen offset:{512*(s&7)}" + SC

def check_hook(A, ool, p0, p1):
    lsp, lok, lp = A.newlabel("G3SPIN"), A.newlabel("G3OK"), A.newlabel("G3SP")
    a, b = S_TA, S_TB
    ool += [f"{lsp}:", f"s_mov_b32 s50, 65536", f"{lp}:",
            f"s_and_b32 s{a}, s{S_POLL}, 0xfffffff0",
            f"buffer_load_dword v{p0}, off, s[{SRD_DBG}:{SRD_DBG+3}], s{a} sc1",
            f"buffer_load_dword v{p1}, off, s[{SRD_DBG}:{SRD_DBG+3}], s{a} offset:8 sc1", "s_waitcnt vmcnt(0)",
            f"v_readfirstlane_b32 s{a}, v{p0}", f"v_readfirstlane_b32 s{b}, v{p1}", f"s_min_u32 s{a}, s{a}, s{b}",
            f"s_cmp_ge_u32 s{a}, 8", f"s_cbranch_scc1 {lok}", "s_sleep 8",
            "s_sub_u32 s50, s50, 1", "s_cmp_lg_u32 s50, 0", f"s_cbranch_scc1 {lp}", f"s_branch {lok}"]
    return [f"v_readfirstlane_b32 s{a}, v{p0}", f"v_readfirstlane_b32 s{b}, v{p1}", f"s_min_u32 s{a}, s{a}, s{b}",
            f"s_cmp_ge_u32 s{a}, 8", f"s_cbranch_scc0 {lsp}", f"{lok}:"]
def xtouch(wgid, S_W, lanesrc, p1):
    a, b = S_TA, S_TB
    H = {}
    H[18] = [f"v_and_b32 v{p1}, 0x3f0, v{lanesrc}", f"s_and_b32 s{b}, s{S_W}, 1", f"s_lshl_b32 s{b}, s{b}, 13"]
    H[20] = [f"v_lshlrev_b32 v{p1}, 3, v{p1}"]
    H[22] = [f"v_add_u32 v{p1}, s{b}, v{p1}",
             f"s_lshr_b32 s{a}, s{S_STO}, 7", f"s_lshl_b32 s{b}, s{a}, 14", f"s_add_u32 s{b}, s{b}, {hex(OFF_STAT)}",
             f"s_lshl_b32 s{a}, s{a}, 3", f"s_bfe_u32 s50, {wgid}, 0x30004", f"s_add_u32 s{a}, s{a}, s50", f"s_lshl_b32 s{a}, s{a}, 14", f"s_add_u32 s{a}, s{a}, {hex(OFF_X1F)}",
             f"s_cmp_lt_u32 s{S_W}, 2", f"s_cselect_b32 s{b}, s{a}, s{b}",
             f"s_mov_b32 m0, {DUMMY}", "s_nop 0", f"buffer_load_dword v{p1}, s[{SRD_B}:{SRD_B+3}], s{b} offen lds"]
    return H
RB0 = 65536
def main(A, vm, S_W, S_W4K, stamp):
    st = stamp
    TR, ONES, ACC, CS = 24, 28, 128, 192
    L, J, G_, T0, T1, HALF = 11, 12, 13, 14, 15, 9
    A(f"v_mbcnt_lo_u32_b32 v{L}, -1, 0"); A(f"v_mbcnt_hi_u32_b32 v{L}, -1, v{L}")
    A(f"v_and_b32 v{J}, 15, v{L}"); A(f"v_lshrrev_b32 v{G_}, 4, v{L}"); A(f"v_lshrrev_b32 v{HALF}, 5, v{L}")
    A(f"v_lshrrev_b32 v{T0}, 2, v{J}")
    A(f"v_lshl_add_u32 v{T1}, v{HALF}, 3, v{T0}")
    A(f"v_lshlrev_b32 v{T1}, 8, v{T1}")
    A(f"v_and_b32 v16, 1, v{G_}"); A(f"v_lshl_add_u32 v{T1}, v16, 5, v{T1}")
    A(f"v_and_b32 v16, 3, v{J}"); A(f"v_lshl_add_u32 v{T1}, v16, 3, v{T1}")
    A(f"v_add_u32 v{T1}, {RB0}, v{T1}")
    SD = [31, 32, 33, 34]
    for i in range(4):
        A(f"s_add_u32 s{SD[i]}, s{S_W}, {i}"); A(f"s_and_b32 s{SD[i]}, s{SD[i]}, 3")
        A(f"v_xor_b32 v16, s{SD[i]}, v{T0}")
        A(f"v_lshl_add_u32 v{TR+i}, v16, 6, v{T1}")
    for r in range(4): A(f"v_mov_b32 v{ONES+r}, 0x3f803f80")
    A(f"v_and_b32 v16, 31, v{L}"); A(f"v_add_u32 v16, s{S_STO}, v16")
    A("v_lshrrev_b32 v17, 4, v16"); A("v_mul_u32_u24 v17, 57344, v17")
    A("v_and_b32 v16, 15, v16"); A("v_lshl_add_u32 v17, v16, 4, v17")
    A(f"v_lshl_add_u32 v2, v{HALF}, 8, v17")
    P2 = os.environ.get('G3P', '01c,23')
    STL = []
    A_real = A
    if P2: A = STL.append
    else: A(f"s_waitcnt vmcnt({min(63, vm.cnt(['ST']))})")
    for r in range(16): A(f"v_accvgpr_read_b32 v{32+r}, a{A_ST+r}")
    A("v_add_f32 v48, v32, v34")
    for i in range(2, 8): A(f"v_add_f32 v48, v48, v{32+2*i}")
    half_sum(A, 48, 50)
    A("v_mul_f32 v48, 0x3d800000, v48")
    for i in range(8): A(f"v_sub_f32 v{32+2*i}, v{32+2*i}, v48")
    A("v_mul_f32 v49, v32, v32")
    for i in range(1, 8): A(f"v_fma_f32 v49, v{32+2*i}, v{32+2*i}, v49")
    A("v_add_f32 v51, v33, v35")
    for i in range(2, 8): A(f"v_add_f32 v51, v51, v{33+2*i}")
    A("v_mov_b32 v52, 0x42000000")
    A("v_fma_f32 v49, v49, v52, v51")
    half_sum(A, 49, 50)
    A("v_mov_b32 v50, 0x3727c5ac")
    A("v_fmac_f32 v50, 0x3b000000, v49")
    A("v_rsq_f32 v50, v50")
    A("s_nop 0")
    A("v_mov_b32 v51, v50")
    A("v_sub_f32 v52, 0, v48")
    A("v_mov_b32 v53, v52")
    A = A_real
    RB = [65536, 65536, 65536, 131072, 65536, 0, 0, 0]
    def wreads(s):
        c, ks, p = s >> 2, s & 3, s & 1
        R = []
        for i in range(4):
            for rd in range(2):
                b = A_W + 16*p + 4*i + 2*rd
                R.append(f"ds_read_b64_tr_b16 a[{b}:{b+1}], v{TR+i} offset:{CH[c] - RB[c] + ks*4096 + rd*1024}")
        return R
    def rebase(c):
        d = RB[c+1] - RB[c]
        if d == 0: return []
        return [(f"v_add_u32 v{TR+i}, {d}, v{TR+i}" if d > 0 else f"v_subrev_u32 v{TR+i}, {-d}, v{TR+i}") for i in range(4)]
    if P2:
        multipass(A, vm, st, P2.split(','), STL, CH, RB, S_W, S_W4K, SD, TR, ONES, ACC, CS, HALF)
        return
    A(f"s_waitcnt vmcnt({min(63, vm.cnt(['W0', 'B0', 'B1', 'B2', 'B3']))})")
    A("s_barrier")
    st(22)
    for t in wreads(0): A(t)
    for s in range(32):
        c, p = s >> 2, s & 1
        last = (s & 3) == 3
        pre = ["s_waitcnt lgkmcnt(0)"]
        if last and c < 7:
            n = min(63, vm.cnt([f"W{c+1}"] + [f"B{4*c+4+k}" for k in range(4)]))
            pre = [f"s_waitcnt vmcnt({n}) lgkmcnt(0)", "s_barrier"] + rebase(c)
        for t in pre: A(t)
        M = [f"v_mfma_f32_32x32x16_bf16 {vr(ACC+16*i,16)}, {ar(A_W+16*p+4*i)}, {ar(A_B+4*s)}, " + ("0" if s == 0 else vr(ACC+16*i,16)) for i in range(4)]
        M.append(f"v_mfma_f32_32x32x16_bf16 {vr(CS,16)}, {ar(A_W+16*p)}, {vr(ONES)}, " + ("0" if s == 0 else vr(CS,16)))
        F = []
        if s + 1 < 32:
            for k, t in enumerate(wreads(s+1)): F.append((k >> 1, t))
        if s < 6:
            for k, g in enumerate(wdma(5 + (s >> 1), S_W4K)[2*(s & 1):2*(s & 1)+2]):
                for t in g: F.append((1 + 2*k, t))
                vm.issue(f"W{5 + (s >> 1)}")
        interleave(A, M, F)
    st(23)
    A(f"s_lshl_b32 s{S_TA}, s{S_W}, 7"); A(f"s_add_u32 s{S_TA}, s{S_TA}, {LDS_X}")
    A(f"v_lshlrev_b32 v16, 6, v{HALF}")
    A(f"v_add_u32 v17, s{S_TA}, v16")
    A(f"v_mov_b32 v54, {GC0}"); A(f"v_mov_b32 v55, {GC0}"); A(f"v_mov_b32 v56, {GC1}"); A(f"v_mov_b32 v57, {GC1}")
    for i in range(1, 4):
        A(f"s_lshl_b32 s{S_TA}, s{SD[i]}, 7"); A(f"s_add_u32 s{S_TA}, s{S_TA}, {LDS_X}"); A(f"v_add_u32 v{17+i}, s{S_TA}, v16")
    for i in range(4):
        A(f"s_add_u32 s{SD[i]}, s{SD[i]}, s{S_H3}"); A(f"s_lshl_b32 s{SD[i]}, s{SD[i]}, 10"); A(f"s_add_u32 s{SD[i]}, s{SD[i]}, {hex(OFF_H3)}")
    A("s_nop 7")
    A("s_mov_b32 exec_lo, 1"); A("s_mov_b32 exec_hi, 1")
    for k in range(4): A(f"ds_write_b128 v17, {vr(CS+4*k)} offset:{16*k}")
    A("s_mov_b64 exec, -1")
    A("s_waitcnt lgkmcnt(0)")
    A("s_barrier")
    for i in range(1, 4):
        for k in range(4): A(f"ds_read_b128 {vr(CS+16*i+4*k)}, v{17+i} offset:{16*k}")
    for i in range(4):
        X = ACC + 16*i; cs = CS + 16*i
        if i: A(f"s_waitcnt lgkmcnt({12 - 4*i})")
        for r in range(0, 16, 2): A(f"v_pk_fma_f32 {vr(X+r,2)}, {vr(cs+r,2)}, {vr(52,2)}, {vr(X+r,2)}")
        for r in range(0, 16, 2): A(f"v_pk_mul_f32 {vr(X+r,2)}, {vr(X+r,2)}, {vr(50,2)}")
        gelu_block(A, X, 16, 64, 54, 56)
        o = 32 + 8*(i & 1)
        for r in range(8): A(f"v_cvt_pk_bf16_f32 v{o+r}, v{X+2*r}, v{X+2*r+1}")
        A(f"buffer_store_dwordx4 {vr(o)}, v2, s[{SRD_B}:{SRD_B+3}], s{SD[i]} offen")
        A(f"buffer_store_dwordx4 {vr(o+4)}, v2, s[{SRD_B}:{SRD_B+3}], s{SD[i]} offen offset:512")


def multipass(A, vm, st, passes, STL, CH, RB, S_W, S_W4K, SD, TR, ONES, ACC, CS, HALF):
    DIST = int(os.environ.get('G3D', '4'))
    A(f"s_waitcnt vmcnt({min(63, vm.cnt(['W0', 'B0', 'B1', 'B2', 'B3']))})")
    A("s_barrier")
    st(22)
    pre = [f"v_mov_b32 v54, {GC0}", f"v_mov_b32 v55, {GC0}", f"v_mov_b32 v56, {GC1}", f"v_mov_b32 v57, {GC1}",
           f"s_lshl_b32 s{S_TB}, s{S_W}, 7", f"s_add_u32 s{S_TB}, s{S_TB}, {LDS_X}",
           f"v_lshlrev_b32 v16, 6, v{HALF}", f"v_add_u32 v17, s{S_TB}, v16"]
    for i in range(1, 4):
        pre += [f"s_lshl_b32 s{S_TB}, s{SD[i]}, 7", f"s_add_u32 s{S_TB}, s{S_TB}, {LDS_X}", f"v_add_u32 v{17+i}, s{S_TB}, v16"]
    for i in range(4):
        pre += [f"s_add_u32 s{SD[i]}, s{SD[i]}, s{S_H3}", f"s_lshl_b32 s{SD[i]}, s{SD[i]}, 10", f"s_add_u32 s{SD[i]}, s{SD[i]}, {hex(OFF_H3)}"]
    def epi_np(i):
        X = ACC + 16*i; cs = CS + 16*i; o = 32 + 8*(i & 1); T = 64
        def one(r):
            x, t = X + r, T + r
            return [[f"v_fma_f32 v{x}, v{cs+r}, v52, v{x}", f"v_mul_f32 v{x}, v{x}, v50", f"v_mul_f32 v{t}, v{x}, v{x}",
                     f"v_fma_f32 v{t}, v{t}, v56, v54", f"v_mul_f32 v{t}, v{t}, v{x}", f"v_exp_f32 v{t}, v{t}"],
                    [f"v_add_f32 v{t}, 1.0, v{t}", f"v_rcp_f32 v{t}, v{t}"],
                    [f"v_mul_f32 v{x}, v{x}, v{t}"] + ([f"v_cvt_pk_bf16_f32 v{o+r//2}, v{x-1}, v{x}"] if r & 1 else [])]
        P = [one(r) for r in range(16)]
        L = []
        for k in range(18):
            if k < 16: L += P[k][0][:3]
            if k == 16: L.append("s_nop 0")
            if 1 <= k < 17: L += P[k-1][1][:1]
            if k < 16: L += P[k][0][3:5]
            if 1 <= k < 17: L += P[k-1][1][1:]
            if k >= 2: L += P[k-2][2]
            if k < 16: L += P[k][0][5:]
        L.append(f"buffer_store_dwordx4 {vr(o)}, v2, s[{SRD_B}:{SRD_B+3}], s{SD[i]} offen")
        L.append(f"buffer_store_dwordx4 {vr(o+4)}, v2, s[{SRD_B}:{SRD_B+3}], s{SD[i]} offen offset:512")
        return L
    def epi(i):
        L = []
        X = ACC + 16*i; cs = CS + 16*i
        if os.environ.get('G3PAIR') == '1':
            o = 32 + 8*(i & 1); T = 64
            def pr(r):
                x, t = X + r, T + r
                return [f"v_pk_fma_f32 {vr(x,2)}, {vr(cs+r,2)}, {vr(52,2)}, {vr(x,2)}", f"v_pk_mul_f32 {vr(x,2)}, {vr(x,2)}, {vr(50,2)}",
                        f"v_pk_mul_f32 {vr(t,2)}, {vr(x,2)}, {vr(x,2)}", f"v_pk_fma_f32 {vr(t,2)}, {vr(t,2)}, {vr(56,2)}, {vr(54,2)}",
                        f"v_pk_mul_f32 {vr(t,2)}, {vr(t,2)}, {vr(x,2)}", f"v_exp_f32 v{t}, v{t}", f"v_exp_f32 v{t+1}, v{t+1}"], \
                       [f"v_add_f32 v{t}, 1.0, v{t}", f"v_add_f32 v{t+1}, 1.0, v{t+1}", f"v_rcp_f32 v{t}, v{t}", f"v_rcp_f32 v{t+1}, v{t+1}"], \
                       [f"v_pk_mul_f32 {vr(x,2)}, {vr(x,2)}, {vr(t,2)}", f"v_cvt_pk_bf16_f32 v{o+r//2}, v{x}, v{x+1}"]
            P = [pr(r) for r in range(0, 16, 2)]
            for k in range(10):
                if k < 8: L += P[k][0]
                if 1 <= k < 9: L += P[k-1][1]
                if 2 <= k: L += P[k-2][2]
            L.append(f"buffer_store_dwordx4 {vr(o)}, v2, s[{SRD_B}:{SRD_B+3}], s{SD[i]} offen")
            L.append(f"buffer_store_dwordx4 {vr(o+4)}, v2, s[{SRD_B}:{SRD_B+3}], s{SD[i]} offen offset:512")
            return L
        for r in range(0, 16, 2): L.append(f"v_pk_fma_f32 {vr(X+r,2)}, {vr(cs+r,2)}, {vr(52,2)}, {vr(X+r,2)}")
        for r in range(0, 16, 2): L.append(f"v_pk_mul_f32 {vr(X+r,2)}, {vr(X+r,2)}, {vr(50,2)}")
        gelu_block(L.append, X, 16, 64, 54, 56)
        o = 32 + 8*(i & 1)
        for r in range(8): L.append(f"v_cvt_pk_bf16_f32 v{o+r}, v{X+2*r}, v{X+2*r+1}")
        L.append(f"buffer_store_dwordx4 {vr(o)}, v2, s[{SRD_B}:{SRD_B+3}], s{SD[i]} offen")
        L.append(f"buffer_store_dwordx4 {vr(o+4)}, v2, s[{SRD_B}:{SRD_B+3}], s{SD[i]} offen offset:512")
        return L
    done = []
    for pi, ps in enumerate(passes):
        blocks = [int(ch) for ch in ps if ch != 'c']; has_cs = 'c' in ps
        nb = len(blocks); R = 20 // nb; D = min({1: 6, 2: DIST, 3: 3, 4: 2}[nb], R - 1)
        def slot(s, k): return 176 + 4*((s % R)*nb + k)
        def wreads(s):
            c, ks = s >> 2, s & 3
            return [f"ds_read_b64_tr_b16 a[{slot(s,k)+2*rd}:{slot(s,k)+2*rd+1}], v{TR+i} offset:{CH[c] - RB[c] + ks*4096 + rd*1024}"
                    for k, i in enumerate(blocks) for rd in range(2)]
        def rebase(c):
            d = RB[c+1] - RB[c]
            if d == 0: return []
            return [(f"v_add_u32 v{TR+i}, {d}, v{TR+i}" if d > 0 else f"v_subrev_u32 v{TR+i}, {-d}, v{TR+i}") for i in blocks]
        V = []
        if pi == 0: V = pre + STL
        else:
            if os.environ.get('G3NOV') != '1':
                for i in done: V += epi_np(i)
                done = []
        nm = nb + (1 if has_cs else 0)
        v0 = 1 if pi == 0 else 1
        vend = 20 if pi == 0 else 32
        ngap = (vend - v0) * nm
        per = -(-len(V) // ngap) if V else 0
        vq = list(V)
        for s in range(D):
            for t in wreads(s): A(t)
        for s in range(32):
            P = []
            if s + D < 32 and (s + D) % 4 == 0:
                c = (s + D) // 4 - 1
                if pi == 0:
                    n = min(63, vm.cnt([f"W{c+1}"] + [f"B{4*c+4+k}" for k in range(4)]))
                    P = [f"s_waitcnt vmcnt({n})", "s_barrier"]
                P += rebase(c)
            nout = 2*nb*(min(s + D, 32) - s - 1)
            A(f"s_waitcnt lgkmcnt({nout})")
            for t in P: A(t)
            M = [f"v_mfma_f32_32x32x16_bf16 {vr(ACC+16*i,16)}, {ar(slot(s,k))}, {ar(A_B+4*s)}, " + ("0" if s == 0 else vr(ACC+16*i,16)) for k, i in enumerate(blocks)]
            if has_cs:
                assert blocks[0] == 0
                M.append(f"v_mfma_f32_32x32x16_bf16 {vr(CS,16)}, {ar(slot(s,0))}, {vr(ONES)}, " + ("0" if s == 0 else vr(CS,16)))
            F = []
            if s + D < 32:
                for k, t in enumerate(wreads(s + D)): F.append((min(k >> 1, nm - 1) if nm > 1 else 0, t))
            if pi == 0 and s < 6:
                for k, g in enumerate(wdma(5 + (s >> 1), S_W4K)[2*(s & 1):2*(s & 1)+2]):
                    for t in g: F.append((min(k, nm - 1), t))
                    vm.issue(f"W{5 + (s >> 1)}")
            if s >= v0:
                for g in range(nm):
                    for t in vq[:per]: F.append((g, t))
                    vq = vq[per:]
            interleave(A, M, F)
        A("s_nop 7"); A("s_nop 7")
        for t in vq: A(t)
        done += blocks
        if has_cs:
            st(23)
            A("s_mov_b32 exec_lo, 1"); A("s_mov_b32 exec_hi, 1")
            for k in range(4): A(f"ds_write_b128 v17, {vr(CS+4*k)} offset:{16*k}")
            A("s_mov_b64 exec, -1")
            A("s_waitcnt lgkmcnt(0)")
            A("s_barrier")
            for i in range(1, 4):
                for k in range(4): A(f"ds_read_b128 {vr(CS+16*i+4*k)}, v{17+i} offset:{16*k}")
            A("s_waitcnt lgkmcnt(0)")
    st(24)
    for i in done:
        for t in epi(i): A(t)
```

```python
from common import *
from bpath import vr, ar, half_sum, WS_STAT
SRD_B, SRD_W2, SRD_DBG = 76, 80, 84
S_M0, S_OUT, S_ST = 88, 89, 90
T0, T1, T2, T3 = 49, 55, 60, 61
V_U, V_SH, V_WD, V_TR, V_TOK, V_T = 96, 97, 101, 102, 103, 104
V_SIG, V_ONE = 62, 63
BF = 128
ACC, XR = 32, 48
OFF_X1F, OFF_STAT = WS_X1F - WS_H, WS_STAT - WS_H

def g2_ptrs(A):
    load_ptr(A, SRD_W2, KA_W2); load_ptr(A, SRD_DBG, KA_DBG)

def g2_setup(A, wgid, S_W, lane, ws):
    a, b, c, d, e = V_T, V_T+1, V_T+2, V_T+3, V_T+4
    A(f"s_and_b32 s{T0}, {wgid}, 7"); A(f"s_lshr_b32 s{T2}, {wgid}, 6"); A(f"s_and_b32 s{T2}, s{T2}, 3")
    A(f"s_lshl_b32 s{T2}, s{T2}, 3"); A(f"s_add_u32 s{T0}, s{T0}, s{T2}")
    A(f"s_lshr_b32 s{T1}, {wgid}, 3"); A(f"s_and_b32 s{T1}, s{T1}, 7")
    A(f"s_lshl_b32 s{T2}, s{T0}, 6")
    A(f"s_lshr_b32 s{T3}, s{S_W}, 1"); A(f"s_lshl_b32 s{T3}, s{T3}, 5"); A(f"s_add_u32 s{T2}, s{T2}, s{T3}")
    A(f"v_and_b32 v{V_TOK}, 31, v{lane}")
    A(f"v_add_u32 v{V_TOK}, s{T2}, v{V_TOK}")
    A(f"v_lshrrev_b32 v{a}, 5, v{lane}"); A(f"v_lshlrev_b32 v{a}, 8, v{a}")
    def f16off(dst, tok):
        A(f"v_lshrrev_b32 v{b}, 4, v{tok}"); A(f"v_lshlrev_b32 v{b}, 14, v{b}")
        A(f"v_and_b32 v{c}, 15, v{tok}"); A(f"v_lshl_add_u32 v{b}, v{c}, 4, v{b}")
        A(f"v_add_u32 v{dst}, v{b}, v{a}")
    f16off(V_U, V_TOK)
    for cc, dd in enumerate((-1, 1, -2, 2)):
        A(f"v_add_u32 v{d}, {dd}, v{V_TOK}")
        f16off(V_SH+cc, d)
        A(f"v_mov_b32 v{e}, 0x800")
        A(f"v_cmp_gt_u32 vcc, v{e}, v{d}")
        A(f"v_bfrev_b32 v{e}, 1")
        A(f"v_cndmask_b32 v{V_SH+cc}, v{e}, v{V_SH+cc}, vcc")
    A(f"v_lshrrev_b32 v{a}, 3, v{lane}"); A(f"v_lshlrev_b32 v{a}, 10, v{a}")
    A(f"v_bfe_u32 v{b}, v{lane}, 4, 1"); A(f"v_lshlrev_b32 v{b}, 2, v{b}")
    A(f"v_and_b32 v{c}, 7, v{lane}"); A(f"v_xor_b32 v{b}, v{b}, v{c}")
    A(f"v_lshl_add_u32 v{V_WD}, v{b}, 4, v{a}")
    A(f"s_lshl_b32 s{T2}, s{S_W}, 15"); A(f"v_add_u32 v{V_WD}, s{T2}, v{V_WD}")
    A(f"v_and_b32 v{a}, 15, v{lane}"); A(f"v_lshrrev_b32 v{b}, 4, v{lane}")
    A(f"v_lshrrev_b32 v{c}, 1, v{b}"); A(f"v_lshlrev_b32 v{c}, 3, v{c}")
    A(f"v_lshrrev_b32 v{d}, 2, v{a}"); A(f"v_add_u32 v{c}, v{c}, v{d}")
    A(f"v_and_b32 v{b}, 1, v{b}"); A(f"v_lshlrev_b32 v{b}, 1, v{b}")
    A(f"v_and_b32 v{d}, 1, v{a}"); A(f"v_add_u32 v{b}, v{b}, v{d}")
    A(f"s_and_b32 s{T2}, s{S_W}, 1"); A(f"s_lshl_b32 s{T2}, s{T2}, 2"); A(f"v_add_u32 v{b}, s{T2}, v{b}")
    A(f"v_bfe_u32 v{d}, v{a}, 3, 1"); A(f"v_lshlrev_b32 v{d}, 2, v{d}"); A(f"v_xor_b32 v{b}, v{b}, v{d}")
    A(f"v_lshlrev_b32 v{b}, 4, v{b}")
    A(f"v_lshl_add_u32 v{V_TR}, v{c}, 7, v{b}")
    A(f"v_bfe_u32 v{d}, v{a}, 1, 1")
    A(f"v_lshl_add_u32 v{V_TR}, v{d}, 3, v{V_TR}")
    A(f"s_lshl_b32 s{T2}, s{T0}, 3"); A(f"v_mov_b32 v{V_SIG}, s{T2}"); A(f"v_bfrev_b32 v{a}, 1")
    A(f"s_lshl_b32 s{T3}, s{S_W}, 6"); A(f"v_add_u32 v{b}, s{T3}, v{lane}")
    A(f"v_cmp_eq_u32 vcc, 0, v{b}"); A("s_nop 1")
    A(f"v_cndmask_b32 v{V_SIG}, v{a}, v{V_SIG}, vcc")
    A(f"v_mov_b32 v{V_ONE}, 1")
    A(f"s_lshl_b32 s{T2}, s{T1}, 7")
    A(f"s_add_u32 s{SRD_W2}, s{SRD_W2}, s{T2}"); A(f"s_addc_u32 s{SRD_W2+1}, s{SRD_W2+1}, 0")
    A(f"s_sub_u32 s{SRD_W2+2}, 0x80000, s{T2}"); A(f"s_mov_b32 s{SRD_W2+3}, 0x00020000")
    srd_off(A, SRD_B, ws, WS_H, OFF_STAT + 0x40000)
    A(f"s_mov_b32 s{SRD_DBG+2}, 256"); A(f"s_mov_b32 s{SRD_DBG+3}, 0x00020000")
    A(f"s_lshl_b32 s{S_M0}, s{S_W}, 12")
    A(f"s_lshl_b32 s{S_OUT}, s{T1}, 1"); A(f"s_and_b32 s{T2}, s{S_W}, 1"); A(f"s_add_u32 s{S_OUT}, s{S_OUT}, s{T2}")
    A(f"s_lshl_b32 s{S_ST}, s{S_OUT}, 3"); A(f"s_add_u32 s{S_ST}, s{S_ST}, {hex(OFF_STAT)}")
    A(f"s_lshl_b32 s{S_OUT}, s{S_OUT}, 10")

LATE = [False]
def bfr(c, s):
    if not LATE[0]: return vr(BF + 32*c + 4*s)
    return ar(160 + 32*c + 4*s) if c < 3 else vr(64 + 4*s)
def g2_wloads(c):
    return g2_loads(c)[:4]
def g2_bloads(c):
    return g2_loads(c)[4:]
def g2_loads(c):
    G = []
    for i in range(4):
        G.append([f"s_add_u32 m0, s{S_M0}, {c*16384 + i*1024}", f"s_mov_b32 s{T3}, {c*131072 + i*8192}",
                  f"buffer_load_dwordx4 v{V_WD}, s[{SRD_W2}:{SRD_W2+3}], s{T3} offen lds"])
    for s in range(8):
        G.append(([f"s_mov_b32 s{T2}, {4096*c}"] if s == 0 else []) +
                 [f"buffer_load_dwordx4 {bfr(c, s)}, v{V_SH+c}, s[{SRD_B}:{SRD_B+3}], s{T2} offen offset:{512*s}"])
    return G
def g2_xloads(srd_xn):
    return [[f"buffer_load_dwordx4 {vr(XR)}, v{V_U}, s[{srd_xn}:{srd_xn+3}], s{S_OUT} offen"],
            [f"buffer_load_dwordx4 {vr(XR+4)}, v{V_U}, s[{srd_xn}:{srd_xn+3}], s{S_OUT} offen offset:512"]]
def g2_wreads(c):
    R = []
    for s in range(8):
        for rd in range(2):
            b = (32*c if LATE[0] else 128) + 4*s + 2*rd
            R.append(f"ds_read_b64_tr_b16 a[{b}:{b+1}], v{V_TR} offset:{c*16384 + s*2048 + rd*512}")
    return R
def g2_mfma(c, s):
    cc = "0" if (c == 0 and s == 0) else vr(ACC, 16)
    return f"v_mfma_f32_32x32x16_bf16 {vr(ACC,16)}, {ar((32*c if LATE[0] else 128)+4*s)}, {bfr(c, s)}, {cc}"
def g2_epilogue(A, vm):
    X = 64
    for r in range(8):
        A(f"v_lshlrev_b32 v{X+2*r}, 16, v{XR+r}")
        A(f"v_and_b32 v{X+2*r+1}, 0xffff0000, v{XR+r}")
    A("s_nop 7")
    for r in range(16): A(f"v_add_f32 v{ACC+r}, v{ACC+r}, v{X+r}")
    P = 80
    for r in range(8): A(f"v_cvt_pk_bf16_f32 v{P+r}, v{ACC+2*r}, v{ACC+2*r+1}")
    A(f"s_add_u32 s{T2}, s{S_OUT}, {hex(OFF_X1F)}")
    A(f"buffer_store_dwordx4 {vr(P)}, v{V_U}, s[{SRD_B}:{SRD_B+3}], s{T2} offen sc1"); vm.issue("G2S")
    A(f"buffer_store_dwordx4 {vr(P+4)}, v{V_U}, s[{SRD_B}:{SRD_B+3}], s{T2} offen offset:512 sc1"); vm.issue("G2S")
    for r in range(8):
        A(f"v_lshlrev_b32 v{X+2*r}, 16, v{P+r}")
        A(f"v_and_b32 v{X+2*r+1}, 0xffff0000, v{P+r}")
    m, q, t = 88, 89, 90
    A(f"v_add_f32 v{m}, v{X}, v{X+1}")
    for r in range(2, 16): A(f"v_add_f32 v{m}, v{m}, v{X+r}")
    half_sum(A, m, t)
    A(f"v_mul_f32 v{m}, 0x3d000000, v{m}")
    for r in range(16): A(f"v_sub_f32 v{X+r}, v{X+r}, v{m}")
    A(f"v_mul_f32 v{q}, v{X}, v{X}")
    for r in range(1, 16): A(f"v_fma_f32 v{q}, v{X+r}, v{X+r}, v{q}")
    half_sum(A, q, t)
    A(f"v_lshlrev_b32 v{t}, 7, v{V_TOK}")
    A(f"buffer_store_dwordx2 v[{m}:{q}], v{t}, s[{SRD_B}:{SRD_B+3}], s{S_ST} offen sc1"); vm.issue("G2S")
def g2_signal():
    return f"buffer_atomic_add v{V_ONE}, v{V_SIG}, s[{SRD_DBG}:{SRD_DBG+3}], 0 offen sc1"
```

```python
import sys, os
from common import *
from kv import emit_kv
from ln import emit_ln
from attn import emit_attn
from bpath import emit_g12, emit_g3
from fin import emit_final
from fin2 import emit_final2
from attn2 import emit_attn2
from k1 import emit_k1
HEADER = open("../cdna_kernels/recurrent_scan__compressed_kv_cla__mixer_s_mlp__prompt.s.ref").read().split("; Override")[0]
def stamp_begin(A):
    A("s_memtime s[96:97]"); A("s_memrealtime s[98:99]"); A("v_lshrrev_b32 v1, 6, v0"); A("s_nop 1"); A("v_readfirstlane_b32 s91, v1")
def mk_stamp(A):
    def st(k):
        A(f"s_memtime s[{62+2*k}:{63+2*k}]")
    return st
KIDX = [0]
def stamp_dump(A, n, wg=17):
    l = A.newlabel("ST")
    A("s_memtime s[92:93]"); A("s_memrealtime s[94:95]")
    A("s_load_dwordx2 s[8:9], s[0:1], 96")
    A("s_load_dwordx2 s[12:13], s[0:1], 104")
    A("s_waitcnt lgkmcnt(0)")
    KIDX[0] += 1
    A(f"s_add_u32 s4, s12, {hex(WS_FLAG + 0x100000 + (KIDX[0]-1)*4096)}"); A("s_addc_u32 s5, s13, 0"); A("s_mov_b32 s6, 4096"); A("s_mov_b32 s7, 0x00020000")
    A("s_lshl_b32 s10, s2, 3"); A("v_mov_b32 v1, s10"); A("v_mov_b32 v2, s98"); A("v_mov_b32 v3, s94")
    A("buffer_store_dwordx2 v[2:3], v1, s[4:7], 0 offen")
    if os.environ.get("XST"):
        k1, k2 = [int(x) for x in os.environ["XST"].split(",")]
        A(f"s_sub_u32 s10, s{62+2*k1}, s96"); A(f"s_sub_u32 s11, s{62+2*k2}, s96"); A("v_mov_b32 v2, s10"); A("v_mov_b32 v3, s11")
        A("buffer_store_dwordx2 v[2:3], v1, s[4:7], 0 offen offset:2048")
    A(f"s_cmp_lg_u32 s2, {wg}"); A(f"s_cbranch_scc1 {l}")
    A("s_add_u32 s4, s8, 256"); A("s_addc_u32 s5, s9, 0"); A("s_mov_b32 s6, 256"); A("s_mov_b32 s7, 0x00020000")
    A("s_lshl_b32 s91, s91, 6"); A("v_mov_b32 v1, s91")
    A("v_mbcnt_lo_u32_b32 v4, -1, 0"); A("v_mbcnt_hi_u32_b32 v4, -1, v4")
    A("v_cmp_eq_u32 vcc, 0, v4"); A("s_and_saveexec_b64 s[12:13], vcc")
    for k in range(n):
        A(f"s_sub_u32 s10, s{62+2*k}, s96"); A("v_mov_b32 v2, s10")
        A(f"buffer_store_dword v2, v1, s[4:7], 0 offen offset:{4*k}")
    A("s_sub_u32 s92, s92, s96"); A("s_sub_u32 s94, s94, s98")
    A("v_mov_b32 v2, s92"); A("v_mov_b32 v3, s94")
    A(f"buffer_store_dwordx2 v[2:3], v1, s[4:7], 0 offen offset:{4*n}")
    A("s_waitcnt vmcnt(0)")
    A.label(l)
def emit_lid(A, per, lds_addr=0):
    sk, tr, got = A.newlabel("SK"), A.newlabel("TR"), A.newlabel("GOT")
    A("s_load_dwordx2 s[4:5], s[0:1], 96")
    A("s_getreg_b32 s3, hwreg(HW_REG_XCC_ID, 0, 4)")
    A("v_readfirstlane_b32 s6, v0")
    A(f"v_mov_b32 v2, {lds_addr}")
    A("s_cmp_lg_u32 s6, 0"); A(f"s_cbranch_scc1 {sk}")
    A("s_mov_b64 exec, 1")
    A("s_mov_b32 s7, 0")
    A("v_mov_b32 v1, 1")
    A("s_waitcnt lgkmcnt(0)")
    A.label(tr)
    A("s_add_u32 s8, s3, s7"); A("s_and_b32 s8, s8, 7")
    A("s_lshl_b32 s9, s8, 5"); A("v_mov_b32 v3, s9")
    A("global_atomic_add v4, v3, v1, s[4:5] sc0 sc1")
    A("s_waitcnt vmcnt(0)")
    A("v_readfirstlane_b32 s9, v4")
    A(f"s_cmp_lt_u32 s9, {per}"); A(f"s_cbranch_scc1 {got}")
    A("s_add_u32 s7, s7, 1"); A("s_cmp_lt_u32 s7, 8"); A(f"s_cbranch_scc1 {tr}")
    A("s_mov_b32 s9, 0x1000")
    A.label(got)
    A("s_lshl_b32 s9, s9, 3"); A("s_add_u32 s9, s9, s8")
    A("v_mov_b32 v1, s9")
    A("ds_write_b32 v2, v1")
    A("s_mov_b64 exec, -1")
    A.label(sk)
    A("s_waitcnt lgkmcnt(0)"); A("s_barrier")
    A("ds_read_b32 v1, v2")
    A("s_waitcnt lgkmcnt(0)")
    A("v_readfirstlane_b32 s2, v1")
    A("s_barrier")
LID = [False]
UID = [0]
def simple_kernel(name, emit, grid, lds, stamp=False, nst=8, wg=17, vgpr=512, accum=256):
    A = Asm(); UID[0] += 100000; A.uid = UID[0]
    kernel_begin(A, name)
    e = A.newlabel("END")
    A(f"s_cmp_ge_u32 s2, {grid}"); A(f"s_cbranch_scc1 {e}")
    if LID[0]:
        emit_lid(A, grid // 8)
        A(f"s_cmp_ge_u32 s2, {grid}"); A(f"s_cbranch_scc1 {e}")
        lds = max(lds, 64)
    if stamp:
        stamp_begin(A)
        for k in range(nst): A(f"s_mov_b64 s[{62+2*k}:{63+2*k}], 0") if False else None
    pfc = os.environ.get("PFC", "1")
    if pfc == "1" or name[:2] in pfc.split(","):
        lp = A.newlabel("PC")
        A("s_getpc_b64 s[62:63]"); A.label(lp)
        A("s_lshr_b32 s3, s2, 3"); A("s_and_b32 s3, s3, 3"); A("s_lshl_b32 s3, s3, 14")
        A("v_lshlrev_b32 v255, 6, v0"); A("v_add_u32 v255, s3, v255")
        A(f"v_min_u32 v255, {e}-{lp}, v255")
        A("global_load_dword v254, v255, s[62:63]")
    emit(A, mk_stamp(A) if stamp else None)
    A("s_waitcnt vmcnt(0)")
    if stamp: stamp_dump(A, nst, wg)
    A.label(e); A("s_endpgm")
    return A.text(), kernel_desc(name, vgpr=vgpr, accum=accum), (name, grid, 256, lds)
def emit_prefetch(A):
    mats = [(KA_CKV, 0x200000), (KA_WUK, 0x400000), (KA_WUV, 0x400000), (KA_W1, 0x80000), (KA_W2, 0x80000), (KA_W3, 0x1c0000), (KA_WQ, 0x400000), (KA_WO, 0x400000), (KA_W4, 0x1c0000)]
    for i, (ka, sz) in enumerate(mats): A(f"s_load_dwordx2 s[{44+2*i}:{45+2*i}], s[0:1], {ka}")
    A("v_lshlrev_b32 v58, 4, v0")
    A("s_lshl_b32 s70, s2, 14")
    A("v_and_b32 v59, 63, v0"); A("v_lshlrev_b32 v59, 4, v59")
    A("v_lshrrev_b32 v57, 6, v0"); A("v_lshlrev_b32 v57, 12, v57")
    A("v_add_u32 v58, v57, v59"); A("v_add_u32 v58, s70, v58")
    A("s_waitcnt lgkmcnt(0)")
    for i, (ka, sz) in enumerate(mats):
        A(f"s_mov_b32 s72, s{44+2*i}"); A(f"s_mov_b32 s73, s{45+2*i}"); A(f"s_mov_b32 s74, {hex(sz)}"); A("s_mov_b32 s75, 0x00020000")
        for k in range(4): A(f"buffer_load_dwordx4 v[60:63], v58, s[72:75], 0 offen offset:{k*1024}")
def k_lnp(): return simple_kernel("ln_kernel", lambda A, st: (emit_ln(A), emit_prefetch(A)), 256, 0, False, vgpr=64, accum=64)
def k_pln(): return simple_kernel("ln_kernel", lambda A, st: (emit_prefetch(A), emit_ln(A)), 256, 0, False, vgpr=64, accum=64)
def k_kv(stamp=False): return simple_kernel("kv_kernel", lambda A, st: emit_kv(A, stamp=st), 256, 131072, stamp)
def k_ln(stamp=False): return simple_kernel("ln_kernel", lambda A, st: emit_ln(A), 256, 0, stamp, vgpr=64, accum=64)
def k_attn(stamp=False, wg=17, nst=7): return simple_kernel("attn_kernel", lambda A, st: emit_attn(A, stamp=st), 256, 163840, stamp, nst=nst, wg=wg)
def k_g1(): return simple_kernel("g1_kernel", lambda A, st: emit_g12(A, 1), 256, 65536)
def k_g2(): return simple_kernel("g2_kernel", lambda A, st: emit_g12(A, 2), 256, 65536)
def k_g3(): return simple_kernel("g3_kernel", lambda A, st: emit_g3(A), 224, 131072)
def k_fin(stamp=False): return simple_kernel("fin_kernel", lambda A, st: emit_final(A, stamp=st), 256, 131072, stamp, nst=5, wg=int(os.environ.get("WG", "17")))
def k_fin2(stamp=False): return simple_kernel("fin_kernel", lambda A, st: emit_final2(A, stamp=st), 256, 131072, stamp, nst=7, wg=int(os.environ.get("WG", "17")))
def k_k1(stamp=False): return simple_kernel("k1_kernel", lambda A, st: emit_k1(A, stamp=st), 256, 163840, stamp, nst=7)
def k_k2(stamp=False, g2=True, g3=True, wg=17): return simple_kernel("attn_kernel", lambda A, st: emit_attn2(A, stamp=st, g2=g2, g3=g3), 256, 163840, stamp, nst=7, wg=wg)
def k_attn_plain(): return simple_kernel("attn_kernel", lambda A, st: emit_attn(A), 256, 163840)
def k_attn2(stamp=False, wg=17, nst=6): return simple_kernel("attn_kernel", lambda A, st: emit_attn2(A, stamp=st), 256, 163840, stamp, nst=nst, wg=wg)
def write(parts, outp):
    open(outp, "w").write(file_text([p[2] for p in parts], "".join(p[0] for p in parts), [p[1] for p in parts], HEADER))
if __name__ == "__main__":
    what = sys.argv[1]; outp = sys.argv[2]
    parts = []
    if what.endswith("x"): LID[0] = True; what = what[:-1]
    if what == "kv": parts = [k_kv(True)]
    if what == "attn": parts = [k_ln(), k_kv(), k_attn(True)]
    if what == "attnf":
        import attn; attn.FINE = True
        parts = [k_ln(), k_kv(), k_attn(True, nst=14)]
    if what == "bpath": parts = [k_ln(), k_g1(), k_g2(), k_g3()]
    if what == "full": parts = [k_ln(), k_kv(), k_g1(), k_g2(), k_g3(), k_attn_plain(), k_fin()]
    if what == "attn2": parts = [k_ln(), k_kv(), k_attn2(True)]
    if what == "full2": parts = [k_ln(), k_kv(), k_g1(), k_g2(), k_g3(), k_attn2(False), k_fin()]
    if what == "full2p": parts = [k_lnp(), k_kv(), k_g1(), k_g2(), k_g3(), k_attn2(False), k_fin()]
    if what == "full2q": parts = [k_pln(), k_kv(), k_g1(), k_g2(), k_g3(), k_attn2(False), k_fin()]
    if what == "finst": parts = [k_pln(), k_kv(), k_g1(), k_g2(), k_g3(), k_attn2(False), k_fin(True)]
    if what == "f3a": parts = [k_k1(), k_g2(), k_g3(), k_attn2(False), k_fin()]
    if what == "k1st": parts = [k_k1(True), k_g2(), k_g3(), k_attn2(False), k_fin()]
    if what == "f3b": parts = [k_k1(), k_k2(), k_fin()]
    if what == "f4a": parts = [k_k1(), k_k2(g3=2), k_fin()]
    if what == "f4st": parts = [k_k1(), k_k2(True, g3=2), k_fin()]
    if what == "f3c": parts = [k_k1(), k_k2(g3=False), k_g3(), k_fin()]
    if what == "k2st": parts = [k_k1(), k_k2(True), k_fin()]
    if what == "finst2": parts = [k_k1(), k_k2(g3=2), k_fin(True)]
    if what == "k1st2": parts = [k_k1(True), k_k2(g3=2), k_fin()]
    if what == "allst": parts = [k_k1(True), k_k2(True, g3=2), k_fin(True)]
    if what == "f5a": parts = [k_k1(), k_k2(g3=2), k_fin2()]
    if what == "finst5": parts = [k_k1(), k_k2(g3=2), k_fin2(True)]
    if what == "allst5": parts = [k_k1(True), k_k2(True, g3=2), k_fin2(True)]
    write(parts, outp)
```

```python
import os
from common import *

V_QLA, V_X, V_Y, V_DMA = 0, 1, 2, 3
E = (4, 6)
L0S, L1S, L0L, L1L = 8, 10, 12, 14
S0, S1, P0, P1 = 16, 32, 48, 56
Q0, Q1 = 64, 96
KF, VF = 128, 160
BA0, BA1, BB0, BB1 = 192, 208, 224, 240
O_S, O_L = 0, 128
S_W, S_HEAD, S_J = 20, 21, 22
S_MX, S_K, S_KB, S_VA, S_VP, S_CNT = 23, 24, 25, 26, 27, 28
S_QBS, S_QBL, S_A, S_B, S_D = 31, 32, 33, 34, 35
S_CSO, S_TMP, S_TMP2 = 36, 37, 38
S_WS, S_WM, S_W4K = 39, 44, 30
SRD_KV, SRD_WQ, SRD_XN, SRD_CTX, SRD_QS = 4, 8, 12, 16, 56
LDS_X = 131072
KE, KO, VE, VO = 0, 16384, 32768, 49152
NEG = "0xff800000"
WS_QS = 0x5000000

def ar(b, n=4): return f"a[{b}:{b+n-1}]"
def vr(b, n=4): return f"v[{b}:{b+n-1}]"

class VM:
    def __init__(s): s.q = []
    def issue(s, tag): s.q.append(tag)
    def cnt(s, tags):
        last = max(i for i, t in enumerate(s.q) if t in tags)
        return len(s.q) - 1 - last

def qk(S, q, c):
    M = []
    for s in range(8):
        cc = c if s == 0 else vr(S, 16)
        M.append(f"v_mfma_f32_32x32x16_bf16 {vr(S,16)}, {vr(KF+4*s)}, {vr(q+4*s)}, {cc}")
    return M
def pv(P, o):
    M = []
    for t in range(2):
        for db in range(4):
            M.append(f"v_mfma_f32_32x32x16_bf16 {ar(o+16*db,16)}, {vr(VF+4*(t*4+db))}, {vr(P+4*t)}, {ar(o+16*db,16)}")
    return M

import os
X = os.environ.get("X", "").split(",")
STD_Q = ["K6", "V2", "K7", "V3"]

def step(A, par, qk0, qk1, o, sm1, tr0, sm0, tr1, dmaV=True, dmaK=True, rdK=True, rdV2=True, rdV1=True,
         nprev=8, salu=None, extra=None, entry=STD_Q, barrier=True, nops=None, std_exit=True):
    salu = salu or {}; extra = extra or {}; nops = nops or {}
    M = [None]*32
    if qk0 is not None: M[0:8] = qk(S0, Q0, qk0)
    if qk1 is not None: M[16:24] = qk(S1, Q1, qk1)
    if o is not None:
        M[8:16] = pv(P0, o); M[24:32] = pv(P1, o + 64)
    G = {g: [] for g in range(32)}
    def add2(l, e): return [f"v_add_f32 v{l}, v{l}, v{e}", f"v_add_f32 v{l+1}, v{l+1}, v{e+1}"]
    def sm(base, S, P, L, tr):
        if tr is not None and L is None:
            G[base] += add2(tr, E[1])
        if L is None: return
        for k in range(8):
            e = E[k & 1]; g = base + 2*k
            G[g].append(f"v_exp_f32 v{e}, v{S+2*k}")
            G[g].append(f"v_exp_f32 v{e+1}, v{S+2*k+1}")
            if k == 0:
                if tr is not None: G[g] += add2(tr, E[1])
                else: G[g].append("s_nop 0")
            else:
                G[g] += add2(L, E[(k-1)&1])
            G[g+1].append(f"v_cvt_pk_bf16_f32 v{P+k}, v{e}, v{e+1}")
    sm(0, S1, P1, sm1, tr0)
    sm(16, S0, P0, sm0, tr1)
    q = list(entry)
    if par == 0: aV1, oV1, aK, oK, aV2, oV2 = V_X, VE, V_Y, KE, V_X, VO
    else:        aV1, oV1, aK, oK, aV2, oV2 = V_X, VO, V_Y, KO, V_Y, VE
    R = {g: [] for g in range(32)}
    if rdV1:
        for i in range(4): R[1+2*i].append((f"V{4+i}", f"ds_read_b128 {vr(VF+4*(4+i))}, v{aV1} offset:{oV1+(4+i)*1024}"))
    if rdK:
        for s in range(8): R[17+2*s].append((f"K{s}", f"ds_read_b128 {vr(KF+4*s)}, v{aK} offset:{oK+s*1024}"))
    if rdV2:
        for i in range(4): R[25+2*i].append((f"V{i}", f"ds_read_b128 {vr(VF+4*i)}, v{aV2} offset:{oV2+i*1024}"))
    for g, l in extra.items(): R[g] += l
    if par == 0: mV, sV, mK, sK = f"s_xor_b32 m0, s{S_MX}, 0x1c000", S_VP, f"s_mov_b32 m0, s{S_MX}", S_K
    else:        mV, sV, mK, sK = f"s_or_b32 m0, s{S_MX}, 0x8000", S_VA, f"s_or_b32 m0, s{S_MX}, 0x4000", S_KB
    D = {g: [] for g in range(32)}
    nb = 0
    if dmaV:
        for i, g in enumerate((1, 3, 7, 9)):
            D[g].append(f"buffer_load_dwordx4 v{V_DMA}, s[{SRD_KV}:{SRD_KV+3}], s{sV} offen offset:{i*1024} lds"); nb += 1
    if dmaK:
        for i, g in enumerate((13, 17, 19, 21)):
            D[g].append(f"buffer_load_dwordx4 v{V_DMA}, s[{SRD_KV}:{SRD_KV+3}], s{sK} offen offset:{i*1024} lds")
            if g < 15: nb += 1
    def wait(tags):
        idx = [i for i, t in enumerate(q) if t in tags]
        if not idx: return None
        n = len(q) - 1 - max(idx)
        del q[:max(idx)+1]
        return f"s_waitcnt lgkmcnt({min(n,15)})"
    waits = {5: ["K6", "K7", "V2", "V3"], 11: ["V4","V5","V6","V7"], 31: ["K0","K1","K2","K3","K4","K5","V0","V1"],
             15: ["QB%d" % i for i in range(8)]}
    waits[31] += ["QA%d" % i for i in range(8)]
    for g in range(32):
        if M[g]: A(M[g])
        if g == 1 and dmaV:
            A(mV)
            if not G[1]: A("s_nop 0")
        if g == 11 and dmaK: pass
        for t in G[g]:
            if "nosm" in X and sm1 is not None and sm0 is not None: continue
            if "noexp" in X and t.startswith("v_exp"): t = t.replace("v_exp_f32", "v_mov_b32")
            A(t)
        for tag, t in R[g]:
            if not ("nord" in X and sm1 is not None and sm0 is not None): A(t)
            q.append(tag)
        if g in waits:
            w = wait(waits[g])
            if w: A(w)
        for t in salu.get(g, []):
            if t.endswith(":"): A.label(t[:-1])
            else: A(t)
        if g == 11 and dmaK: A(mK)
        for t in D[g]:
            if "nodma" not in X: A(t)
        if g == 15 and barrier:
            if "novm" not in X: A(f"s_waitcnt vmcnt({nprev + nb})")
            if "nobar" not in X: A("s_barrier")
        for t in nops.get(g, []): A(t)
    if std_exit: assert q == STD_Q, q
    return q

def toggle():
    return [f"v_xor_b32 v{V_X}, 0x10000, v{V_X}", f"v_xor_b32 v{V_Y}, 0x10000, v{V_Y}", f"s_xor_b32 s{S_MX}, s{S_MX}, 0x10000"]

def pair(A, kind, nprev=8, hook=None, extra_prev=0, hook0=None, nprev0=8, nprev1=8):
    o = O_S if kind[0] == "S" else O_L
    l0, l1 = (L0S, L1S) if kind[0] == "S" else (L0L, L1L)
    kupd = [f"s_add_u32 s{S_K}, s{S_K}, 0x10000"] if kind != "SP" else [f"s_mov_b32 s{S_K}, 0"]
    sal_even = {5: kupd, 23: [f"s_add_u32 s{S_KB}, s{S_K}, 0x8000", f"s_add_u32 s{S_VA}, s{S_K}, 0x4000"]}
    tg = toggle()
    sal_odd = {23: [f"s_add_u32 s{S_VP}, s{S_K}, 0xc000"], 31: tg}
    if kind[1] == "R":
        for g_, L_ in (hook0 or {}).items(): sal_even[g_] = sal_even.get(g_, []) + L_
        step(A, 0, "0", "0", o, l1, l0, l0, l1, salu=sal_even, nprev=nprev0)
        step(A, 1, "0", "0", o, l1, l0, l0, l1, salu=sal_odd, nprev=nprev1)
    elif kind == "SP":
        step(A, 0, "0", "0", o, l1, l0, l0, l1, salu=sal_even)
        step(A, 1, vr(BA0,16), vr(BA1,16), o, l1, l0, l0, l1, salu=sal_odd)
    elif kind == "SL":
        def qr(tag, dst, f): return (f"{tag}{f}", f"ds_read_b128 {vr(dst+4*f)}, v{V_QLA} offset:{f*1024}")
        ex = {}
        for f, g in enumerate((5, 9, 11, 11, 13, 15, 15, 23)): ex.setdefault(g, []).append(qr("QA", Q0, f))
        se = dict(sal_even); se[23] = se[23] + [f"v_xor_b32 v{V_QLA}, 0x2000, v{V_QLA}"]
        for f, g in enumerate((25, 27, 29)): ex.setdefault(g, []).append(qr("QB", Q1, f))
        x = step(A, 0, vr(BB0,16), vr(BB1,16), o, l1, l0, l0, l1, salu=se, extra=ex, std_exit=False)
        ex = {}
        for f, g in zip(range(3, 8), (5, 9, 11, 11, 13)): ex.setdefault(g, []).append(qr("QB", Q1, f))
        step(A, 1, "0", "0", o, L1S, L0S, L0L, L1S, salu=sal_odd, extra=ex, entry=x)
    elif kind == "LP":
        step(A, 0, "0", "0", o, l1, l0, l0, l1, salu=dict(hook0 or {}), dmaK=False, nprev=nprev0)
        sal = dict(hook or {}); sal[31] = sal.get(31, []) + tg
        step(A, 1, vr(BA0,16), vr(BA1,16), o, l1, l0, l0, l1, salu=sal, dmaK=False, dmaV=False, nprev=nprev1)
    elif kind == "LL":
        x = step(A, 0, vr(BB0,16), vr(BB1,16), o, l1, l0, l0, l1, dmaK=False, dmaV=False, nprev=extra_prev, rdK=False, std_exit=False, salu=dict(hook0 or {}))
        step(A, 1, None, None, o, l1, l0, None, l1, dmaK=False, dmaV=False, rdK=False, rdV2=False, barrier=False,
             entry=x, std_exit=False, nops={16: ["s_nop 1"]})

def emit_attn2(A, wgid="s2", stamp=None, fallback=True, g2=False, g3=False, fuse=False):
    import k2
    st_ = stamp if stamp else (lambda k: None)
    SM = dict(x.split(":") for x in os.environ.get("SM", "0:0,1:1,2:2,3:3,4:4,5:5,6:6").split(","))
    def st(k):
        if str(k) in SM: st_(int(SM[str(k)]))
    ool = []
    gate_ool = []
    GS = int(os.environ.get("GS", "3"))
    load_ptr(A, 40, KA_WQ); load_ptr(A, 42, KA_WS)
    if g2: k2.g2_ptrs(A)
    if g3 == 2:
        import g3v2
        g3v2.ptr(A)
    A("v_lshrrev_b32 v10, 6, v0")
    A("v_and_b32 v11, 63, v0")
    A(f"v_readfirstlane_b32 s{S_W}, v10")
    A(f"s_and_b32 s{S_HEAD}, {wgid}, 7")
    A(f"s_lshr_b32 s{S_TMP}, {wgid}, 3")
    A(f"s_and_b32 s{S_TMP}, s{S_TMP}, 3")
    A(f"s_lshl_b32 s{S_TMP}, s{S_TMP}, 3")
    A(f"s_add_u32 s{S_HEAD}, s{S_HEAD}, s{S_TMP}")
    A(f"s_lshr_b32 s{S_J}, {wgid}, 5")
    A(f"s_lshl_b32 s{S_QBS}, s{S_J}, 2"); A(f"s_add_u32 s{S_QBS}, s{S_QBS}, s{S_W}")
    A(f"s_sub_u32 s{S_QBL}, 15, s{S_J}"); A(f"s_lshl_b32 s{S_QBL}, s{S_QBL}, 2"); A(f"s_add_u32 s{S_QBL}, s{S_QBL}, s{S_W}")
    A(f"s_lshl_b32 s{S_W4K}, s{S_W}, 12")
    A(f"s_lshl_b32 s{S_CSO}, s{S_HEAD}, 12")
    A(f"v_lshlrev_b32 v2, 4, v11")
    A(f"v_add_u32 v{V_DMA}, s{S_W4K}, v2")
    A(f"s_cmp_eq_u32 s{S_J}, 0")
    A(f"s_cselect_b32 s{S_K}, 0, 0x10000")
    A("s_waitcnt lgkmcnt(0)")
    A(f"s_lshl_b32 s{S_TMP}, s{S_HEAD}, 20")
    A(f"s_add_u32 s4, s42, s{S_TMP}"); A("s_addc_u32 s5, s43, 0")
    if WS_KV: A(f"s_add_u32 s4, s4, {hex(WS_KV)}"); A("s_addc_u32 s5, s5, 0")
    A("s_mov_b32 s6, 0x100000"); A("s_mov_b32 s7, 0x00020000")
    A(f"s_lshl_b32 s{S_TMP}, s{S_HEAD}, 8")
    A(f"s_add_u32 s8, s40, s{S_TMP}"); A("s_addc_u32 s9, s41, 0")
    A(f"s_sub_u32 s10, 0x400000, s{S_TMP}"); A("s_mov_b32 s11, 0x00020000")
    srd_off(A, SRD_XN, 42, WS_XNF, 0x200000)
    srd_off(A, SRD_CTX, 42, WS_CTX, 0x1000000)
    srd_off(A, SRD_QS, 42, WS_QS, 0x800000)
    VW, VB0, VB1, VT = 12, 16, 17, 22
    A("v_lshrrev_b32 v13, 4, v11")
    A("v_and_b32 v14, 15, v11")
    A("v_lshlrev_b32 v15, 2, v13")
    A("v_xor_b32 v15, v14, v15")
    A("v_lshlrev_b32 v15, 4, v15")
    A(f"v_lshl_add_u32 v{VW}, v13, 13, v15")
    A(f"s_lshl_b32 s{S_TMP}, s{S_W}, 18")
    A(f"v_add_u32 v{VW}, s{S_TMP}, v{VW}")
    A("v_and_b32 v18, 1, v13")
    A("v_lshrrev_b32 v19, 5, v11")
    A("v_lshl_add_u32 v20, v19, 4, v14")
    A("v_lshlrev_b32 v20, 4, v20")
    A("v_lshl_add_u32 v21, v18, 14, v20")
    A(f"s_lshl_b32 s{S_TMP}, s{S_QBS}, 15"); A(f"v_add_u32 v{VB0}, s{S_TMP}, v21")
    A(f"s_lshl_b32 s{S_TMP}, s{S_QBL}, 15"); A(f"v_add_u32 v{VB1}, s{S_TMP}, v21")
    A("v_lshrrev_b32 v26, 2, v14")
    A("v_lshrrev_b32 v27, 1, v13")
    A("v_lshl_add_u32 v27, v27, 3, v26")
    A("v_lshlrev_b32 v27, 8, v27")
    A("v_bfe_u32 v28, v14, 1, 1")
    A("v_lshl_add_u32 v28, v18, 1, v28")
    A("v_lshl_add_u32 v27, v28, 4, v27")
    A("v_and_b32 v28, 1, v14")
    A("v_lshl_add_u32 v27, v28, 3, v27")
    for db in range(4):
        A(f"v_xor_b32 v28, {db}, v26")
        A(f"v_lshl_add_u32 v{VT+db}, v28, 6, v27")
    vm = VM()
    WBUF = [LDS_X, 65536, 98304, LDS_X]
    A(f"s_lshl_b32 s{S_WM}, s{S_W}, 13")
    def wdma(c):
        R = []
        for i in range(8):
            R.append([f"s_add_u32 m0, s{S_WM}, {WBUF[c] + i*1024}",
                      f"s_mov_b32 s{S_WS}, {(128*c + 4*i)*8192}",
                      f"buffer_load_dwordx4 v{VW}, s[8:11], s{S_WS} offen lds"])
        return R
    def bload(c, s):
        p = c & 1
        return [f"buffer_load_dwordx4 {ar(64*p + 32*b + 4*s)}, v{vx}, s[12:15], s{45+c} offen offset:{512*s}" for b, vx in ((0, VB0), (1, VB1))]
    for c in range(4): A(f"s_mov_b32 s{45+c}, {4096*c}")
    def kvdma(ldsbase, soff):
        R = [[f"s_add_u32 m0, s{S_W4K}, {ldsbase}"] + ([f"s_mov_b32 s{S_WS}, {soff}"] if isinstance(soff, int) else [])]
        so = f"s{S_WS}" if isinstance(soff, int) else soff
        for i in range(4):
            R.append([f"buffer_load_dwordx4 v{V_DMA}, s[4:7], {so} offen offset:{i*1024} lds"])
        return R
    def emit_list(R, tag):
        for g in R:
            if isinstance(g, str): g = [g]
            for t in g:
                A(t)
                if t.startswith("buffer_"): vm.issue(tag)
    LATE = g2 and os.environ.get("LATE", "1") == "1"
    st(0)
    if not g2:
        emit_list(wdma(0), "W0")
        for s in range(8): emit_list(bload(0, s), "B0")
        emit_list(wdma(1), "W1")
        for s in range(8): emit_list(bload(1, s), "B1")
        emit_list(wdma(2), "W2")
    elif LATE:
        k2.LATE[0] = True
        emit_list(wdma(0), "W0")
        for s in range(8): emit_list(bload(0, s), "B0")
        emit_list(wdma(1), "W1")
        k2.g2_setup(A, wgid, S_W, 11, 42)
        if fuse:
            A(f"s_lshr_b32 s{S_TMP}, {wgid}, 3"); A(f"s_lshl_b32 s{S_TMP}, s{S_TMP}, 3"); A(f"s_add_u32 s{S_TMP}, s{S_TMP}, 4")
            A(f"v_mov_b32 v58, s{S_TMP}"); A("v_bfrev_b32 v59, 1")
            A(f"s_lshl_b32 s{S_TMP}, s{S_W}, 6"); A(f"v_add_u32 v56, s{S_TMP}, v11")
            A("v_cmp_eq_u32 vcc, 0, v56"); A("s_nop 1")
            A("v_cndmask_b32 v58, v59, v58, vcc")
            A("v_mov_b32 v59, 0x100")
            A("v_and_b32 v56, 31, v11"); A("v_lshlrev_b32 v56, 3, v56"); A("v_add_u32 v56, 4, v56")
    else:
        k2.g2_setup(A, wgid, S_W, 11, 42)
        for c in range(4): emit_list(k2.g2_loads(c), f"G{c}")
        emit_list(k2.g2_xloads(SRD_XN), "GX")
        emit_list(wdma(0), "W0")
        later = [([t for s in range(8) for t in bload(0, s)], "B0"), (wdma(1), "W1"), ([t for s in range(8) for t in bload(1, s)], "B1"), (wdma(2), "W2")]
        flat = [(g, tag) for (L, tag) in later for g in L]
        per = (len(flat) + 3) // 4
        for c in range(4):
            A(f"s_waitcnt vmcnt({vm.cnt([f'G{c}'])})")
            st(10 + c)
            A("s_barrier")
            for t in k2.g2_wreads(c): A(t)
            for g, tag in flat[c*per:(c+1)*per]: emit_list([g], tag)
            for s in range(8):
                A(f"s_waitcnt lgkmcnt({min(14 - 2*s, 15)})")
                A(k2.g2_mfma(c, s))
        A(f"s_waitcnt vmcnt({vm.cnt(['GX'])})")
        st(6)
        k2.g2_epilogue(A, vm)
        A("s_barrier")
    def wreads(c, s):
        p = s & 1
        R = []
        for db in range(4):
            for rd in range(2):
                b = 128 + 16*p + 4*db + 2*rd
                R.append(f"ds_read_b64_tr_b16 a[{b}:{b+1}], v{VT+db} offset:{4096*s + 1024*rd}")
        return R
    def setbuf(c):
        d = WBUF[c] - (WBUF[c-1] if c else 0)
        return [(f"v_add_u32 v{VT+db}, {d}, v{VT+db}" if d >= 0 else f"v_subrev_u32 v{VT+db}, {-d}, v{VT+db}") for db in range(4)]
    for t in setbuf(0): A(t)
    A(f"s_waitcnt vmcnt({vm.cnt(['W0','B0'])})")
    A("s_barrier")
    if fuse:
        A(f"buffer_atomic_add v59, v58, s[{k2.SRD_DBG}:{k2.SRD_DBG+3}], 0 offen sc1"); vm.issue("SIG0")
    st(1)
    for t in wreads(0, 0): A(t)
    QACC = lambda b, db: vr(128 + 64*b + 16*db, 16)
    kvlist = [(KE, 0), (KO, 32768), (VE, 16384), (VO, 49152)]
    for c in range(4):
        for s in range(8):
            p = s & 1
            pre = ["s_waitcnt lgkmcnt(0)"]
            last = (s == 7)
            if last and c < 3:
                n = vm.cnt([f"W{c+1}", f"B{c+1}"])
                pre = [f"s_waitcnt vmcnt({n}) lgkmcnt(0)", "s_barrier"] + setbuf(c+1)
            if fuse and last and c == 1:
                n = vm.cnt([f"W{c+1}", f"B{c+1}", "GATE"])
                lsp, lok = A.newlabel("GSPIN"), A.newlabel("GOK")
                pre = [f"s_waitcnt vmcnt({n}) lgkmcnt(0)", "v_cmp_eq_u32 vcc, 0x808, v57", "s_barrier"] + setbuf(c+1) + \
                      ["s_cmp_eq_u64 vcc, -1", f"s_cbranch_scc0 {lsp}", f"{lok}:"]
                lp_ = A.newlabel("GSP")
                ool.extend([f"{lsp}:", f"s_mov_b32 s{S_TMP2}, 65536", f"{lp_}:", "s_sleep 8",
                            f"buffer_load_dword v57, v56, s[{k2.SRD_DBG}:{k2.SRD_DBG+3}], 0 offen sc1", "s_waitcnt vmcnt(0)",
                            "v_cmp_eq_u32 vcc, 0x808, v57", "s_cmp_eq_u64 vcc, -1", f"s_cbranch_scc1 {lok}",
                            f"s_sub_u32 s{S_TMP2}, s{S_TMP2}, 1", f"s_cmp_lg_u32 s{S_TMP2}, 0", f"s_cbranch_scc1 {lp_}", f"s_branch {lok}"])
            if last and c == 3:
                pre = ["s_waitcnt lgkmcnt(0)", "s_barrier"]
            M = []
            for db in range(4):
                for b in range(2):
                    cc = "0" if (c == 0 and s == 0) else QACC(b, db)
                    M.append(f"v_mfma_f32_32x32x16_bf16 {QACC(b,db)}, {ar(128+16*p+4*db)}, {ar(64*(c&1)+32*b+4*s)}, {cc}")
            F = []
            if not last: F += [(i, t) for i, t in enumerate(wreads(c, s+1))]
            elif c < 3: F += [(i, t) for i, t in enumerate(wreads(c+1, 0))]
            ext = []
            if s > 0 and c + 2 <= 3:
                ext += [(t, f"B{c+2}") for t in bload(c+2, s-1)]
            if last and c == 0:
                for g in wdma(3): ext += [(t, "W3") for t in g]
            if last and c == 1:
                for g in kvdma(65536 + KE, f"s{S_K}"): ext += [(t, "KV2") for t in g]
            if c == 0 and s in (1, 3, 5, 6) and not LATE:
                b_, o_ = kvlist[(1, 3, 5, 6).index(s)]
                for g in kvdma(b_, o_): ext += [(t, "KV0") for t in g]
            if LATE:
                pre_ext = []
                if c == 0 and s < 4:
                    pre_ext += [(t, "B1") for t in bload(1, 2*s) + bload(1, 2*s+1)]
                if c == 0 and s in (4, 5):
                    for g in wdma(2)[4*(s-4):4*(s-4)+4]: pre_ext += [(t, "W2") for t in g]
                if c == 1:
                    for g in k2.g2_wloads(s >> 1)[2*(s & 1):2*(s & 1)+2]: pre_ext += [(t, "G") for t in g]
                if c == 2:
                    for g in k2.g2_bloads(s >> 1)[4*(s & 1):4*(s & 1)+4]: pre_ext += [(t, "G") for t in g]
                if c == 3 and s == 0:
                    for g in k2.g2_xloads(SRD_XN): pre_ext += [(t, "G") for t in g]
                if fuse and c == 1 and s == GS:
                    pre_ext = [(f"buffer_load_dword v57, v56, s[{k2.SRD_DBG}:{k2.SRD_DBG+3}], 0 offen sc1", "GATE")] + pre_ext
                ext = pre_ext + ext
            for t in pre:
                if t.endswith(":"): A.label(t[:-1])
                else: A(t)
            if g2 and last and c == 1 and not LATE:
                A(k2.g2_signal()); vm.issue("SIG")
            for k, (t, tag) in enumerate(ext):
                g = min(7, k*8 // max(len(ext), 1))
                F.append((g, t))
                if t.startswith("buffer_"): vm.issue(tag)
            interleave(A, M, F)
            if last and c + 2 <= 3:
                for t in bload(c+2, 7): A(t); vm.issue(f"B{c+2}")
    if LATE:
        A(f"s_waitcnt vmcnt({vm.cnt(['G'])})")
        A("s_barrier")
        st(6)
        for t in k2.g2_wreads(0): A(t)
        for c in range(4):
            nx = k2.g2_wreads(c+1) if c < 3 else []
            for s in range(8):
                for t in nx[2*s:2*s+2]: A(t)
                A(f"s_waitcnt lgkmcnt({15 if c < 3 else 14 - 2*s})")
                A(k2.g2_mfma(c, s))
        A("s_barrier")
        for b_, o_ in kvlist: emit_list(kvdma(b_, o_), "KV0")
        k2.g2_epilogue(A, vm)
    st(2)
    A("v_and_b32 v11, 63, v0")
    A("v_lshlrev_b32 v2, 4, v11")
    A(f"s_lshl_b32 s{S_TMP}, s{S_W}, 13")
    A(f"s_add_u32 s{S_TMP2}, s{S_TMP}, {LDS_X}")
    A(f"v_add_u32 v{V_QLA}, s{S_TMP2}, v2")
    A(f"s_add_u32 s{S_TMP2}, s{S_TMP}, 98304")
    A(f"v_add_u32 v4, s{S_TMP2}, v2")
    A(f"v_xor_b32 v5, 0x2000, v4")
    A(f"s_lshl_b32 s{S_TMP2}, {wgid}, 15"); A(f"s_add_u32 s{S_TMP2}, s{S_TMP2}, s{S_TMP}")
    A(f"s_mov_b32 s{S_A}, s{S_TMP2}")
    for r in range(4): A(f"v_mov_b32 v{S0+r}, 0")
    A("s_nop 1")
    Z = [f"v_mfma_f32_32x32x16_bf16 {ar(16*i,16)}, {vr(S0)}, {vr(S0)}, 0" for i in range(16)]
    F = []
    def cv(dst, b, f):
        db, t = f >> 1, f & 1
        return [f"v_cvt_pk_bf16_f32 v{dst + 4*f + r}, v{128 + 64*b + 16*db + 8*t + 2*r}, v{128 + 64*b + 16*db + 8*t + 2*r + 1}" for r in range(4)]
    g = 2
    for f in range(8):
        for t in cv(Q0, 0, f): F.append((g, t))
        F.append((g, f"ds_write_b128 v4, {vr(Q0+4*f)} offset:{f*1024}"))
        g += (f & 1) ^ 1 if False else 0
        if f & 1: g += 1
    for f in range(8):
        for t in cv(Q1, 1, f): F.append((g, t))
        F.append((g, f"ds_write_b128 v{V_QLA}, {vr(Q1+4*f)} offset:{f*1024}"))
        if f & 1: g += 1
    for f in range(8):
        F.append((g + f//2, f"buffer_store_dwordx4 {vr(Q0+4*f)}, v2, s[{SRD_QS}:{SRD_QS+3}], s{S_A} offen offset:{(f&3)*1024}" if f < 4 else
                  f"buffer_store_dwordx4 {vr(Q0+4*f)}, v3, s[{SRD_QS}:{SRD_QS+3}], s{S_B} offen offset:{(f&3)*1024}"))
    F = [(a_, t.replace("v3, s[56:59], s34", "v2, s[56:59], s34")) for a_, t in F]
    A(f"s_add_u32 s{S_B}, s{S_A}, 4096")
    interleave(A, Z, F)
    for _ in range(8): vm.issue("QS")
    A(f"s_and_b32 s{S_TMP}, s{S_W}, 1"); A(f"s_lshl_b32 s{S_TMP}, s{S_TMP}, 13")
    A(f"v_add_u32 v{V_Y}, s{S_TMP}, v2")
    A(f"v_add_u32 v{V_X}, 0x10000, v{V_Y}")
    A(f"s_add_u32 s{S_MX}, s{S_W4K}, 0x10000")
    A(f"s_add_u32 s{S_KB}, s{S_K}, 0x8000"); A(f"s_add_u32 s{S_VA}, s{S_K}, 0x4000")
    A(f"s_add_u32 s{S_VP}, s{S_K}, 0xc000")
    A(f"s_waitcnt vmcnt({vm.cnt(['KV0'])}) lgkmcnt(0)" if LATE else "s_waitcnt lgkmcnt(0)")
    A("s_barrier")
    for f in range(8): A(f"ds_read_b128 {vr(Q1+4*f)}, v5 offset:{f*1024}")
    for s in range(8): A(f"ds_read_b128 {vr(KF+4*s)}, v{V_Y} offset:{KE+s*1024}")
    A("v_and_b32 v11, 31, v11"); A("v_bfe_u32 v12, v2, 9, 1")
    A("v_lshlrev_b32 v12, 2, v12"); A("v_sub_u32 v11, v11, v12")
    A(f"v_mov_b32 v12, {NEG}")
    A(f"s_cmp_lt_u32 s{S_W}, 2"); A(f"s_cselect_b32 s{S_A}, -1, 0"); A(f"s_cselect_b32 s{S_B}, {NEG}, 0"); A(f"s_cselect_b32 s{S_D}, 0, -1")
    A(f"s_cmp_eq_u32 s{S_W}, 1"); A(f"s_cselect_b32 s{S_TMP}, {NEG}, 0")
    A(f"s_cmp_eq_u32 s{S_W}, 2"); A(f"s_cselect_b32 s{S_TMP2}, 0, {NEG}")
    for r in range(16):
        key = 16*((r >> 2) & 1) + 8*(r >> 3) + (r & 3)
        A(f"v_cmp_gt_i32 vcc, {key}, v11")
        A(f"v_mov_b32 v{BA1+r}, s{S_TMP}")
        A(f"v_mov_b32 v{BB1+r}, s{S_TMP2}")
        A(f"v_cndmask_b32 v13, 0, v12, vcc")
        A(f"v_and_b32 v{BA0+r}, s{S_A}, v13")
        A(f"v_and_b32 v13, s{S_D}, v13")
        A(f"v_or_b32 v{BB0+r}, s{S_B}, v13")
    A(f"s_cmp_eq_u32 s{S_J}, 0"); A(f"s_cselect_b32 s{S_A}, -1, 0")
    for r in range(16):
        A(f"v_and_b32 v{S0+r}, s{S_A}, v{BA0+r}")
        A(f"v_and_b32 v{S1+r}, s{S_A}, v{BA1+r}")
    for r in range(8, 16): A(f"v_mov_b32 v{r}, 0")
    A(f"s_waitcnt vmcnt({vm.cnt(['G2S'])}) lgkmcnt(0)" if LATE else "s_waitcnt lgkmcnt(0)")
    A("s_barrier")
    if LATE: A(k2.g2_signal())
    st(3)
    step(A, 1, vr(S0,16), vr(S1,16), None, None, None, L0S, None, rdV1=False, entry=[], nprev=0,
         salu={31: toggle()}, nops={15: ["s_nop 7", "s_nop 7"]})
    lSP, lSL, lSR = A.newlabel("SP"), A.newlabel("SL"), A.newlabel("SR")
    A(f"s_cmp_eq_u32 s{S_J}, 0"); A(f"s_cbranch_scc1 {lSL}")
    A(f"s_sub_u32 s{S_CNT}, s{S_J}, 1")
    A(f"s_cmp_eq_u32 s{S_CNT}, 0"); A(f"s_cbranch_scc1 {lSP}")
    A.label(lSR)
    pair(A, "SR")
    A(f"s_sub_u32 s{S_CNT}, s{S_CNT}, 1"); A(f"s_cmp_lg_u32 s{S_CNT}, 0"); A(f"s_cbranch_scc1 {lSR}")
    A.label(lSP)
    pair(A, "SP")
    A.label(lSL)
    pair(A, "SL")
    st(4)
    if g3 == 2:
        g3v2.scalars(A, wgid, S_W)
        g3v2.wd_voffset(A, S_W, V_DMA, E[0], E[0]+1)
        A(f"v_add_f32 v{L0S}, v{L0S}, v{L0S+1}"); A(f"v_add_f32 v{L1S}, v{L1S}, v{L1S+1}")
        for t_ in g3v2.poll_loads(L0S+1, L1S+1): A(t_)
    A(f"s_sub_u32 s{S_CNT}, 14, s{S_J}")
    lLR = A.newlabel("LR")
    A.label(lLR)
    pair(A, "LR")
    A(f"s_sub_u32 s{S_CNT}, s{S_CNT}, 1"); A(f"s_cmp_lg_u32 s{S_CNT}, 0"); A(f"s_cbranch_scc1 {lLR}")
    vm = VM()
    if g3 == 2:
        def put(h, c, gaps):
            for g_, grp in zip(gaps, g3v2.wdma(c, S_W4K)):
                h.setdefault(g_, []).extend(grp); vm.issue(f"W{c}")
        h0, h1, h2 = {16: g3v2.check_hook(A, ool, L0S+1, L1S+1)}, {}, {}
        TOUCH = "notouch" not in X
        if TOUCH:
            for g_, L_ in g3v2.xtouch(wgid, S_W, V_DMA, L1S+1).items(): h0.setdefault(g_, []).extend(L_)
            vm.issue("TOUCH")
        put(h0, 0, (17, 19, 21, 23) if not TOUCH else (23, 24, 25, 26)); put(h0, 1, (25, 27, 29, 31) if not TOUCH else (27, 28, 29, 31))
        put(h1, 2, (1, 3, 5, 7)); put(h1, 3, (9, 11, 13, 17))
        put(h2, 4, (1, 3, 5, 7))
        pair(A, "LP", hook0=h0, hook=h1, nprev1=4+8+7+TOUCH)
        pair(A, "LL", hook0=h2, extra_prev=8+8+4+TOUCH)
    else:
        pair(A, "LP", nprev1=4)
        pair(A, "LL")
    st(5)
    if g3 == 2:
        pass
    elif g3:
        A(f"s_and_b32 s{k2.T0}, {wgid}, 7"); A(f"s_lshr_b32 s{k2.T2}, {wgid}, 3"); A(f"s_and_b32 s{k2.T2}, s{k2.T2}, 3")
        A(f"s_lshl_b32 s{k2.T2}, s{k2.T2}, 3"); A(f"s_add_u32 s{k2.T0}, s{k2.T0}, s{k2.T2}"); A(f"s_lshl_b32 s{k2.T0}, s{k2.T0}, 3")
        A("v_mov_b32 v60, 0")
        A(f"buffer_load_dword v60, v60, s[{k2.SRD_DBG}:{k2.SRD_DBG+3}], s{k2.T0} offen sc1")
    A("s_barrier")
    A(f"v_and_b32 v2, 0x3ff, v{V_Y}")
    A(f"s_lshl_b32 s{S_TMP}, s{S_W}, {14 if g3 == 2 else 15}")
    A(f"v_add_u32 v3, s{S_TMP}, v2")
    A(f"v_xor_b32 v1, {hex(0x4000 if g3 == 2 else 0x8000)}, v3")
    A(f"v_lshrrev_b32 v4, 1, v2")
    A(f"s_lshl_b32 s{S_TMP}, s{S_W}, 9"); A(f"s_add_u32 s{S_TMP}, s{S_TMP}, {LDS_X}")
    A(f"v_add_u32 v4, s{S_TMP}, v4")
    A(f"v_xor_b32 v5, 0x200, v4")
    if g3 == 2:
        A(f"v_mov_b32 v6, v{L1S}"); A(f"v_add_f32 v7, v{L1L}, v{L1L+1}")
        A(f"v_add_f32 v{L0L}, v{L0L}, v{L0L+1}")
    else:
        A(f"v_add_f32 v6, v{L1S}, v{L1S+1}"); A(f"v_add_f32 v7, v{L1L}, v{L1L+1}")
        A(f"v_add_f32 v{L0S}, v{L0S}, v{L0S+1}"); A(f"v_add_f32 v{L0L}, v{L0L}, v{L0L+1}")
    A("ds_write_b64 v4, v[6:7]")
    A("s_nop 7")
    for i in range(16):
        A(f"ds_write_b128 v3, {ar(O_S+64+4*i)} offset:{i*1024}")
        for r in range(4): A(f"v_accvgpr_read_b32 v{128+4*i+r}, a{O_S+4*i+r}")
        if g3 == 2 and False:
            for r in range(4): A(f"v_accvgpr_read_b32 v{192+4*i+r}, a{O_L+4*i+r}")
    for i in range(16):
        if g3 != 2: A(f"ds_write_b128 v3, {ar(O_L+64+4*i)} offset:{16384+i*1024}")
        for r in range(4): A(f"v_accvgpr_read_b32 v{192+4*i+r}, a{O_L+4*i+r}")
    A("v_lshrrev_b32 v11, 4, v2")
    A("v_and_b32 v14, 15, v11"); A("v_lshrrev_b32 v19, 5, v11"); A("v_bfe_u32 v18, v11, 4, 1")
    A("v_lshl_add_u32 v20, v19, 4, v14"); A("v_lshlrev_b32 v20, 4, v20")
    A("v_lshl_add_u32 v21, v18, 17, v20")
    V_CS, V_CL = 16, 17
    A(f"s_lshl_b32 s{S_TMP}, s{S_QBS}, 18"); A(f"v_add_u32 v{V_CS}, s{S_TMP}, v21")
    A(f"s_lshl_b32 s{S_TMP}, s{S_QBL}, 18"); A(f"v_add_u32 v{V_CL}, s{S_TMP}, v21")
    if g3 == 2: g3v2.b_voffsets(A, 11, 18, 19)
    A("s_waitcnt lgkmcnt(0)")
    st(30)
    if g3 == 2:
        for t in g3v2.st_loads():
            A(t)
            if t.startswith("buffer_"): vm.issue("ST")
    A("s_barrier")
    A("ds_read_b64 v[6:7], v5")
    PT = 18
    def prd(which, grp, dst):
        return [f"ds_read_b128 {vr(dst+4*h)}, v1 offset:{(0 if g3 == 2 else which*16384) + (2*grp+h)*1024}" for h in range(2)]
    PB = [96, 104, 112, 120]
    for gi in range(4):
        for t in prd(0, gi, PB[gi]): A(t)
    def half_sum(x, y, op="v_add_f32"):
        A(f"v_mov_b32 v{y}, v{x}"); A("s_nop 1")
        A(f"v_permlane32_swap_b32 v{x}, v{y}"); A("s_nop 1")
        A(f"{op} v{x}, v{x}, v{y}")
    A("s_waitcnt lgkmcnt(8)")
    A(f"v_add_f32 v{L0S}, v{L0S}, v6"); A(f"v_add_f32 v{L0L}, v{L0L}, v7")
    half_sum(L0S, 9); half_sum(L0L, 13)
    lfS, lfL, lrS, lrL = A.newlabel("FS"), A.newlabel("FL"), A.newlabel("RS"), A.newlabel("RL")
    def rangechk(x, mask):
        A(f"v_mov_b32 v9, 0x2b800000")
        A(f"v_cmp_ge_f32 vcc, v{x}, v9")
        A(f"v_mov_b32 v9, 0x53800000")
        A(f"v_cmp_le_f32 s[50:51], v{x}, v9")
        A("s_nop 1")
        A("s_and_b64 vcc, vcc, s[50:51]")
        A("s_cmp_eq_u64 vcc, -1")
        A(f"s_cselect_b32 s{mask}, 0, 1")
    rangechk(L0S, S_A); rangechk(L0L, S_B)
    A(f"v_rcp_f32 v{L0S}, v{L0S}"); A(f"v_rcp_f32 v{L0L}, v{L0L}")
    A("s_nop 0")
    A(f"v_mov_b32 v9, v{L0S}"); A(f"v_mov_b32 v13, v{L0L}")
    TB = [50, 54]
    for n in range(16):
        which, grp = n >> 3, n & 7
        own = (128 if which == 0 else 192) + 8*grp
        pb = PB[n & 3]
        x = L0S if which == 0 else L0L
        outstanding = min(15 - n, 3) * 2
        if n == 0: st(31)
        if n == 8: st(32)
        if g3 == 2:
            if n < 5: A(f"s_waitcnt lgkmcnt({min(7 - n, 3) * 2})")
            elif n == 5: A("s_waitcnt lgkmcnt(0)"); A("s_barrier")
            elif n == 8:
                A("s_waitcnt lgkmcnt(0)"); A("s_barrier")
                for gi in range(4):
                    for t in prd(1, gi, PB[gi]): A(t)
            if n >= 8:
                for s_ in (2*n, 2*n+1): A(g3v2.b_load(s_)); vm.issue(f"B{s_}")
                A(f"s_waitcnt lgkmcnt({outstanding})")
            else:
                for s_ in (2*n, 2*n+1): A(g3v2.b_load(s_)); vm.issue(f"B{s_}")
        else:
            A(f"s_waitcnt lgkmcnt({outstanding})")
        for h in range(4): A(f"v_pk_add_f32 {vr(own+2*h,2)}, {vr(own+2*h,2)}, {vr(pb+2*h,2)}")
        if n + 4 < 16 and not (g3 == 2 and 4 <= n < 8):
            for t in prd((n+4) >> 3, (n+4) & 7, pb): A(t)
        if g3 == 2 and 5 <= n < 8:
            for i in {5: range(0, 6), 6: range(6, 11), 7: range(11, 16)}[n]:
                A(f"ds_write_b128 v3, {ar(O_L+64+4*i)} offset:{i*1024}")
        for h in range(4): A(f"v_pk_mul_f32 {vr(own+2*h,2)}, {vr(own+2*h,2)}, {vr(x,2)}")
        tb = TB[n & 1]
        for h in range(4): A(f"v_cvt_pk_bf16_f32 v{tb+h}, v{own+2*h}, v{own+2*h+1}")
        db, t = grp >> 1, grp & 1
        vc = V_CS if which == 0 else V_CL
        A(f"buffer_store_dwordx4 {vr(tb)}, v{vc}, s[16:19], s{S_CSO} offen offset:{db*1024+t*512}"); vm.issue("CTX")
    st(33)
    if fallback:
        A(f"s_cmp_eq_u32 s{S_B}, 0"); A(f"s_cbranch_scc0 {lfL}")
        A.label(lrL)
        A(f"s_cmp_eq_u32 s{S_A}, 0"); A(f"s_cbranch_scc0 {lfS}")
        A.label(lrS)
        def store_block(vc, rd):
            cnt = 0
            for db in range(4):
                for t in range(2):
                    b = 232 + 12*(cnt & 1); cnt += 1
                    rd(db, t, b)
                    for r in range(4): A(f"v_cvt_pk_bf16_f32 v{b+8+r}, v{b+2*r}, v{b+2*r+1}")
                    A(f"buffer_store_dwordx4 {vr(b+8)}, v{vc}, s[16:19], s{S_CSO} offen offset:{db*1024+t*512}")
        def fallback_code(vc, qb, reload_q):
            FO, FK, FV = 164, 192, 224
            FS, FP, TRI = 32, 48, 128
            m, l, al, t0, t1, ad, l16 = 228, 229, 230, 231, 10, 11, 12
            S_KB_, S_O1, S_O2 = 52, 53, 54
            A("s_waitcnt vmcnt(0)")
            A(f"v_and_b32 v{l16}, 0x3ff, v{V_Y}")
            if reload_q:
                A(f"s_lshl_b32 s{S_O1}, {wgid}, 15"); A(f"s_lshl_b32 s{S_O2}, s{S_W}, 13"); A(f"s_add_u32 s{S_O1}, s{S_O1}, s{S_O2}")
                A(f"s_add_u32 s{S_O2}, s{S_O1}, 4096")
                for f in range(8):
                    A(f"buffer_load_dwordx4 {vr(Q0+4*f)}, v{l16}, s[{SRD_QS}:{SRD_QS+3}], s{S_O1 if f < 4 else S_O2} offen offset:{(f&3)*1024} sc1")
            A(f"v_lshrrev_b32 v{t0}, 4, v{l16}"); A(f"v_lshrrev_b32 v{t1}, 5, v{t0}"); A(f"v_and_b32 v{t0}, 31, v{t0}")
            A(f"v_lshlrev_b32 v{t1}, 2, v{t1}"); A(f"v_sub_u32 v{t0}, v{t0}, v{t1}"); A(f"v_mov_b32 v{t1}, {NEG}")
            for r in range(16):
                key = 16*((r >> 2) & 1) + 8*(r >> 3) + (r & 3)
                A(f"v_cmp_gt_i32 vcc, {key}, v{t0}"); A("s_nop 1")
                A(f"v_cndmask_b32 v{TRI+r}, 0, v{t1}, vcc")
            for r in range(64): A(f"v_mov_b32 v{FO+r}, 0")
            A(f"v_mov_b32 v{m}, {NEG}"); A(f"v_mov_b32 v{l}, 0")
            A(f"v_add_u32 v{ad}, 4096, v{l16}")
            A(f"s_mov_b32 s{S_KB_}, 0")
            A("s_waitcnt vmcnt(0)")
            lp, ld_, ln_ = A.newlabel("FP"), A.newlabel("FD"), A.newlabel("FN")
            A.label(lp)
            A(f"s_lshr_b32 s{S_O1}, s{S_KB_}, 1"); A(f"s_lshl_b32 s{S_O1}, s{S_O1}, 15")
            A(f"s_and_b32 s{S_O2}, s{S_KB_}, 1"); A(f"s_lshl_b32 s{S_O2}, s{S_O2}, 13")
            A(f"s_add_u32 s{S_O1}, s{S_O1}, s{S_O2}")
            A(f"s_add_u32 s{S_O2}, s{S_O1}, 16384")
            for s_ in range(8):
                A(f"buffer_load_dwordx4 {ar(FK+4*s_)}, v{l16 if s_ < 4 else ad}, s[4:7], s{S_O1} offen offset:{(s_&3)*1024}")
            for s_ in range(8):
                A(f"buffer_load_dwordx4 {ar(FV+4*s_)}, v{l16 if s_ < 4 else ad}, s[4:7], s{S_O2} offen offset:{(s_&3)*1024}")
            A("s_waitcnt vmcnt(8)")
            A(f"s_cmp_eq_u32 s{S_KB_}, s{qb}")
            A(f"s_cbranch_scc1 {ld_}")
            A(f"v_mfma_f32_32x32x16_bf16 {vr(FS,16)}, {ar(FK)}, {vr(Q0)}, 0")
            A(f"s_branch {ln_}")
            A.label(ld_)
            A(f"v_mfma_f32_32x32x16_bf16 {vr(FS,16)}, {ar(FK)}, {vr(Q0)}, {vr(TRI,16)}")
            A.label(ln_)
            for s_ in range(1, 8):
                A(f"v_mfma_f32_32x32x16_bf16 {vr(FS,16)}, {ar(FK+4*s_)}, {vr(Q0+4*s_)}, {vr(FS,16)}")
            A("s_nop 7"); A("s_nop 7")
            A(f"v_max_f32 v{t0}, v{FS}, v{FS+1}")
            for r in range(2, 16, 2): A(f"v_max3_f32 v{t0}, v{t0}, v{FS+r}, v{FS+r+1}")
            half_sum(t0, t1, "v_max_f32")
            A(f"v_max_f32 v{t0}, v{t0}, v{m}")
            A(f"v_sub_f32 v{al}, v{m}, v{t0}")
            A(f"v_exp_f32 v{al}, v{al}")
            A(f"v_mov_b32 v{m}, v{t0}")
            for r in range(16): A(f"v_sub_f32 v{FS+r}, v{FS+r}, v{m}")
            for r in range(16): A(f"v_exp_f32 v{FS+r}, v{FS+r}")
            A(f"v_mul_f32 v{l}, v{l}, v{al}")
            for r in range(16): A(f"v_add_f32 v{l}, v{l}, v{FS+r}")
            for r in range(8): A(f"v_cvt_pk_bf16_f32 v{FP+r}, v{FS+2*r}, v{FS+2*r+1}")
            for r in range(64): A(f"v_mul_f32 v{FO+r}, v{FO+r}, v{al}")
            A("s_waitcnt vmcnt(0)")
            A("s_nop 1")
            for t in range(2):
                for db in range(4):
                    A(f"v_mfma_f32_32x32x16_bf16 {vr(FO+16*db,16)}, {ar(FV+4*(t*4+db))}, {vr(FP+4*t)}, {vr(FO+16*db,16)}")
            A("s_nop 7"); A("s_nop 7")
            A(f"s_add_u32 s{S_KB_}, s{S_KB_}, 1")
            A(f"s_cmp_le_u32 s{S_KB_}, s{qb}")
            A(f"s_cbranch_scc1 {lp}")
            half_sum(l, t1)
            A(f"v_rcp_f32 v{l}, v{l}")
            A("s_nop 0")
            def rd(db, t, b):
                for r in range(8): A(f"v_mul_f32 v{b+r}, v{FO+16*db+8*t+r}, v{l}")
            store_block(vc, rd)
        le = A.newlabel("AE")
        A(f"s_branch {le}")
        A.label(lfL); fallback_code(V_CL, S_QBL, False); A(f"s_branch {lrL}")
        A.label(lfS); fallback_code(V_CS, S_QBS, True); A(f"s_branch {lrS}")
        A.label(le)
    if g3 == 2:
        lx = A.newlabel("G3X")
        A(f"s_cmp_ge_u32 {wgid}, 224"); A(f"s_cbranch_scc1 {lx}")
        st(7)
        g3v2.main(A, vm, S_W, S_W4K, st)
        le2 = A.newlabel("G3E")
        A(f"s_branch {le2}")
        for t_ in ool:
            if t_.endswith(":"): A.label(t_[:-1])
            else: A(t_)
        A.label(le2)
        if os.environ.get("FILL", "1") == "1":
            import fin2
            lf = A.newlabel("FILLX")
            A(f"s_branch {lf}")
            A.label(lx)
            fin2.emit_fill(A, wgid, S_W)
            A.label(lf)
        else:
            A.label(lx)
    elif g3:
        from bpath import emit_g3
        lx, lsp, lok, lp = A.newlabel("G3X"), A.newlabel("SPIN"), A.newlabel("OK"), A.newlabel("SP")
        A(f"s_cmp_ge_u32 {wgid}, 224"); A(f"s_cbranch_scc1 {lx}")
        A("s_waitcnt vmcnt(16)")
        A(f"v_readfirstlane_b32 s{k2.T2}, v60")
        A(f"s_cmp_ge_u32 s{k2.T2}, 8"); A(f"s_cbranch_scc1 {lok}")
        A(f"s_mov_b32 s{k2.T3}, 65536")
        A.label(lp)
        A("v_mov_b32 v60, 0")
        A(f"buffer_load_dword v60, v60, s[{k2.SRD_DBG}:{k2.SRD_DBG+3}], s{k2.T0} offen sc1")
        A("s_waitcnt vmcnt(0)")
        A(f"v_readfirstlane_b32 s{k2.T2}, v60")
        A(f"s_cmp_ge_u32 s{k2.T2}, 8"); A(f"s_cbranch_scc1 {lok}")
        A("s_sleep 8")
        A(f"s_sub_u32 s{k2.T3}, s{k2.T3}, 1"); A(f"s_cmp_lg_u32 s{k2.T3}, 0"); A(f"s_cbranch_scc1 {lp}")
        A.label(lok)
        A("v_mbcnt_lo_u32_b32 v0, -1, 0"); A("v_mbcnt_hi_u32_b32 v0, -1, v0")
        A(f"s_lshl_b32 s{k2.T2}, s{S_W}, 6"); A(f"v_add_u32 v0, s{k2.T2}, v0")
        A("s_barrier")
        st(7)
        emit_g3(A, wgid, sc1=True, stamp=st)
        A.label(lx)
```

```python
import os
from common import *
from kv import acc, accr, tfr, wfr, wfr_half, LDS_T, LDS_W
from ln import unpack, ln16
from bpath import GC0, GC1, gelu_block, vr, ar

PF1, PF2 = 36, 48
SRD_W1, SRD_H, SRD_XN2, SRD_DBG, SRD_XNF = 52, 56, 80, 84, 76
S_M0G, S_GT, S_POLL, S_GOUT, S_GX = 60, 61, 88, 90, 89
NP = 11
V_B, V_ONE, V_SIG, V_PF, V_TR0, V_TR1, V_WD, V_POLL = 1, 21, 22, 23, 28, 29, 30, 31
PFD = 'a[252:255]'
K1SC = " sc1" if os.environ.get("K1SC", "0") == "1" else ""
V_LP, V_LT, V_LO = 12, 24, 20
A_X = 160
S_MASK, S_8K = 92, 93
G1BASE = [131072, 147456, 0, 16384]
def gB(f): return 160 + 4*f if f < 24 else 32 + 4*(f - 24)

def emit_k1(A, wgid="s2", stamp=None, npoll=1 << 16, fuse=False):
    st = stamp if stamp else (lambda k: None)
    ool = []
    load_ptr(A, 40, KA_CKV); load_ptr(A, 42, KA_WUK); load_ptr(A, 44, KA_WUV); load_ptr(A, 46, KA_WS)
    load_ptr(A, PF1, KA_X); load_ptr(A, SRD_W1, KA_W1); load_ptr(A, SRD_DBG, KA_DBG)
    A("v_lshrrev_b32 v1, 6, v0")
    A("v_and_b32 v2, 63, v0")
    A("v_readfirstlane_b32 s16, v1")
    R = 32
    A(f"v_lshrrev_b32 v{R+1}, 5, v0")
    A(f"v_and_b32 v{R+2}, 31, v0")
    A(f"s_lshl_b32 s19, {wgid}, 3")
    A(f"v_add_u32 v{R+1}, s19, v{R+1}")
    A(f"v_lshlrev_b32 v{R+3}, 10, v{R+1}")
    A(f"v_lshl_add_u32 v{R+3}, v{R+2}, 4, v{R+3}")
    A(f"v_lshrrev_b32 v{R+4}, 4, v{R+1}")
    A(f"v_lshlrev_b32 v{R+4}, 14, v{R+4}")
    A(f"v_lshrrev_b32 v{R+5}, 2, v{R+2}")
    A(f"v_lshl_add_u32 v{R+4}, v{R+5}, 10, v{R+4}")
    A(f"v_and_b32 v{R+5}, 3, v{R+2}")
    A(f"v_and_b32 v{R+6}, 15, v{R+1}")
    A(f"v_lshl_add_u32 v{R+5}, v{R+5}, 4, v{R+6}")
    A(f"v_lshl_add_u32 v{R+4}, v{R+5}, 4, v{R+4}")
    A(f"v_add_u32 v{R+5}, 8192, v{R+4}")
    A(f"s_and_b32 s17, {wgid}, 7")
    A(f"s_lshr_b32 s18, {wgid}, 3")
    A("s_and_b32 s18, s18, 3")
    A("s_lshl_b32 s18, s18, 3")
    A("s_add_u32 s17, s17, s18")
    A(f"s_lshr_b32 s18, {wgid}, 5")
    A("s_waitcnt lgkmcnt(0)")
    A(f"s_mov_b32 s{PF1+2}, 0x200000"); A(f"s_mov_b32 s{PF1+3}, 0x00020000")
    A(f"buffer_load_dwordx4 a[{A_X}:{A_X+3}], v{R+3}, s[{PF1}:{PF1+3}], 0 offen")
    A(f"buffer_load_dwordx4 a[{A_X+4}:{A_X+7}], v{R+3}, s[{PF1}:{PF1+3}], 0 offen offset:512")
    A(f"v_mov_b32 v{V_LO}, v{R+4}")
    A(f"s_mov_b32 s{S_MASK}, 0xffff0000"); A(f"s_mov_b32 s{S_8K}, 8192")
    A("s_lshl_b32 s19, s18, 18")
    A("s_add_u32 s4, s40, s19"); A("s_addc_u32 s5, s41, 0")
    A("s_mov_b32 s6, 0x40000"); A("s_mov_b32 s7, 0x00020000")
    A("s_cmp_lt_u32 s16, 2")
    A("s_cselect_b32 s8, s42, s44"); A("s_cselect_b32 s9, s43, s45")
    A("s_mov_b32 s10, 0x400000"); A("s_mov_b32 s11, 0x00020000")
    A("s_lshl_b32 s19, s17, 20")
    A("s_lshl_b32 s20, s18, 17")
    A("s_add_u32 s19, s19, s20")
    A("s_and_b32 s20, s16, 1")
    A("s_lshl_b32 s20, s20, 16")
    A("s_add_u32 s19, s19, s20")
    A("s_add_u32 s12, s46, s19"); A("s_addc_u32 s13, s47, 0")
    A("s_mov_b32 s14, 0x10000"); A("s_mov_b32 s15, 0x00020000")
    for q in range(4): A(f"s_mov_b32 s{20+q}, {q*16384}")
    for x in range(8):
        ks, PI = x >> 2, x & 3
        A(f"s_mov_b32 s{24+x}, {(ks*32 + 16*(PI>>1) + 4*(PI&1))*8192}")
    A("s_lshl_b32 s32, s16, 13")
    A(f"s_add_u32 s33, s32, {LDS_W}")
    A("v_lshrrev_b32 v5, 3, v2")
    A("v_and_b32 v6, 7, v2")
    A("v_lshrrev_b32 v7, 4, v2")
    A("s_lshl_b32 s34, s16, 16")
    A("v_lshlrev_b32 v3, 10, v5")
    A("v_add_u32 v3, s34, v3")
    A("v_xor_b32 v8, v6, v7")
    A("v_lshl_add_u32 v4, v8, 4, v3")
    A("v_xor_b32 v8, 4, v8")
    A("v_lshl_add_u32 v8, v8, 4, v3")
    A("v_add_u32 v8, 8192, v8")
    A("v_mov_b32 v3, v4")
    A("v_mov_b32 v4, v8")
    A("v_and_b32 v8, 3, v5")
    A("v_lshrrev_b32 v9, 2, v5")
    A("v_lshl_add_u32 v8, v9, 3, v8")
    A("v_lshlrev_b32 v8, 13, v8")
    A("v_lshrrev_b32 v9, 1, v5")
    A("v_and_b32 v10, 1, v9")
    A("v_lshrrev_b32 v11, 1, v9")
    A("v_lshl_add_u32 v10, v11, 2, v10")
    A("v_lshlrev_b32 v11, 1, v9")
    A("s_cmp_lt_u32 s16, 2")
    A("s_cselect_b64 vcc, -1, 0")
    A("v_cndmask_b32 v10, v11, v10, vcc")
    A("v_xor_b32 v10, v6, v10")
    A("v_lshl_add_u32 v9, v10, 4, v8")
    A("s_lshl_b32 s34, s17, 8")
    A("s_and_b32 s35, s16, 1")
    A("s_lshl_b32 s35, s35, 7")
    A("s_add_u32 s34, s34, s35")
    A("v_add_u32 v9, s34, v9")

    def dma_stage(stg):
        buf = stg & 1
        G = []
        for p in range(8):
            G.append((f"s_add_u32 m0, s32, {buf*32768 + p*1024}",
                      f"buffer_load_dwordx4 v{3+(p&1)}, s[4:7], s{20+(p>>1)} offen lds"))
        for x in range(8):
            G.append((f"s_add_u32 m0, s33, {buf*32768 + x*1024}",
                      f"buffer_load_dwordx4 v9, s[8:11], s{24+x} offen lds"))
        G2 = []
        for p in range(8):
            G2.append(G[p]); G2.append(G[8+p])
        return G2
    def bump():
        return ["s_add_u32 s4, s4, 128", "s_addc_u32 s5, s5, 0", "s_add_u32 s8, s8, 524288", "s_addc_u32 s9, s9, 0"]
    for stg in range(2):
        for (m, d) in dma_stage(stg):
            A(m); A("s_nop 0"); A(d)
        for t in bump(): A(t)
    A(f"v_lshlrev_b32 v{V_PF}, 4, v0")
    def pf(srd, share_sh, n, tmp="s34"):
        L = []
        for i in range(n):
            L.append([f"s_lshl_b32 {tmp}, {wgid}, {share_sh}"] + ([f"s_add_u32 {tmp}, {tmp}, {i*4096}"] if i else []) +
                     [f"buffer_load_dwordx4 {PFD}, v{V_PF}, s[{srd}:{srd+3}], {tmp} offen"])
        return L
    for (p, sz, sh, n) in ((40, 0x200000, 13, 2), (42, 0x400000, 14, 4), (44, 0x400000, 14, 4)):
        A(f"s_mov_b32 s{PF2}, s{p}"); A(f"s_mov_b32 s{PF2+1}, s{p+1}"); A(f"s_mov_b32 s{PF2+2}, {hex(sz)}"); A(f"s_mov_b32 s{PF2+3}, 0x00020000")
        for g in pf(PF2, sh, n):
            for t in g: A(t)
    NPF0 = 10
    A("v_and_b32 v12, 15, v2")
    A("v_lshrrev_b32 v13, 1, v12")
    A("v_xor_b32 v13, v7, v13")
    A("v_lshlrev_b32 v10, 7, v12")
    A("v_lshl_add_u32 v10, v13, 4, v10")
    A("s_and_b32 s34, s16, 1")
    A("s_lshl_b32 s34, s34, 14")
    A("v_add_u32 v10, s34, v10")
    A("v_xor_b32 v11, 64, v10")
    A("v_lshrrev_b32 v13, 2, v12")
    A("v_and_b32 v14, 1, v7")
    A("v_lshl_add_u32 v13, v14, 2, v13")
    A("v_lshrrev_b32 v14, 1, v7")
    A("v_lshlrev_b32 v14, 11, v14")
    A("v_lshl_add_u32 v14, v13, 7, v14")
    A("v_and_b32 v15, 1, v12")
    A("v_lshl_add_u32 v14, v15, 3, v14")
    A("s_lshr_b32 s34, s16, 1")
    A("s_lshl_b32 s34, s34, 14")
    A(f"s_add_u32 s34, s34, {LDS_W}")
    A("v_add_u32 v14, s34, v14")
    A("v_lshrrev_b32 v13, 1, v13")
    A("v_and_b32 v15, 1, v13")
    A("v_lshrrev_b32 v16, 1, v13")
    A("v_lshl_add_u32 v15, v16, 2, v15")
    A("v_lshlrev_b32 v16, 1, v13")
    A("v_bfe_u32 v17, v12, 1, 1")
    A("v_lshlrev_b32 v18, 1, v17")
    A("v_xor_b32 v15, v15, v18")
    A("v_xor_b32 v16, v16, v17")
    A("s_cmp_lt_u32 s16, 2")
    A("s_cselect_b64 vcc, -1, 0")
    A("v_cndmask_b32 v15, v16, v15, vcc")
    A("s_cselect_b32 s34, 1, 2")
    A("s_cselect_b32 s35, 5, 6")
    A("v_lshl_add_u32 v5, v15, 4, v14")
    A("v_xor_b32 v16, s34, v15"); A("v_lshl_add_u32 v6, v16, 4, v14")
    A("v_xor_b32 v16, 4, v15");   A("v_lshl_add_u32 v7, v16, 4, v14")
    A("v_xor_b32 v16, s35, v15"); A("v_lshl_add_u32 v8, v16, 4, v14")
    T0, T1, T2 = 34, 35, 19
    A(f"s_and_b32 s{T0}, {wgid}, 7"); A(f"s_lshr_b32 s{T2}, {wgid}, 6"); A(f"s_and_b32 s{T2}, s{T2}, 3")
    A(f"s_lshl_b32 s{T2}, s{T2}, 3"); A(f"s_add_u32 s{T0}, s{T0}, s{T2}")
    A(f"s_lshr_b32 s{T1}, {wgid}, 3"); A(f"s_and_b32 s{T1}, s{T1}, 7")
    A(f"s_lshl_b32 s{S_POLL}, s{T0}, 3")
    if fuse: A(f"s_add_u32 s{S_POLL}, s{S_POLL}, 4")
    A(f"s_lshl_b32 s{T2}, s{T0}, 6")
    A(f"s_lshr_b32 s{S_GT}, s16, 1"); A(f"s_lshl_b32 s{S_GT}, s{S_GT}, 5"); A(f"s_add_u32 s{T2}, s{T2}, s{S_GT}")
    A("v_and_b32 v12, 31, v2")
    A(f"v_add_u32 v12, s{T2}, v12")
    A("v_lshrrev_b32 v13, 5, v2")
    A("v_lshlrev_b32 v13, 8, v13")
    A("v_lshrrev_b32 v14, 4, v12"); A("v_lshlrev_b32 v14, 14, v14")
    A("v_and_b32 v15, 15, v12"); A("v_lshl_add_u32 v14, v15, 4, v14")
    A(f"v_add_u32 v{V_B}, v14, v13")
    A("v_lshrrev_b32 v14, 3, v2"); A("v_lshlrev_b32 v14, 10, v14")
    A("v_bfe_u32 v15, v2, 4, 1"); A("v_lshlrev_b32 v15, 2, v15")
    A("v_and_b32 v16, 7, v2"); A("v_xor_b32 v15, v15, v16")
    A(f"v_lshl_add_u32 v{V_WD}, v15, 4, v14")
    A(f"s_lshl_b32 s{T2}, s16, 15"); A(f"v_add_u32 v{V_WD}, s{T2}, v{V_WD}")
    A("v_and_b32 v14, 15, v2"); A("v_lshrrev_b32 v15, 4, v2")
    A("v_lshrrev_b32 v16, 1, v15"); A("v_lshlrev_b32 v16, 3, v16")
    A("v_lshrrev_b32 v17, 2, v14"); A("v_add_u32 v16, v16, v17")
    A("v_and_b32 v15, 1, v15"); A("v_lshlrev_b32 v15, 1, v15")
    A("v_and_b32 v17, 1, v14"); A("v_add_u32 v15, v15, v17")
    A(f"s_and_b32 s{T2}, s16, 1"); A(f"s_lshl_b32 s{T2}, s{T2}, 2"); A(f"v_add_u32 v15, s{T2}, v15")
    A("v_bfe_u32 v17, v14, 3, 1"); A("v_lshlrev_b32 v17, 2, v17"); A("v_xor_b32 v15, v15, v17")
    A("v_lshlrev_b32 v15, 4, v15")
    A(f"v_lshl_add_u32 v{V_TR0}, v16, 7, v15")
    A("v_bfe_u32 v17, v14, 1, 1")
    A(f"v_lshl_add_u32 v{V_TR0}, v17, 3, v{V_TR0}")
    A(f"v_add_u32 v{V_TR1}, 0x20000, v{V_TR0}")
    A(f"s_lshl_b32 s{T2}, s{T1}, 7")
    A(f"s_add_u32 s{SRD_W1}, s{SRD_W1}, s{T2}"); A(f"s_addc_u32 s{SRD_W1+1}, s{SRD_W1+1}, 0")
    A(f"s_sub_u32 s{SRD_W1+2}, 0x80000, s{T2}"); A(f"s_mov_b32 s{SRD_W1+3}, 0x00020000")
    srd_off(A, SRD_H, 46, WS_H, 0x200000)
    srd_off(A, SRD_XN2, 46, WS_XN2F, 0x200000)
    srd_off(A, SRD_XNF, 46, WS_XNF, 0x200000)
    A(f"s_mov_b32 s{SRD_DBG+2}, 256"); A(f"s_mov_b32 s{SRD_DBG+3}, 0x00020000")
    A(f"s_lshl_b32 s{S_M0G}, s16, 12")
    A(f"s_lshl_b32 s{S_GOUT}, s{T1}, 1"); A(f"s_and_b32 s{T2}, s16, 1"); A(f"s_add_u32 s{S_GOUT}, s{S_GOUT}, s{T2}")
    A(f"s_lshl_b32 s{S_GOUT}, s{S_GOUT}, 10")
    A(f"s_lshr_b32 s{T2}, {wgid}, 3"); A(f"s_lshl_b32 s{T2}, s{T2}, 3")
    if fuse: A(f"s_add_u32 s{T2}, s{T2}, 4")
    A(f"v_mov_b32 v{V_SIG}, s{T2}"); A("v_bfrev_b32 v12, 1")
    A("v_cmp_eq_u32 vcc, 0, v0"); A("s_nop 1")
    A(f"v_cndmask_b32 v{V_SIG}, v12, v{V_SIG}, vcc")
    A(f"v_mov_b32 v{V_ONE}, 1")
    XNF = 94
    def ln_stream():
        L = []
        P = V_LP; t0, t1, t2, t3 = V_LT, V_LT+1, V_LT+2, V_LT+3; m = 0
        def red(x, t):
            return ["s_nop 1", f"v_add_f32_dpp v{x}, v{x}, v{x} quad_perm:[1,0,3,2] row_mask:0xf bank_mask:0xf",
                    "s_nop 1", f"v_add_f32_dpp v{x}, v{x}, v{x} quad_perm:[2,3,0,1] row_mask:0xf bank_mask:0xf",
                    "s_nop 1", f"v_add_f32_dpp v{x}, v{x}, v{x} row_half_mirror row_mask:0xf bank_mask:0xf",
                    "s_nop 1", f"v_add_f32_dpp v{x}, v{x}, v{x} row_mirror row_mask:0xf bank_mask:0xf",
                    f"v_mov_b32 v{t}, v{x}", "s_nop 1", f"v_permlane16_swap_b32 v{x}, v{t}", "s_nop 1", f"v_add_f32 v{x}, v{x}, v{t}"]
        def ln():
            R_ = []
            for r in range(8):
                R_ += [f"v_lshlrev_b32 v{t0}, 16, v{P+r}", f"v_and_b32 v{t1}, s{S_MASK}, v{P+r}"]
                if r == 0: R_ += [f"v_add_f32 v{m}, v{t0}, v{t1}"]
                else: R_ += [f"v_add_f32 v{t0}, v{t0}, v{t1}", f"v_add_f32 v{m}, v{m}, v{t0}"]
            R_ += red(m, t0) + [f"v_mul_f32 v{m}, 0x3b000000, v{m}"]
            for r in range(8):
                R_ += [f"v_lshlrev_b32 v{t0}, 16, v{P+r}", f"v_and_b32 v{t1}, s{S_MASK}, v{P+r}",
                       f"v_sub_f32 v{t0}, v{t0}, v{m}", f"v_sub_f32 v{t1}, v{t1}, v{m}"]
                if r == 0: R_ += [f"v_mul_f32 v{t3}, v{t0}, v{t0}"]
                else: R_ += [f"v_fma_f32 v{t3}, v{t0}, v{t0}, v{t3}"]
                R_ += [f"v_fma_f32 v{t3}, v{t1}, v{t1}, v{t3}"]
            R_ += red(t3, t0)
            R_ += [f"v_mov_b32 v{t1}, 0x3727c5ac", f"v_fmac_f32 v{t1}, 0x3b000000, v{t3}", f"v_rsq_f32 v{t3}, v{t1}", "s_nop 0"]
            for r in range(8):
                R_ += [f"v_lshlrev_b32 v{t0}, 16, v{P+r}", f"v_and_b32 v{t1}, s{S_MASK}, v{P+r}",
                       f"v_sub_f32 v{t0}, v{t0}, v{m}", f"v_sub_f32 v{t1}, v{t1}, v{m}",
                       f"v_mul_f32 v{t0}, v{t0}, v{t3}", f"v_mul_f32 v{t1}, v{t1}, v{t3}",
                       f"v_cvt_pk_bf16_f32 v{P+r}, v{t0}, v{t1}"]
            return R_
        for r in range(8): L.append(f"v_accvgpr_read_b32 v{P+r}, a{A_X+r}")
        L += ln()
        L += [("ln", f"buffer_store_dwordx4 v[{P}:{P+3}], v{V_LO}, s[{SRD_XNF}:{SRD_XNF+3}], 0 offen sc1"),
              ("ln", f"buffer_store_dwordx4 v[{P+4}:{P+7}], v{V_LO}, s[{SRD_XNF}:{SRD_XNF+3}], s{S_8K} offen sc1")]
        L += ln()
        L += [("ln", f"buffer_store_dwordx4 v[{P}:{P+3}], v{V_LO}, s[{SRD_XN2}:{SRD_XN2+3}], 0 offen sc1"),
              ("ln", f"buffer_store_dwordx4 v[{P+4}:{P+7}], v{V_LO}, s[{SRD_XN2}:{SRD_XN2+3}], s{S_8K} offen sc1")]
        return L

    def reads(n, isK):
        p = n & 1; stg = n >> 1; ks = n & 1; buf = stg & 1
        Rr = []
        for i in range(8):
            if isK:
                ip, u = i >> 1, i & 1
                ng = ip >> 1; var = 2*(ip & 1) + u
            else:
                ng = i >> 2; var = i & 3
            for rd in range(2):
                off = buf*32768 + (ng*8 + ks*4 + rd)*1024
                Rr.append(f"ds_read_b64_tr_b16 {wfr_half(p,i,rd)}, v{5+var} offset:{off}")
            Rr.append(f"ds_read_b128 {tfr(p,i)}, v{10+ks} offset:{buf*32768 + i*2048}")
        return Rr
    PLAN = {2: [(KA_W1, 0x80000, 12, 1, 0), (KA_W2, 0x80000, 12, 1, 0)],
            4: [(KA_WQ, 0x400000, 14, 2, 0)], 6: [(KA_WQ, 0x400000, 14, 2, 2), (KA_W3, 0x1c0000, 13, 1, 0)],
            8: [(KA_W3, 0x1c0000, 13, 1, 1), (KA_W4, 0x1c0000, 13, 2, 0)],
            10: [(KA_WO, 0x400000, 14, 2, 0)], 12: [(KA_WO, 0x400000, 14, 2, 2)]}
    import os
    LNCAP = int(os.environ.get("LNCAP", "2"))
    DSP = int(os.environ.get("DSP", "4"))
    def r_tmp(k): return [5,6,7,8,9,10,11,13][k]
    def is_vm(t): return t.startswith("buffer_")

    def body(isK):
        log = ["x"]*2 + ["s0"]*16 + ["s1"]*16 + ["pf"]*NPF0
        def need(*tags):
            last = max([i for i, t in enumerate(log) if t in tags] + [-1])
            return min(63, len(log) - 1 - last)
        if "STN" not in os.environ: st(0)
        A(f"s_waitcnt vmcnt({need('x', 's0')})")
        A("s_barrier")
        if "STN" not in os.environ: st(1)
        for t in reads(0, isK): A(t)
        lns = ln_stream()
        sig_done = False; ln_end = [None]; SIGD = 2
        for n in range(16):
            p = n & 1
            M = []
            for i in range(8):
                for j in range(8):
                    if isK: a_, b_ = wfr(p, i), tfr(p, j)
                    else:   a_, b_ = tfr(p, i), wfr(p, j)
                    c = "0" if n == 0 else acc(i, j)
                    M.append(f"v_mfma_f32_16x16x32_bf16 {acc(i,j)}, {a_}, {b_}, {c}")
            F = []
            tags = []
            if n == 15: tags = []
            elif n & 1: tags = [f"s{(n+1)//2}"]
            elif n >= 4: tags = [f"w{n//2}"]
            if n == NP + 1: tags.append("poll")
            if not lns and ln_end[0] is None: ln_end[0] = n
            do_sig = (not sig_done) and (not lns) and n >= ln_end[0] + SIGD and n < 15
            if do_sig: tags.append("ln")
            w = f"vmcnt({need(*tags)}) " if tags else ""
            A(f"s_waitcnt {w}lgkmcnt(0)")
            if n < 15 and tags and not ("nobar" in os.environ.get("K1X", "") and not do_sig): A("s_barrier")
            STN = [int(x) for x in os.environ.get("STN", "-1,-1,1,9").split(",")]
            if stamp and n in STN: st(STN.index(n))
            if n == NP + 1:
                lsp, lok = A.newlabel("SPIN"), A.newlabel("OK")
                A(f"v_readfirstlane_b32 s{S_GT}, v{V_POLL}")
                if fuse: A(f"s_and_b32 s{S_GT}, s{S_GT}, 0xff")
                A(f"s_cmp_ge_u32 s{S_GT}, 8"); A(f"s_cbranch_scc0 {lsp}")
                A.label(lok)
                ool.append((lsp, lok))
            if n < 15:
                for k, t in enumerate(reads(n+1, isK)): F.append((k, "", t))
            if n + 1 in PLAN:
                for k, x in enumerate(PLAN[n+1]):
                    F.append((30 + k, "", f"s_load_dwordx2 s[{(PF1, PF2)[k]}:{(PF1, PF2)[k]+1}], s[0:1], {x[0]}"))
            if (n & 1) and (n >> 1) + 2 <= 7:
                stg = (n >> 1) + 2
                G = dma_stage(stg)
                G = [g for k, g in enumerate(G) if not ((k & 1) and (k >> 1) >= 4)]
                for k, (m, d) in enumerate(G):
                    F.append((1 + DSP*k, "", m)); F.append((2 + DSP*k, f"s{stg}", d))
                F.append((62, "", "s_add_u32 s4, s4, 128")); F.append((62, "", "s_addc_u32 s5, s5, 0"))
            if (n & 1) == 0 and n >= 2 and (n >> 1) + 1 <= 7:
                stg = (n >> 1) + 1
                G = dma_stage(stg)
                G = [g for k, g in enumerate(G) if ((k & 1) and (k >> 1) >= 4)]
                for k, (m, d) in enumerate(G):
                    F.append((1 + 8*k, "", m)); F.append((2 + 8*k, f"w{stg}", d))
                F.append((30, "", "s_add_u32 s8, s8, 524288")); F.append((30, "", "s_addc_u32 s9, s9, 0"))
            if n in PLAN:
                g = 34
                for k, x in enumerate(PLAN[n]):
                    srd = (PF1, PF2)[k]
                    F.append((g, "", f"s_mov_b32 s{srd+2}, {hex(x[1])}")); F.append((g, "", f"s_mov_b32 s{srd+3}, 0x00020000"))
                    for i in range(x[4], x[4] + x[3]):
                        F.append((g, "", f"s_lshl_b32 s34, {wgid}, {x[2]}"))
                        if i: F.append((g, "", f"s_add_u32 s34, s34, {i*4096}"))
                        F.append((g + 1, "pf", f"buffer_load_dwordx4 {PFD}, v{V_PF}, s[{srd}:{srd+3}], s34 offen"))
                        g += 8
            if do_sig:
                F.append((63, "sig", f"buffer_atomic_add v{V_ONE}, v{V_SIG}, s[{SRD_DBG}:{SRD_DBG+3}], 0 offen sc1"))
                sig_done = True
            def g1w(cs, g0, sp):
                k = 0
                for c in cs:
                    for i in range(4):
                        F.append((g0 + sp*k, "", f"s_add_u32 m0, s{S_M0G}, {G1BASE[c] + i*1024}"))
                        F.append((g0 + sp*k, "", f"s_mov_b32 s{S_GT}, {c*131072 + i*8192}"))
                        F.append((g0 + 1 + sp*k, "g1w", f"buffer_load_dwordx4 v{V_WD}, s[{SRD_W1}:{SRD_W1+3}], s{S_GT} offen lds"))
                        k += 1
            def xn2(fs, g0, sp):
                for k, f in enumerate(fs):
                    c, s_ = f >> 3, f & 7
                    if s_ == 0 or k == 0: F.append((g0 + sp*k, "", f"s_mov_b32 s{S_GX}, {4096*c}"))
                    F.append((g0 + 1 + sp*k, "xn2", f"buffer_load_dwordx4 {ar(gB(f))}, v{V_B}, s[{SRD_XN2}:{SRD_XN2+3}], s{S_GT} offen offset:{512*s_} sc1".replace(f"s{S_GT} offen", f"s{S_GX} offen")))
            if n == 8: g1w((0,), 32, 8)
            if n == 10: g1w((1,), 32, 8)
            if n == 13: g1w((2, 3), 1, 6)
            if n == NP:
                F.append((-1, "", f"v_mov_b32 v{V_POLL}, 0"))
                F.append((0, "poll", f"buffer_load_dword v{V_POLL}, v{V_POLL}, s[{SRD_DBG}:{SRD_DBG+3}], s{S_POLL} offen sc1"))
            if n == 12: xn2(range(0, 4), 33, 7)
            if n == 13: xn2(range(4, 8), 50, 3)
            if n == 14: xn2(range(8, 24), 1, 4)
            if n == 15: xn2(range(24, 32), 1, 6)
            if lns:
                cnt = [0]*64
                for g, _, t in F:
                    if g < 64 and not t.startswith("s_"): cnt[g] += 1
                for g in range(64):
                    room = LNCAP - cnt[g]
                    while room > 0 and lns:
                        if isinstance(lns[0], tuple) and g < 58: break
                        x = lns.pop(0)
                        tg, t = x if isinstance(x, tuple) else ("", x)
                        F.append((g, tg, t))
                        if not t.startswith("s_nop"): room -= 1
            KX = os.environ.get("K1X", "")
            if "nopf" in KX: F = [f for f in F if f[1] != "pf"]
            if "nodma" in KX: F = [f for f in F if not (f[2].endswith(" lds") and f[1] != "g1w")]
            if "nord" in KX: F = [f for f in F if not f[2].startswith("ds_read")]
            F.sort(key=lambda x: x[0])
            for g, tg, t in F:
                if tg: log.append(tg)
            interleave(A, M, [(g, t) for g, _, t in F])
        assert not lns and sig_done
        st(4)
        A("s_nop 7"); A("s_nop 7")
        A("v_lshrrev_b32 v13, 4, v2")
        A("v_lshrrev_b32 v14, 1, v13")
        A("v_and_b32 v15, 1, v13")
        if isK:
            A("v_bfe_u32 v16, v2, 3, 1")
            A("v_and_b32 v17, 7, v2")
            A("v_lshl_add_u32 v17, v16, 4, v17")
            A("v_lshl_add_u32 v17, v15, 5, v17")
            A("v_lshlrev_b32 v17, 4, v17")
            A("v_lshl_add_u32 v12, v14, 10, v17")
        else:
            A("v_and_b32 v17, 15, v2")
            A("v_lshl_add_u32 v17, v15, 5, v17")
            A("v_lshlrev_b32 v17, 4, v17")
            A("v_lshl_add_u32 v12, v14, 12, v17")
            A("v_add_u32 v12, 16384, v12")
        cnt = 0
        if isK: A("s_mov_b32 s35, 0x3e0293ee")
        for x in range(32):
            if isK:
                j, ip = x >> 2, x & 3
                srcs = [accr(2*ip, j, r) for r in range(4)] + [accr(2*ip+1, j, r) for r in range(4)]
                so = (j >> 2)*32768 + ((j >> 1) & 1)*8192 + (ip >> 1)*4096
                io = (ip & 1)*2048 + (j & 1)*128
            else:
                beta, nb = x >> 3, x & 7
                srcs = [accr(2*beta, nb, r) for r in range(4)] + [accr(2*beta+1, nb, r) for r in range(4)]
                so = (beta >> 1)*32768 + (beta & 1)*8192
                io = (nb >> 1)*1024 + (nb & 1)*256
            t = 16 + 4*(cnt % 3); cnt += 1
            vs = []
            for k, (ty, r) in enumerate(srcs):
                if ty == "a":
                    A(f"v_accvgpr_read_b32 v{r_tmp(k)}, a{r}")
                    vs.append(r_tmp(k))
                else:
                    vs.append(r)
            if isK:
                for k in range(8): A(f"v_mul_f32 v{vs[k]}, s35, v{vs[k]}")
            for k in range(4):
                A(f"v_cvt_pk_bf16_f32 v{t+k}, v{vs[2*k]}, v{vs[2*k+1]}")
            A(f"s_mov_b32 s34, {so}")
            A(f"buffer_store_dwordx4 v[{t}:{t+3}], v12, s[12:15], s34 offen offset:{io}" + K1SC)
    lv, le = A.newlabel("KVV"), A.newlabel("KVE")
    A("s_cmp_lt_u32 s16, 2")
    A(f"s_cbranch_scc0 {lv}")
    body(True)
    A(f"s_branch {le}")
    A.label(lv)
    body(False)
    A.label(le)
    st(5)
    A("s_waitcnt vmcnt(32)")
    A("s_barrier")
    if fuse:
        A("v_and_b32 v61, 31, v2"); A("v_lshlrev_b32 v61, 3, v61"); A("v_add_u32 v61, 4, v61")
        A(f"buffer_load_dword v60, v61, s[{SRD_DBG}:{SRD_DBG+3}], 0 offen sc1")
    ACC = 32
    def wr(c):
        L = []
        for s_ in range(8):
            for rd in range(2):
                b = 64 + 32*(c & 1) + 4*s_ + 2*rd
                base = G1BASE[c]
                L.append(f"ds_read_b64_tr_b16 a[{b}:{b+1}], v{V_TR0 if base < 65536 else V_TR1} offset:{(base & 65535) + s_*2048 + rd*512}")
        return L
    for t in wr(0): A(t)
    for c in range(4):
        M = []
        for s_ in range(8):
            cc = "0" if (c == 0 and s_ == 0) else vr(ACC, 16)
            M.append(f"v_mfma_f32_32x32x16_bf16 {vr(ACC,16)}, {ar(64+32*(c&1)+4*s_)}, {ar(gB(8*c+s_))}, {cc}")
        A("s_waitcnt lgkmcnt(0)")
        F = [(k >> 1, t) for k, t in enumerate(wr(c+1))] if c < 3 else []
        interleave(A, M, F)
    A(f"v_mov_b32 v48, {GC0}"); A(f"v_mov_b32 v49, {GC0}"); A(f"v_mov_b32 v50, {GC1}"); A(f"v_mov_b32 v51, {GC1}")
    A("s_nop 7"); A("s_nop 7")
    st(6)
    gelu_block(A, ACC, 16, 64, 48, 50)
    for r in range(8): A(f"v_cvt_pk_bf16_f32 v{52+r}, v{ACC+2*r}, v{ACC+2*r+1}")
    A(f"buffer_store_dwordx4 {vr(52)}, v{V_B}, s[{SRD_H}:{SRD_H+3}], s{S_GOUT} offen" + K1SC)
    A(f"buffer_store_dwordx4 {vr(56)}, v{V_B}, s[{SRD_H}:{SRD_H+3}], s{S_GOUT} offen offset:512" + K1SC)
    if fuse:
        lsp2, lok2 = A.newlabel("GSPIN"), A.newlabel("GOK")
        A("s_waitcnt vmcnt(2)")
        A("v_and_b32 v60, 0xff, v60"); A("v_cmp_le_u32 vcc, 8, v60")
        A("s_cmp_eq_u64 vcc, -1"); A(f"s_cbranch_scc0 {lsp2}")
        A.label(lok2)
    else:
        A("s_waitcnt vmcnt(0)")
    if ool:
        lend = A.newlabel("K1E")
        A(f"s_branch {lend}")
        for lsp, lok in ool:
            lp = A.newlabel("SP")
            A.label(lsp)
            A(f"s_mov_b32 s34, {npoll}")
            A.label(lp)
            A(f"v_mov_b32 v{V_POLL}, 0")
            A(f"buffer_load_dword v{V_POLL}, v{V_POLL}, s[{SRD_DBG}:{SRD_DBG+3}], s{S_POLL} offen sc1")
            A("s_waitcnt vmcnt(0)")
            A(f"v_readfirstlane_b32 s{S_GT}, v{V_POLL}")
            if fuse: A(f"s_and_b32 s{S_GT}, s{S_GT}, 0xff")
            A(f"s_cmp_ge_u32 s{S_GT}, 8"); A(f"s_cbranch_scc1 {lok}")
            A("s_sleep 8")
            A("s_sub_u32 s34, s34, 1"); A("s_cmp_lg_u32 s34, 0"); A(f"s_cbranch_scc1 {lp}")
            A(f"s_branch {lok}")
        if fuse:
            lp = A.newlabel("SP")
            A.label(lsp2)
            A(f"s_mov_b32 s34, {npoll}")
            A.label(lp)
            A("s_sleep 8")
            A(f"buffer_load_dword v60, v61, s[{SRD_DBG}:{SRD_DBG+3}], 0 offen sc1")
            A("s_waitcnt vmcnt(0)")
            A("v_and_b32 v60, 0xff, v60"); A("v_cmp_le_u32 vcc, 8, v60")
            A("s_cmp_eq_u64 vcc, -1"); A(f"s_cbranch_scc1 {lok2}")
            A("s_sub_u32 s34, s34, 1"); A("s_cmp_lg_u32 s34, 0"); A(f"s_cbranch_scc1 {lp}")
            A(f"s_branch {lok2}")
        A.label(lend)
    if fuse:
        A("s_barrier")
        A("v_mbcnt_lo_u32_b32 v0, -1, 0"); A("v_mbcnt_hi_u32_b32 v0, -1, v0")
        A("v_lshl_add_u32 v0, s16, 6, v0")
```

```python
import sys, os
from common import *
from kv import emit_kv
from ln import emit_ln
from attn import emit_attn
from bpath import emit_g12, emit_g3
from fin import emit_final
from fin2 import emit_final2
from attn2 import emit_attn2
from k1 import emit_k1
HEADER = open("../cdna_kernels/recurrent_scan__compressed_kv_cla__mixer_s_mlp__prompt.s.ref").read().split("; Override")[0]
def stamp_begin(A):
    A("s_memtime s[96:97]"); A("s_memrealtime s[98:99]"); A("v_lshrrev_b32 v1, 6, v0"); A("s_nop 1"); A("v_readfirstlane_b32 s91, v1")
def mk_stamp(A):
    def st(k):
        A(f"s_memtime s[{62+2*k}:{63+2*k}]")
    return st
KIDX = [0]
def stamp_dump(A, n, wg=17):
    l = A.newlabel("ST")
    A("s_memtime s[92:93]"); A("s_memrealtime s[94:95]")
    A("s_load_dwordx2 s[8:9], s[0:1], 96")
    A("s_load_dwordx2 s[12:13], s[0:1], 104")
    A("s_waitcnt lgkmcnt(0)")
    KIDX[0] += 1
    A(f"s_add_u32 s4, s12, {hex(WS_FLAG + 0x100000 + (KIDX[0]-1)*4096)}"); A("s_addc_u32 s5, s13, 0"); A("s_mov_b32 s6, 4096"); A("s_mov_b32 s7, 0x00020000")
    A("s_lshl_b32 s10, s2, 3"); A("v_mov_b32 v1, s10"); A("v_mov_b32 v2, s98"); A("v_mov_b32 v3, s94")
    A("buffer_store_dwordx2 v[2:3], v1, s[4:7], 0 offen")
    if os.environ.get("XST"):
        k1, k2 = [int(x) for x in os.environ["XST"].split(",")]
        A(f"s_sub_u32 s10, s{62+2*k1}, s96"); A(f"s_sub_u32 s11, s{62+2*k2}, s96"); A("v_mov_b32 v2, s10"); A("v_mov_b32 v3, s11")
        A("buffer_store_dwordx2 v[2:3], v1, s[4:7], 0 offen offset:2048")
    A(f"s_cmp_lg_u32 s2, {wg}"); A(f"s_cbranch_scc1 {l}")
    A("s_add_u32 s4, s8, 256"); A("s_addc_u32 s5, s9, 0"); A("s_mov_b32 s6, 256"); A("s_mov_b32 s7, 0x00020000")
    A("s_lshl_b32 s91, s91, 6"); A("v_mov_b32 v1, s91")
    A("v_mbcnt_lo_u32_b32 v4, -1, 0"); A("v_mbcnt_hi_u32_b32 v4, -1, v4")
    A("v_cmp_eq_u32 vcc, 0, v4"); A("s_and_saveexec_b64 s[12:13], vcc")
    for k in range(n):
        A(f"s_sub_u32 s10, s{62+2*k}, s96"); A("v_mov_b32 v2, s10")
        A(f"buffer_store_dword v2, v1, s[4:7], 0 offen offset:{4*k}")
    A("s_sub_u32 s92, s92, s96"); A("s_sub_u32 s94, s94, s98")
    A("v_mov_b32 v2, s92"); A("v_mov_b32 v3, s94")
    A(f"buffer_store_dwordx2 v[2:3], v1, s[4:7], 0 offen offset:{4*n}")
    A("s_waitcnt vmcnt(0)")
    A.label(l)
def emit_lid(A, per, lds_addr=0):
    sk, tr, got = A.newlabel("SK"), A.newlabel("TR"), A.newlabel("GOT")
    A("s_load_dwordx2 s[4:5], s[0:1], 96")
    A("s_getreg_b32 s3, hwreg(HW_REG_XCC_ID, 0, 4)")
    A("v_readfirstlane_b32 s6, v0")
    A(f"v_mov_b32 v2, {lds_addr}")
    A("s_cmp_lg_u32 s6, 0"); A(f"s_cbranch_scc1 {sk}")
    A("s_mov_b64 exec, 1")
    A("s_mov_b32 s7, 0")
    A("v_mov_b32 v1, 1")
    A("s_waitcnt lgkmcnt(0)")
    A.label(tr)
    A("s_add_u32 s8, s3, s7"); A("s_and_b32 s8, s8, 7")
    A("s_lshl_b32 s9, s8, 5"); A("v_mov_b32 v3, s9")
    A("global_atomic_add v4, v3, v1, s[4:5] sc0 sc1")
    A("s_waitcnt vmcnt(0)")
    A("v_readfirstlane_b32 s9, v4")
    A(f"s_cmp_lt_u32 s9, {per}"); A(f"s_cbranch_scc1 {got}")
    A("s_add_u32 s7, s7, 1"); A("s_cmp_lt_u32 s7, 8"); A(f"s_cbranch_scc1 {tr}")
    A("s_mov_b32 s9, 0x1000")
    A.label(got)
    A("s_lshl_b32 s9, s9, 3"); A("s_add_u32 s9, s9, s8")
    A("v_mov_b32 v1, s9")
    A("ds_write_b32 v2, v1")
    A("s_mov_b64 exec, -1")
    A.label(sk)
    A("s_waitcnt lgkmcnt(0)"); A("s_barrier")
    A("ds_read_b32 v1, v2")
    A("s_waitcnt lgkmcnt(0)")
    A("v_readfirstlane_b32 s2, v1")
    A("s_barrier")
LID = [False]
UID = [0]
def simple_kernel(name, emit, grid, lds, stamp=False, nst=8, wg=17, vgpr=512, accum=256):
    A = Asm(); UID[0] += 100000; A.uid = UID[0]
    kernel_begin(A, name)
    e = A.newlabel("END")
    A(f"s_cmp_ge_u32 s2, {grid}"); A(f"s_cbranch_scc1 {e}")
    if LID[0]:
        emit_lid(A, grid // 8)
        A(f"s_cmp_ge_u32 s2, {grid}"); A(f"s_cbranch_scc1 {e}")
        lds = max(lds, 64)
    if stamp:
        stamp_begin(A)
        for k in range(nst): A(f"s_mov_b64 s[{62+2*k}:{63+2*k}], 0") if False else None
    pfc = os.environ.get("PFC", "1")
    if pfc == "1" or name[:2] in pfc.split(","):
        lp = A.newlabel("PC")
        A("s_getpc_b64 s[62:63]"); A.label(lp)
        A("s_lshr_b32 s3, s2, 3"); A(f"s_and_b32 s3, s3, {7 if name[:2] == 'ma' else 3}"); A("s_lshl_b32 s3, s3, 14")
        A("v_lshlrev_b32 v255, 6, v0"); A("v_add_u32 v255, s3, v255")
        A(f"v_min_u32 v255, {e}-{lp}, v255")
        if os.environ.get("PFV", "1") == "1":
            A("v_mov_b32 v253, s63"); A("v_add_co_u32 v252, vcc, s62, v255"); A("s_nop 1"); A("v_addc_co_u32 v253, vcc, 0, v253, vcc")
            A("global_load_dword v254, v[252:253], off")
        else:
            A("global_load_dword v254, v255, s[62:63]")
    emit(A, mk_stamp(A) if stamp else None)
    A("s_waitcnt vmcnt(0)")
    if stamp: stamp_dump(A, nst, wg)
    A.label(e); A("s_endpgm")
    return A.text(), kernel_desc(name, vgpr=vgpr, accum=accum), (name, grid, 256, lds)
def emit_prefetch(A):
    mats = [(KA_CKV, 0x200000), (KA_WUK, 0x400000), (KA_WUV, 0x400000), (KA_W1, 0x80000), (KA_W2, 0x80000), (KA_W3, 0x1c0000), (KA_WQ, 0x400000), (KA_WO, 0x400000), (KA_W4, 0x1c0000)]
    for i, (ka, sz) in enumerate(mats): A(f"s_load_dwordx2 s[{44+2*i}:{45+2*i}], s[0:1], {ka}")
    A("v_lshlrev_b32 v58, 4, v0")
    A("s_lshl_b32 s70, s2, 14")
    A("v_and_b32 v59, 63, v0"); A("v_lshlrev_b32 v59, 4, v59")
    A("v_lshrrev_b32 v57, 6, v0"); A("v_lshlrev_b32 v57, 12, v57")
    A("v_add_u32 v58, v57, v59"); A("v_add_u32 v58, s70, v58")
    A("s_waitcnt lgkmcnt(0)")
    for i, (ka, sz) in enumerate(mats):
        A(f"s_mov_b32 s72, s{44+2*i}"); A(f"s_mov_b32 s73, s{45+2*i}"); A(f"s_mov_b32 s74, {hex(sz)}"); A("s_mov_b32 s75, 0x00020000")
        for k in range(4): A(f"buffer_load_dwordx4 v[60:63], v58, s[72:75], 0 offen offset:{k*1024}")
def k_lnp(): return simple_kernel("ln_kernel", lambda A, st: (emit_ln(A), emit_prefetch(A)), 256, 0, False, vgpr=64, accum=64)
def k_pln(): return simple_kernel("ln_kernel", lambda A, st: (emit_prefetch(A), emit_ln(A)), 256, 0, False, vgpr=64, accum=64)
def k_kv(stamp=False): return simple_kernel("kv_kernel", lambda A, st: emit_kv(A, stamp=st), 256, 131072, stamp)
def k_ln(stamp=False): return simple_kernel("ln_kernel", lambda A, st: emit_ln(A), 256, 0, stamp, vgpr=64, accum=64)
def k_attn(stamp=False, wg=17, nst=7): return simple_kernel("attn_kernel", lambda A, st: emit_attn(A, stamp=st), 256, 163840, stamp, nst=nst, wg=wg)
def k_g1(): return simple_kernel("g1_kernel", lambda A, st: emit_g12(A, 1), 256, 65536)
def k_g2(): return simple_kernel("g2_kernel", lambda A, st: emit_g12(A, 2), 256, 65536)
def k_g3(): return simple_kernel("g3_kernel", lambda A, st: emit_g3(A), 224, 131072)
def k_fin(stamp=False): return simple_kernel("fin_kernel", lambda A, st: emit_final(A, stamp=st), 256, 131072, stamp, nst=5, wg=int(os.environ.get("WG", "17")))
def k_fin2(stamp=False): return simple_kernel("fin_kernel", lambda A, st: emit_final2(A, stamp=st), 256, 131072, stamp, nst=7, wg=int(os.environ.get("WG", "17")))
def k_k1(stamp=False): return simple_kernel("k1_kernel", lambda A, st: emit_k1(A, stamp=st), 256, 163840, stamp, nst=7)
def k_k2(stamp=False, g2=True, g3=True, wg=17): return simple_kernel("attn_kernel", lambda A, st: emit_attn2(A, stamp=st, g2=g2, g3=g3), 256, 163840, stamp, nst=7, wg=wg)
def k_attn_plain(): return simple_kernel("attn_kernel", lambda A, st: emit_attn(A), 256, 163840)
def k_attn2(stamp=False, wg=17, nst=6): return simple_kernel("attn_kernel", lambda A, st: emit_attn2(A, stamp=st), 256, 163840, stamp, nst=nst, wg=wg)
def k_main(stamp=False, wg=17):
    return simple_kernel("main_kernel", lambda A, st: (emit_k1(A, fuse=True), emit_attn2(A, stamp=st, g2=True, g3=2, fuse=True)), 256, 163840, stamp, nst=7, wg=wg)
def write(parts, outp):
    open(outp, "w").write(file_text([p[2] for p in parts], "".join(p[0] for p in parts), [p[1] for p in parts], HEADER))
if __name__ == "__main__":
    what = sys.argv[1]; outp = sys.argv[2]
    parts = []
    if what.endswith("x"): LID[0] = True; what = what[:-1]
    if what == "kv": parts = [k_kv(True)]
    if what == "attn": parts = [k_ln(), k_kv(), k_attn(True)]
    if what == "attnf":
        import attn; attn.FINE = True
        parts = [k_ln(), k_kv(), k_attn(True, nst=14)]
    if what == "bpath": parts = [k_ln(), k_g1(), k_g2(), k_g3()]
    if what == "full": parts = [k_ln(), k_kv(), k_g1(), k_g2(), k_g3(), k_attn_plain(), k_fin()]
    if what == "attn2": parts = [k_ln(), k_kv(), k_attn2(True)]
    if what == "full2": parts = [k_ln(), k_kv(), k_g1(), k_g2(), k_g3(), k_attn2(False), k_fin()]
    if what == "full2p": parts = [k_lnp(), k_kv(), k_g1(), k_g2(), k_g3(), k_attn2(False), k_fin()]
    if what == "full2q": parts = [k_pln(), k_kv(), k_g1(), k_g2(), k_g3(), k_attn2(False), k_fin()]
    if what == "finst": parts = [k_pln(), k_kv(), k_g1(), k_g2(), k_g3(), k_attn2(False), k_fin(True)]
    if what == "f3a": parts = [k_k1(), k_g2(), k_g3(), k_attn2(False), k_fin()]
    if what == "k1st": parts = [k_k1(True), k_g2(), k_g3(), k_attn2(False), k_fin()]
    if what == "f3b": parts = [k_k1(), k_k2(), k_fin()]
    if what == "f4a": parts = [k_k1(), k_k2(g3=2), k_fin()]
    if what == "f4st": parts = [k_k1(), k_k2(True, g3=2), k_fin()]
    if what == "f3c": parts = [k_k1(), k_k2(g3=False), k_g3(), k_fin()]
    if what == "k2st": parts = [k_k1(), k_k2(True), k_fin()]
    if what == "finst2": parts = [k_k1(), k_k2(g3=2), k_fin(True)]
    if what == "k1st2": parts = [k_k1(True), k_k2(g3=2), k_fin()]
    if what == "allst": parts = [k_k1(True), k_k2(True, g3=2), k_fin(True)]
    if what == "f5a": parts = [k_k1(), k_k2(g3=2), k_fin2()]
    if what == "f7a": parts = [k_main(), k_fin2()]
    if what == "finst5": parts = [k_k1(), k_k2(g3=2), k_fin2(True)]
    if what == "allst5": parts = [k_k1(True), k_k2(True, g3=2), k_fin2(True)]
    write(parts, outp)
```
